```python
import torch

def _softmax(x, axis=-1):
    return torch.softmax(x, dim=axis)
def _gelu(x):
    return torch.nn.functional.gelu(x, approximate="tanh")
def _silu(x):
    return torch.nn.functional.silu(x)
def _sigmoid(x):
    return torch.sigmoid(x)
def _layernorm(x, axis=-1, eps=1e-5):
    m = x.mean(dim=axis, keepdim=True)
    v = x.var(dim=axis, keepdim=True, unbiased=False)
    return (x - m) / torch.sqrt(v + eps)
def _scatter_add(tgt, idx, src, axis=0):
    return tgt.clone().index_add_(axis, idx, src)
def _segment_sum(src, seg, n):
    out = torch.zeros((n,) + src.shape[1:], dtype=src.dtype)
    return out.index_add_(0, seg, src)
def _pad(x, pw):
    flat = tuple(v for pair in reversed(pw) for v in pair)
    return torch.nn.functional.pad(x, flat)

kernel_name = 'interleave_layers__softmax_full_mha__dense_activation_mish__prompt'

def setup_inputs():

    _w = (lambda a: (lambda t: t.to(torch.bfloat16) if t.is_floating_point() else t)(torch.as_tensor(a)))
    def _A_setup():
        B, S, D = 1, 2048, 448
        return {
            "x": _w((lambda *s: torch.randn(*s, dtype=torch.bfloat16) * 0.05)(B, S, D)),
            "wqkv": _w((lambda *s: torch.randn(*s, dtype=torch.bfloat16) * 0.05)(D, 3 * D)),
            "wo": _w((lambda *s: torch.randn(*s, dtype=torch.bfloat16) * 0.05)(D, D)),
        }
    _A_in = _A_setup()

    def _B_setup():
        B, S, D, F = 1, 2048, 448, 1792
        return {
            "x": _w((lambda *s: torch.randn(*s, dtype=torch.bfloat16) * 0.05)(B, S, D)),
            "w1": _w((lambda *s: torch.randn(*s, dtype=torch.bfloat16) * 1.6)(D, F) * (D ** -0.5)),
            "b1": _w((lambda *s: torch.randn(*s, dtype=torch.bfloat16) * 0.2)(F)),
            "w2": _w((lambda *s: torch.randn(*s, dtype=torch.bfloat16) * 0.2)(F, D) * (F ** -0.5)),
        }
    _B_in = _B_setup()

    return {
        "A_x": _A_in["x"],
        "A_wqkv": _A_in["wqkv"],
        "A_wo": _A_in["wo"],
        "B_x": _B_in["x"],
        "B_w1": _B_in["w1"],
        "B_b1": _B_in["b1"],
        "B_w2": _B_in["w2"],
    }

def reference(A_x, A_wqkv, A_wo, B_x, B_w1, B_b1, B_w2):
    def _A_ref(x, wqkv, wo):
        B, S, D = x.shape
        H = 16; Dh = D // H
        qkv = (lambda x, *d: x.permute(*d))((x @ wqkv).reshape(B, S, 3, H, Dh), 2, 0, 3, 1, 4)
        q, k, v = qkv[0], qkv[1], qkv[2]
        scale = Dh ** -0.5
        scores = torch.einsum("bhqd,bhkd->bhqk", q, k) * scale
        p = _softmax(scores, axis=-1)
        o = torch.einsum("bhqk,bhkd->bhqd", p, v)
        return (lambda x, *d: x.permute(*d))(o, 0, 2, 1, 3).reshape(B, S, D) @ wo

    def _B_ref(x, w1, b1, w2):
        h = torch.einsum("bsd,df->bsf", x, w1) + b1
        sp = torch.log1p(torch.exp(-torch.abs(h))) + torch.where(h > 0, h, torch.zeros_like(h))
        act = h * torch.tanh(sp)
        return torch.einsum("bsf,fd->bsd", act, w2)

    x = A_x
    x = x + _A_ref(_layernorm(x, axis=-1), A_wqkv, A_wo)
    x = x + _B_ref(_layernorm(x, axis=-1), B_w1, B_b1, B_w2)
    x = x + _A_ref(_layernorm(x, axis=-1), A_wqkv, A_wo)
    x = x + _B_ref(_layernorm(x, axis=-1), B_w1, B_b1, B_w2)
    return x
```

```python
NAME = 'interleave_layers__softmax_full_mha__dense_activation_mish__prompt'

class K:
    uid = 0
    def __init__(self, name, threads, nwg, lds, vgpr, accum=None):
        self.name = name; self.threads = threads; self.nwg = nwg; self.lds = lds
        self.vgpr = vgpr; self.accum = accum
        self.L = []
        self.vm = []
        self.lg = []
    def __call__(self, s):
        for ln in s.strip('\n').split('\n'):
            self.L.append('    ' + ln.strip())
    def label(self, n): self.L.append(n + ':')
    def new_label(self, p='L'):
        K.uid += 1
        return f'{p}_{K.uid}'
    def nop(self, n):
        while n > 0:
            m = min(n, 16); self(f's_nop {m-1}'); n -= m
    def vmem(self, s, tag=None):
        self(s); self.vm.append(tag)
    def vm_wait(self, tag=None):
        if tag is None:
            n = 0; self.vm = []
        else:
            idx = max([i for i, t in enumerate(self.vm) if t == tag], default=-1)
            if idx < 0: return
            n = len(self.vm) - 1 - idx
            self.vm = self.vm[idx+1:]
        assert n <= 63, n
        self(f's_waitcnt vmcnt({n})')
    def ds(self, s, tag=None):
        self(s); self.lg.append(tag)
    def lg_wait(self, tag=None):
        if tag is None:
            n = 0; self.lg = []
        else:
            idx = max([i for i, t in enumerate(self.lg) if t == tag], default=-1)
            if idx < 0: return
            n = len(self.lg) - 1 - idx
            self.lg = self.lg[idx+1:]
        if n > 15: return self.lg_force(n)
        self(f's_waitcnt lgkmcnt({n})')
    def lg_force(self, n):
        self('s_waitcnt lgkmcnt(15)')
    def text(self):
        return (f".globl {self.name}\n.p2align 8\n.type {self.name},@function\n{self.name}:\n"
                + '\n'.join(self.L) + '\n')
    def desc(self):
        vg = self.vgpr
        acc = self.accum if self.accum is not None else (vg + 3) // 4 * 4
        return f""".p2align 6
.amdhsa_kernel {self.name}
  .amdhsa_next_free_vgpr {vg}
  .amdhsa_next_free_sgpr 96
  .amdhsa_accum_offset {acc}
  .amdhsa_group_segment_fixed_size 0
  .amdhsa_kernarg_size 80
  .amdhsa_user_sgpr_count 2
  .amdhsa_user_sgpr_kernarg_segment_ptr 1
  .amdhsa_system_sgpr_workgroup_id_x 1
.end_amdhsa_kernel
"""

def vr(b, n=4): return f'v[{b}:{b+n-1}]' if n > 1 else f'v{b}'
def ar(b, n=4): return f'a[{b}:{b+n-1}]' if n > 1 else f'a{b}'
def sr(b, n=4): return f's[{b}:{b+n-1}]' if n > 1 else f's{b}'

HDR = open('cdna_kernels/' + NAME + '.s.ref').read().split('; Override')[0]

def emit_file(kernels, launches, path):
    byname = {k.name: k for k in kernels}
    s = HDR
    for n in launches:
        k = byname[n]
        s += f"; @launch kernel={k.name} grid=({k.nwg},1,1) block=({k.threads},1,1) lds={k.lds}\n"
    s += '.amdgcn_target "amdgcn-amd-amdhsa--gfx950"\n.text\n'
    for k in kernels: s += k.text()
    s += '.section .rodata,"a"\n'
    for k in kernels: s += k.desc()
    open(path, 'w').write(s)
    return s
```

```python
import sys, math
sys.path.insert(0, 'dev')
from asmlib import *

X = [0x000000, 0x200000, 0x400000, 0x600000]
ST = [0x800000, 0x840000, 0x880000, 0x8C0000]
WQ = 0x900000
WO = 0xA80000
W1 = 0xB00000
W2 = 0xD00000
CSQ = 0xF00000
C1 = 0xF10000
KN = 0xF20000
QF = 0x1000000
KVF = 0x1200000
OF = 0x1600000
ACT = 0x1800000
WS_BYTES = 0x10000000
LOG2E = 1.4426950408889634
LN2 = 0.6931471805599453
import struct
def f2u(x): return struct.unpack('<I', struct.pack('<f', x))[0]
def fl(x): return f'0x{f2u(x):08x}'

def srd(k, s, lo, nrec):
    k(f's_mov_b32 s{s+2}, 0x{nrec:x}')
    k(f's_mov_b32 s{s+3}, 0x00020000')

def prologue(k, ptrs):
    k(f's_cmp_ge_u32 s2, {k.nwg}')
    end = k.name + '_end'
    k(f's_cbranch_scc1 {end}')
    for off, s, n in ptrs:
        k(f's_load_dwordx2 s[{s}:{s+1}], s[0:1], {off}')
    k('v_lshrrev_b32 v2, 6, v0')
    k('v_and_b32 v1, 63, v0')
    k('s_nop 0')
    k('v_readfirstlane_b32 s3, v2')
    k('s_waitcnt lgkmcnt(0)')
    for off, s, n in ptrs:
        srd(k, s, None, n)

def epilogue(k):
    k.label(k.name + '_end')
    k('s_endpgm')

def half_sum(k, va, vb):
    k(f'v_mov_b32 v{vb}, v{va}')
    k.nop(2)
    k(f'v_permlane32_swap_b32 v{va}, v{vb}')
    k.nop(1)
    k(f'v_add_f32 v{va}, v{va}, v{vb}')

def wave_max(k, v, tmp):
    for sh in (1, 2, 4, 8):
        k.nop(2)
        k(f'v_max_f32_dpp v{v}, v{v}, v{v} row_shr:{sh} row_mask:0xf bank_mask:0xf')
    k.nop(2)
    k(f'v_max_f32_dpp v{v}, v{v}, v{v} row_bcast:15 row_mask:0xa bank_mask:0xf')
    k.nop(2)
    k(f'v_max_f32_dpp v{v}, v{v}, v{v} row_bcast:31 row_mask:0xc bank_mask:0xf')

def gen_prep():
    k = K(NAME + '_kernel', 256, 252, 16384 + 64, 128)
    prologue(k, [(72, 4, WS_BYTES), (0, 8, 2048*448*2), (8, 12, 448*1344*2), (16, 16, 448*448*2),
                 (32, 20, 448*1792*2), (40, 24, 1792*2), (48, 28, 1792*448*2)])
    k('v_lshrrev_b32 v3, 5, v1')
    k('v_and_b32 v4, 31, v1')
    k('v_lshlrev_b32 v5, 4, v1')
    Lq, L1, L2, Lo = [k.new_label('prep') for _ in range(4)]
    k('s_cmp_ge_u32 s2, 224'); k(f's_cbranch_scc1 {Lo}')
    k('s_cmp_ge_u32 s2, 168'); k(f's_cbranch_scc1 {L2}')
    k('s_cmp_ge_u32 s2, 112'); k(f's_cbranch_scc1 {L1}')
    k('s_cmp_ge_u32 s2, 64'); k(f's_cbranch_scc1 {Lq}')
    k('v_mul_u32_u24 v6, 896, v4')
    k('v_lshl_add_u32 v6, v3, 4, v6')
    k('s_mul_i32 s32, s2, 32*896')
    k('s_lshl_b32 s33, s3, 6')
    k('s_add_u32 s32, s32, s33')
    for i in range(4):
        lab = None
        if i == 3:
            lab = k.new_label('px')
            k('s_cmp_ge_u32 s3, 2'); k(f's_cbranch_scc1 {lab}')
        k(f's_add_u32 s34, s32, {i*256}')
        k(f'buffer_load_dwordx4 {vr(16+8*i)}, v6, s[8:11], s34 offen')
        k(f'buffer_load_dwordx4 {vr(20+8*i)}, v6, s[8:11], s34 offen offset:32')
        if lab: k.label(lab)
    k('s_waitcnt vmcnt(0)')
    k('s_mul_i32 s35, s2, 28*1024')
    k('s_lshl_b32 s36, s3, 11')
    k('s_add_u32 s35, s35, s36')
    k(f's_add_u32 s35, s35, 0x{X[0]:x}')
    k('s_mul_i32 s37, s2, 14*256')
    k('s_lshl_b32 s36, s3, 8')
    k('s_add_u32 s37, s37, s36')
    k(f's_add_u32 s37, s37, 0x{ST[0]:x}')
    k('v_lshlrev_b32 v7, 3, v4')
    for i in range(4):
        lab = None
        if i == 3:
            lab = k.new_label('px')
            k('s_cmp_ge_u32 s3, 2'); k(f's_cbranch_scc1 {lab}')
        b = 16 + 8*i
        k('v_mov_b32 v8, 0'); k('v_mov_b32 v9, 0'); k(f'v_mov_b32 v10, 0x3f803f80')
        for r in range(8):
            k(f'v_dot2_f32_bf16 v8, v{b+r}, v10, v8')
            k(f'v_dot2_f32_bf16 v9, v{b+r}, v{b+r}, v9')
        for e in range(2):
            k(f'v_permlane32_swap_b32 v{b+4*e}, v{b+4*e+2}')
            k(f'v_permlane32_swap_b32 v{b+4*e+1}, v{b+4*e+3}')
        half_sum(k, 8, 11)
        half_sum(k, 9, 11)
        k(f's_add_u32 s38, s35, {i*8192}')
        k(f'buffer_store_dwordx4 {vr(b)}, v5, s[4:7], s38 offen')
        k(f'buffer_store_dwordx4 {vr(b+4)}, v5, s[4:7], s38 offen offset:1024')
        k(f's_add_u32 s38, s37, {i*1024}')
        k('s_mov_b32 exec_hi, 0')
        k(f'buffer_store_dwordx2 v[8:9], v7, s[4:7], s38 offen')
        k('s_mov_b32 exec_hi, -1')
        k.nop(2)
        if lab: k.label(lab)
    k('s_endpgm')

    def wtask(srdb, stride, rowoffs, ncols, s_src, s_dst, dstride, mask_odd=False):
        n = len(rowoffs)
        k(f'v_mul_u32_u24 v6, {4*stride}, v3')
        k('v_lshl_add_u32 v6, v4, 1, v6')
        if ncols < 32:
            k(f'v_cmp_gt_u32 vcc, {ncols}, v4')
            k('v_mov_b32 v7, 0x40000000')
            k.nop(1)
            k('v_cndmask_b32 v6, v7, v6, vcc')
        if mask_odd:
            k('v_cmp_eq_u32 vcc, 0, v3')
            k('v_mov_b32 v7, 0x40000000')
            k.nop(1)
            k('v_cndmask_b32 v7, v7, v6, vcc')
        for ks in range(n):
            for j in range(8):
                ro = rowoffs[ks] + 8*(j >> 2) + (j & 3)
                k(f's_add_u32 s40, s{s_src}, {ro*stride}')
                vo = 'v7' if (mask_odd and (ks & 1) and j >= 4) else 'v6'
                k(f'buffer_load_ushort v{16+8*ks+j}, {vo}, s[{srdb}:{srdb+3}], s40 offen')
            if ks == 6: pass
        k('s_waitcnt vmcnt(0)')
        for ks in range(n):
            for i in range(4):
                k(f'v_lshl_or_b32 v{80+4*ks+i}, v{16+8*ks+2*i+1}, 16, v{16+8*ks+2*i}')
            k(f's_add_u32 s40, s{s_dst}, {ks*dstride}')
            k(f'buffer_store_dwordx4 {vr(80+4*ks)}, v5, s[4:7], s40 offen')

    def colsum(btype, n):
        for i in range(4): k(f'v_mov_b32 v{112+i}, 0x3f803f80')
        k.nop(2)
        for ks in range(n):
            c = '0' if ks == 0 else 'v[16:31]'
            if btype: k(f'v_mfma_f32_32x32x16_bf16 v[16:31], v[112:115], {vr(80+4*ks)}, {c}')
            else: k(f'v_mfma_f32_32x32x16_bf16 v[16:31], {vr(80+4*ks)}, v[112:115], {c}')
        k.nop(16)

    def reduce4():
        k('s_lshl_b32 s41, s3, 12')
        k('v_add_u32 v6, s41, v5')
        for i in range(4):
            k(f'ds_write_b128 v6, {vr(16+4*i)} offset:{i*1024}')
        k('s_waitcnt lgkmcnt(0)')
        k('s_barrier')
        k('s_cmp_lg_u32 s3, 0')
        k(f's_cbranch_scc1 {k.name}_end')
        for w in range(1, 4):
            for i in range(4):
                k(f'ds_read_b128 {vr(32+4*i)}, v5 offset:{w*4096+i*1024}')
            k('s_waitcnt lgkmcnt(0)')
            for r in range(16):
                k(f'v_add_f32 v{16+r}, v{16+r}, v{32+r}')

    def store_dl(s_off, imm=0):
        k('v_lshlrev_b32 v6, 6, v3')
        k('s_mov_b32 exec_lo, 1'); k('s_mov_b32 exec_hi, 1')
        for i in range(4):
            k(f'buffer_store_dwordx4 {vr(16+4*i)}, v6, s[4:7], s{s_off} offen offset:{imm+16*i}')
        k('s_mov_b32 exec_lo, -1'); k('s_mov_b32 exec_hi, -1')

    k.label(Lq)
    k('s_sub_u32 s42, s2, 64')
    k('s_lshr_b32 s43, s42, 4')
    k('s_and_b32 s44, s42, 15')
    k(f's_mul_i32 s45, s3, {7*16*2688}')
    k('s_mul_i32 s46, s43, 896'); k('s_add_u32 s45, s45, s46')
    k('s_mul_i32 s46, s44, 56'); k('s_add_u32 s45, s45, s46')
    k('s_mul_i32 s47, s44, 28'); k('s_mul_i32 s46, s3, 7'); k('s_add_u32 s47, s47, s46')
    k('s_mul_i32 s47, s47, 3'); k('s_add_u32 s47, s47, s43'); k('s_lshl_b32 s47, s47, 10')
    k(f's_add_u32 s47, s47, 0x{WQ:x}')
    wtask(12, 2688, [16*i for i in range(7)], 28, 45, 47, 3072)
    Lv, Lj = k.new_label('pq'), k.new_label('pq')
    k('s_cmp_eq_u32 s43, 2'); k(f's_cbranch_scc1 {Lv}')
    colsum(False, 7)
    k(f's_branch {Lj}')
    k.label(Lv)
    colsum(True, 7)
    k.label(Lj)
    reduce4()
    k('s_lshl_b32 s46, s44, 9'); k('s_lshl_b32 s48, s43, 7'); k('s_add_u32 s46, s46, s48')
    k(f's_add_u32 s46, s46, 0x{CSQ:x}')
    Lv2 = k.new_label('pq')
    k('s_cmp_eq_u32 s43, 2'); k(f's_cbranch_scc1 {Lv2}')
    store_dl(46)
    k('s_endpgm')
    k.label(Lv2)
    k('v_lshlrev_b32 v6, 2, v1')
    k('s_mov_b32 exec_hi, 0')
    k('buffer_store_dword v16, v6, s[4:7], s46 offen')
    k('s_endpgm')

    k.label(L1)
    k('s_sub_u32 s42, s2, 112')
    k(f's_mul_i32 s45, s3, {7*16*3584}')
    k('s_lshl_b32 s46, s42, 6'); k('s_add_u32 s45, s45, s46')
    k('s_mul_i32 s47, s42, 28'); k('s_mul_i32 s46, s3, 7'); k('s_add_u32 s47, s47, s46')
    k('s_lshl_b32 s47, s47, 10'); k(f's_add_u32 s47, s47, 0x{W1:x}')
    wtask(20, 3584, [16*i for i in range(7)], 32, 45, 47, 1024)
    colsum(False, 7)
    reduce4()
    for r in range(16): k(f'v_mul_f32 v{16+r}, {fl(LOG2E)}, v{16+r}')
    k('s_lshl_b32 s46, s42, 8'); k(f's_add_u32 s46, s46, 0x{C1:x}')
    store_dl(46)
    k('v_and_b32 v6, 15, v1')
    k('v_lshrrev_b32 v7, 2, v6'); k('v_lshlrev_b32 v7, 3, v7')
    k('v_and_b32 v6, 3, v6'); k('v_add_u32 v7, v7, v6')
    k('v_lshrrev_b32 v6, 4, v1'); k('v_and_b32 v6, 1, v6'); k('v_lshl_add_u32 v7, v6, 2, v7')
    k('v_lshlrev_b32 v7, 1, v7')
    k('s_lshl_b32 s48, s42, 6')
    k('buffer_load_ushort v8, v7, s[24:27], s48 offen')
    k('s_waitcnt vmcnt(0)')
    k('v_lshlrev_b32 v8, 16, v8')
    k(f'v_mul_f32 v8, {fl(LOG2E)}, v8')
    k('v_lshlrev_b32 v6, 2, v1')
    k('s_mov_b32 exec_hi, 0')
    k('buffer_store_dword v8, v6, s[4:7], s46 offen offset:128')
    k('s_endpgm')

    k.label(L2)
    k('s_sub_u32 s42, s2, 168')
    k('s_lshr_b32 s43, s42, 2'); k('s_and_b32 s44, s42, 3')
    k('s_mul_i32 s46, s44, 28'); k('s_mul_i32 s48, s3, 7'); k('s_add_u32 s46, s46, s48')
    k(f's_mul_i32 s45, s46, {16*896}')
    k('s_lshl_b32 s48, s43, 6'); k('s_add_u32 s45, s45, s48')
    k('s_mul_i32 s47, s43, 112'); k('s_add_u32 s47, s47, s46'); k('s_lshl_b32 s47, s47, 10')
    k(f's_add_u32 s47, s47, 0x{W2:x}')
    wtask(28, 896, [16*i for i in range(7)], 32, 45, 47, 1024)
    k('s_endpgm')

    k.label(Lo)
    k('s_sub_u32 s42, s2, 224')
    k('s_lshr_b32 s43, s42, 1'); k('s_and_b32 s44, s42, 1')
    k('s_lshl_b32 s46, s44, 3'); k('s_lshl_b32 s48, s3, 1'); k('s_add_u32 s46, s46, s48')
    k(f's_mul_i32 s45, s46, {28*896}')
    k('s_lshl_b32 s48, s43, 6'); k('s_add_u32 s45, s45, s48')
    k('s_lshl_b32 s47, s43, 5'); k('s_lshl_b32 s48, s46, 1'); k('s_add_u32 s47, s47, s48')
    k('s_lshl_b32 s47, s47, 10'); k(f's_add_u32 s47, s47, 0x{WO:x}')
    wtask(16, 896, [0, 16, 28, 44], 32, 45, 47, 1024, mask_odd=True)
    epilogue(k)
    return k

def lane_setup(k):
    k('v_lshrrev_b32 v3, 5, v1')
    k('v_and_b32 v4, 31, v1')
    k('v_lshlrev_b32 v5, 4, v1')

def stats_load(k, s_off, vb, vaddr, tag='st'):
    for i in range(7):
        k.vmem(f'buffer_load_dwordx2 {vr(vb+2*i,2)}, v{vaddr}, s[4:7], s{s_off} offen offset:{i*256}', tag)

def stats_addr(k, vaddr):
    k(f'v_mul_u32_u24 v{vaddr}, {7*256}, v3')
    k(f'v_lshl_add_u32 v{vaddr}, v4, 3, v{vaddr}')

def stats_finish(k, vb, v_rstd, v_mr, tmp):
    for i in range(1, 7):
        k(f'v_add_f32 v{vb}, v{vb}, v{vb+2*i}')
        k(f'v_add_f32 v{vb+1}, v{vb+1}, v{vb+2*i+1}')
    half_sum(k, vb, tmp)
    half_sum(k, vb+1, tmp)
    k(f'v_mul_f32 v{vb}, {fl(1/448)}, v{vb}')
    k(f'v_mul_f32 v{vb+1}, {fl(1/448)}, v{vb+1}')
    k(f'v_fma_f32 v{vb+1}, -v{vb}, v{vb}, v{vb+1}')
    k(f'v_max_f32 v{vb+1}, 0, v{vb+1}')
    k(f'v_add_f32 v{vb+1}, {fl(1e-5)}, v{vb+1}')
    k(f'v_rsq_f32 v{v_rstd}, v{vb+1}')
    k.nop(1)
    k(f'v_mul_f32 v{v_mr}, v{vb}, v{v_rstd}')
    k(f'v_sub_f32 v{v_mr}, 0, v{v_mr}')

def gen_qkv(name, xin, stin):
    LW, LCS, LSC = 0, 86016, 86528
    k = K(name, 256, 256, LSC + 1024, 224)
    prologue(k, [(72, 4, WS_BYTES)])
    lane_setup(k)
    XF, WB, AQ, AK, AV, SB = 16, 128, 160, 176, 192, 208
    k('s_and_b32 s8, s2, 7'); k('s_lshr_b32 s9, s2, 3')
    k('s_and_b32 s10, s9, 1'); k('s_lshl_b32 s11, s8, 1'); k('s_add_u32 s11, s11, s10')
    k('s_lshr_b32 s12, s9, 1')
    k('s_lshl_b32 s13, s11, 2'); k('s_add_u32 s13, s13, s3')
    k(f's_mul_i32 s14, s13, {28*1024}'); k(f's_add_u32 s14, s14, 0x{xin:x}')
    k(f's_mul_i32 s15, s12, 86016'); k(f's_add_u32 s15, s15, 0x{WQ:x}')
    k('s_lshl_b32 s16, s3, 10'); k('s_add_u32 s15, s15, s16')
    k(f's_mul_i32 s17, s13, {14*256}'); k(f's_add_u32 s17, s17, 0x{stin:x}')
    k('s_lshl_b32 s18, s12, 9'); k(f's_add_u32 s18, s18, 0x{CSQ:x}')
    stats_addr(k, 6)
    stages = [(0, 8), (8, 16), (16, 24), (24, 28)]
    pi = 0
    for si, (a, b) in enumerate(stages):
        for i in range((b - a) * 3 // 4):
            k(f's_add_u32 m0, s16, {4096*pi}')
            k(f's_add_u32 s20, s15, {4096*pi}')
            k.vmem('buffer_load_dwordx4 v5, s[4:7], s20 offen lds', f'W{si}')
            pi += 1
        for ks in range(a, b):
            if ks % 4 == 0: k(f's_add_u32 s21, s14, {ks*1024}')
            k.vmem(f'buffer_load_dwordx4 {vr(XF+4*ks)}, v5, s[4:7], s21 offen offset:{(ks%4)*1024}', f'x{ks}')
        if si == 0:
            k(f's_mov_b32 m0, {LCS}')
            k('s_mov_b32 exec_hi, 0')
            k.vmem('buffer_load_dwordx4 v5, s[4:7], s18 offen lds', 'cs')
            k('s_mov_b32 exec_hi, -1')
            stats_load(k, 17, SB, 6)
    def wread(ks):
        b = WB + 12 * (ks % 2)
        for i in range(3):
            k.ds(f'ds_read_b128 {vr(b+4*i)}, v5 offset:{(ks*3+i)*1024 if (ks*3+i)*1024 < 65536 else 0}' if (ks*3+i)*1024 < 65536
                 else f'ds_read_b128 {vr(b+4*i)}, v7 offset:{(ks*3+i)*1024-65536}', f'w{ks}')
    k('v_add_u32 v7, 0x10000, v5')
    k.vm_wait('W0'); k('s_barrier')
    wread(0)
    stage_of = {ks: si for si, (a, b) in enumerate(stages) for ks in range(a, b)}
    for ks in range(28):
        if ks + 1 < 28:
            if stage_of[ks+1] != stage_of[ks]:
                k.vm_wait(f'W{stage_of[ks+1]}'); k('s_barrier')
            wread(ks + 1)
        k.vm_wait(f'x{ks}')
        k.lg_wait(f'w{ks}')
        b = WB + 12 * (ks % 2)
        x = vr(XF + 4*ks)
        c = lambda A: '0' if ks == 0 else vr(A, 16)
        k(f'v_mfma_f32_32x32x16_bf16 {vr(AQ,16)}, {vr(b)}, {x}, {c(AQ)}')
        k(f'v_mfma_f32_32x32x16_bf16 {vr(AK,16)}, {vr(b+4)}, {x}, {c(AK)}')
        k(f'v_mfma_f32_32x32x16_bf16 {vr(AV,16)}, {x}, {vr(b+8)}, {c(AV)}')
    k.vm_wait()
    RS, MR = 8, 9
    stats_finish(k, SB, RS, MR, 10)
    k('s_lshl_b32 s22, s3, 8'); k(f's_add_u32 s22, s22, {LSC}')
    k('v_lshlrev_b32 v10, 3, v4'); k('v_add_u32 v10, s22, v10')
    k(f'v_mov_b32 v12, v{RS}'); k(f'v_mov_b32 v13, v{MR}')
    k('ds_write_b64 v10, v[12:13]')
    k('v_lshlrev_b32 v11, 6, v3'); k(f'v_add_u32 v11, {LCS}, v11')
    for i in range(4): k(f'ds_read_b128 {vr(16+4*i)}, v11 offset:{16*i}')
    for i in range(4): k(f'ds_read_b128 {vr(32+4*i)}, v11 offset:{128+16*i}')
    k('v_lshlrev_b32 v11, 2, v4'); k(f'v_add_u32 v11, {LCS+256}, v11')
    k('ds_read_b32 v48, v11')
    k('s_waitcnt lgkmcnt(0)')
    k('v_lshlrev_b32 v11, 5, v3'); k('v_add_u32 v11, s22, v11')
    for g in range(4):
        k(f'ds_read_b128 {vr(64+8*g)}, v11 offset:{64*g}')
        k(f'ds_read_b128 {vr(64+8*g+4)}, v11 offset:{64*g+16}')
    SC = (28 ** -0.5) * LOG2E
    k(f'v_mul_f32 v14, {fl(SC)}, v{RS}'); k(f'v_mul_f32 v15, {fl(SC)}, v{MR}')
    k('v_mov_b32 v12, 0'); k('v_mov_b32 v13, 0')
    for r in range(16):
        k(f'v_mul_f32 v{16+r}, v15, v{16+r}')
        k(f'v_fma_f32 v{AQ+r}, v14, v{AQ+r}, v{16+r}')
        k(f'v_fmac_f32 v12, v{AQ+r}, v{AQ+r}')
    for r in range(16):
        k(f'v_mul_f32 v{32+r}, v{MR}, v{32+r}')
        k(f'v_fma_f32 v{AK+r}, v{RS}, v{AK+r}, v{32+r}')
        k(f'v_fmac_f32 v13, v{AK+r}, v{AK+r}')
    half_sum(k, 12, 10)
    half_sum(k, 13, 10)
    k('v_sqrt_f32 v12, v12')
    k.nop(1)
    k('s_mov_b32 exec_lo, 0')
    k(f'v_mov_b32 v{AQ+14}, v12')
    k(f'v_mov_b32 v{AK+12}, 1.0'); k(f'v_mov_b32 v{AK+13}, 1.0')
    k('s_mov_b32 exec_lo, -1')
    wave_max(k, 13, 10)
    k('v_cmp_eq_u32 vcc, 28, v4')
    k('v_mov_b32 v49, 0'); k('v_mov_b32 v50, 1.0')
    k.nop(1)
    k('v_cndmask_b32 v49, v49, v50, vcc')
    k('s_waitcnt lgkmcnt(0)')
    for r in range(16):
        g, i = r >> 2, r & 3
        rs, mr = 64 + 8*g + 2*i, 64 + 8*g + 2*i + 1
        k(f'v_fma_f32 v{mr}, v{mr}, v48, v49')
        k(f'v_fma_f32 v{AV+r}, v{rs}, v{AV+r}, v{mr}')
    for A, d in ((AQ, 16), (AK, 24), (AV, 32)):
        for i in range(8):
            k(f'v_cvt_pk_bf16_f32 v{d+i}, v{A+2*i}, v{A+2*i+1}')
    k('s_lshl_b32 s23, s12, 6'); k('s_add_u32 s23, s23, s13')
    k('s_lshl_b32 s24, s23, 11'); k(f's_add_u32 s24, s24, 0x{QF:x}')
    k('s_lshl_b32 s25, s23, 12'); k(f's_add_u32 s25, s25, 0x{KVF:x}')
    k('s_lshl_b32 s26, s23, 2'); k(f's_add_u32 s26, s26, 0x{KN:x}')
    k(f'buffer_store_dwordx4 v[16:19], v5, s[4:7], s24 offen')
    k(f'buffer_store_dwordx4 v[20:23], v5, s[4:7], s24 offen offset:1024')
    for i in range(4):
        k(f'buffer_store_dwordx4 {vr(24+4*i)}, v5, s[4:7], s25 offen offset:{1024*i}')
    k('v_mov_b32 v10, 0')
    k('s_mov_b32 exec_lo, 0'); k('s_mov_b32 exec_hi, 0x80000000')
    k('buffer_store_dword v13, v10, s[4:7], s26 offen')
    epilogue(k)
    return k

def gen_attn(name):
    LFLAG = 65536
    LM = 65536 + 64
    k = K(name, 512, 256, LM + 2048, 192)
    prologue(k, [(72, 4, WS_BYTES)])
    lane_setup(k)
    Q, KV, S, P, O = 16, 32, 96, 128, 144
    D = 4
    C = 176
    k('s_and_b32 s8, s2, 7'); k('s_lshr_b32 s9, s2, 3')
    k('s_and_b32 s10, s9, 1'); k('s_lshl_b32 s12, s8, 1'); k('s_add_u32 s12, s12, s10')
    k('s_lshr_b32 s11, s9, 1')
    k('s_and_b32 s13, s3, 1')
    k('s_lshr_b32 s14, s3, 1')
    k('s_lshl_b32 s15, s11, 2'); k('s_lshl_b32 s16, s13, 1'); k('s_add_u32 s15, s15, s16')
    k('s_lshl_b32 s17, s12, 6')
    k('s_add_u32 s18, s17, s15'); k('s_lshl_b32 s18, s18, 11'); k(f's_add_u32 s18, s18, 0x{QF:x}')
    k('s_lshl_b32 s19, s14, 4'); k('s_add_u32 s19, s19, s17'); k('s_lshl_b32 s19, s19, 12')
    k(f's_add_u32 s19, s19, 0x{KVF:x}')
    k('s_lshl_b32 s20, s17, 2'); k(f's_add_u32 s20, s20, 0x{KN:x}')
    k('v_lshlrev_b32 v6, 2, v1')
    k.vmem('buffer_load_dword v7, v6, s[4:7], s20 offen', 'kn')
    for i in range(4):
        k.vmem(f'buffer_load_dwordx4 {vr(Q+4*i)}, v5, s[4:7], s18 offen offset:{1024*i}', 'q')
    k('v_mov_b32 v8, 0'); k(f'v_mov_b32 v9, {LFLAG}')
    k('ds_write_b32 v9, v8')
    k('s_mov_b32 s30, 0')
    def kvload(kb):
        b = KV + 16 * (kb % D)
        k(f's_add_u32 s21, s19, {kb*4096}')
        for i in range(4):
            k.vmem(f'buffer_load_dwordx4 {vr(b+4*i)}, v5, s[4:7], s21 offen offset:{1024*i}', f'k{kb}' if i < 2 else f'v{kb}')
    for kb in range(D): kvload(kb)
    k.vm_wait('kn')
    wave_max(k, 7, 8)
    k.nop(1)
    k('v_readlane_b32 s22, v7, 63')
    k.nop(2)
    k('v_sqrt_f32 v7, s22')
    k.nop(1)
    k(f'v_mul_f32 v7, {fl(1.0+1/64)}, v7')
    k.vm_wait('q')
    def set_shift(q, cv):
        d = Q + 8*q + 4 + 2
        k(f'v_cvt_pk_bf16_f32 v8, v{cv}, v{cv}')
        k('v_and_b32 v8, 0xffff0000, v8')
        k(f'v_sub_f32 v9, v{cv}, v8')
        k(f'v_cvt_pk_bf16_f32 v10, v9, v9')
        k('v_and_b32 v10, 0xffff0000, v10')
        k(f'v_add_f32 v{cv}, v8, v10')
        k('v_cvt_pk_bf16_f32 v9, -v8, -v10')
        k('s_mov_b32 exec_lo, 0')
        k(f'v_mov_b32 v{d}, v9')
        k('s_mov_b32 exec_lo, -1')
    for q in range(2):
        d3 = Q + 8*q + 4 + 3
        k(f'v_lshlrev_b32 v{C+q}, 16, v{d3}')
        k(f'v_mul_f32 v{C+q}, v{C+q}, v7')
        set_shift(q, C+q)
    MAIN = k.new_label('main')
    k.label(MAIN)
    NT = 32
    def smf(n, which):
        kb, q = n >> 1, n & 1
        b = KV + 16*(kb % D); s = S + 16*(n % 2)
        if which == 0: return f'v_mfma_f32_32x32x16_bf16 {vr(s,16)}, {vr(b)}, {vr(Q+8*q)}, 0'
        return f'v_mfma_f32_32x32x16_bf16 {vr(s,16)}, {vr(b+4)}, {vr(Q+8*q+4)}, {vr(s,16)}'
    def pmf(n, which):
        kb, q = n >> 1, n & 1
        b = KV + 16*(kb % D) + 8; p = P + 8*(n % 2); o = O + 16*q
        c = '0' if (n < 2 and which == 0) else vr(o, 16)
        return f'v_mfma_f32_32x32x16_bf16 {vr(o,16)}, {vr(b+4*which)}, {vr(p+4*which)}, {c}'
    k.vm_wait('k0')
    k.nop(2)
    k(smf(0, 0)); k(smf(0, 1))
    k.nop(16)
    for n in range(NT + 1):
        kb, q = n >> 1, n & 1
        valu = []
        if n < NT:
            s = S + 16*(n % 2); p = P + 8*(n % 2)
            valu = [f'v_exp_f32 v{s+r}, v{s+r}' for r in range(16)]
            valu += [f'v_cvt_pk_bf16_f32 v{p+i}, v{s+2*i}, v{s+2*i+1}' for i in range(8)]
        mf = []
        if n + 1 < NT:
            if (n + 1) % 2 == 0: k.vm_wait(f'k{(n+1)>>1}')
            mf += [smf(n+1, 0), smf(n+1, 1)]
        if n >= 1:
            k.vm_wait(f'v{(n-1)>>1}')
            mf += [pmf(n-1, 0), pmf(n-1, 1)]
        if n == NT:
            k.nop(2)
        pos = [0, 6, 12, 18] if len(mf) == 4 else ([0, 6] if n == 0 else [12, 18])
        mi = 0
        if not valu:
            for m in mf: k(m)
        else:
            for i, v in enumerate(valu):
                while mi < len(mf) and pos[mi] == i:
                    k(mf[mi]); mi += 1
                k(v)
        if n >= 1 and (n - 1) % 2 == 1:
            kbn = ((n - 1) >> 1) + D
            if kbn < 16: kvload(kbn)
    k.nop(16)
    k('s_lshl_b32 s23, s3, 13')
    k('v_add_u32 v8, s23, v5')
    for q in range(2):
        for i in range(4):
            k(f'ds_write_b128 v8, {vr(O+16*q+4*i)} offset:{q*4096+i*1024}')
    k('s_waitcnt lgkmcnt(0)')
    k('s_barrier')
    k('s_lshr_b32 s24, s14, 1'); k('s_and_b32 s25, s14, 1')
    k('s_lshl_b32 s26, s13, 13'); k('s_lshl_b32 s27, s24, 12'); k('s_add_u32 s26, s26, s27')
    k('s_lshl_b32 s27, s25, 11'); k('s_add_u32 s27, s27, s26')
    k('v_add_u32 v8, s27, v5')
    k('v_lshlrev_b32 v9, 4, v4'); k(f'v_add_u32 v9, {3*1024 + 32*16}, v9'); k('v_add_u32 v9, s26, v9')
    for j in range(4):
        k(f'ds_read_b128 {vr(32+8*j)}, v8 offset:{j*16384}')
        k(f'ds_read_b128 {vr(36+8*j)}, v8 offset:{j*16384+1024}')
        k(f'ds_read_b32 v{64+j}, v9 offset:{j*16384}')
    k('s_waitcnt lgkmcnt(0)')
    for j in range(1, 4):
        for r in range(8): k(f'v_add_f32 v{32+r}, v{32+r}, v{32+8*j+r}')
        k(f'v_add_f32 v64, v64, v{64+j}')
    k('v_rcp_f32 v65, v64')
    k(f'v_cmp_nge_f32 vcc, v64, {fl(2.0**-80)}' if False else f'v_mov_b32 v66, {fl(2.0**-80)}')
    k('v_cmp_nge_f32 vcc, v64, v66')
    k(f'v_mov_b32 v66, {fl(2.0**100)}')
    k('v_cmp_nle_f32 s[28:29], v64, v66')
    for r in range(8): k(f'v_mul_f32 v{32+r}, v{32+r}, v65')
    for i in range(4): k(f'v_cvt_pk_bf16_f32 v{40+i}, v{32+2*i}, v{32+2*i+1}')
    k('s_add_u32 s31, s15, s24'); k('s_lshl_b32 s31, s31, 5'); k('s_lshl_b32 s32, s12, 1')
    k('s_add_u32 s31, s31, s32'); k('s_add_u32 s31, s31, s25'); k('s_lshl_b32 s31, s31, 10')
    k(f's_add_u32 s31, s31, 0x{OF:x}')
    k('buffer_store_dwordx4 v[40:43], v5, s[4:7], s31 offen')
    k('s_or_b64 vcc, vcc, s[28:29]')
    Lok = k.new_label('ok')
    k(f's_cbranch_vccz {Lok}')
    k('v_mov_b32 v8, 1'); k(f'v_mov_b32 v9, {LFLAG}')
    k('ds_write_b32 v9, v8')
    k.label(Lok)
    k('s_waitcnt lgkmcnt(0)')
    k('s_barrier')
    k(f'v_mov_b32 v9, {LFLAG}')
    k('ds_read_b32 v8, v9')
    k('s_waitcnt lgkmcnt(0)')
    k('s_nop 0')
    k('v_readfirstlane_b32 s33, v8')
    k('s_cmp_eq_u32 s33, 0')
    k(f's_cbranch_scc1 {k.name}_end')
    k('s_cmp_lg_u32 s30, 0')
    k(f's_cbranch_scc1 {k.name}_end')
    k('s_mov_b32 s30, 1')
    k('s_waitcnt vmcnt(0)')
    k(f'v_mov_b32 v66, 0xff800000'); k(f'v_mov_b32 v67, 0xff800000')
    k('s_mov_b32 s34, 0')
    LP = k.new_label('mx')
    k.label(LP)
    k('s_lshl_b32 s35, s34, 12'); k('s_add_u32 s35, s35, s19')
    k(f'buffer_load_dwordx4 {vr(KV)}, v5, s[4:7], s35 offen')
    k(f'buffer_load_dwordx4 {vr(KV+4)}, v5, s[4:7], s35 offen offset:1024')
    k('s_waitcnt vmcnt(0)')
    for q in range(2):
        s = S + 16*q
        k(f'v_mfma_f32_32x32x16_bf16 {vr(s,16)}, {vr(KV)}, {vr(Q+8*q)}, 0')
        k(f'v_mfma_f32_32x32x16_bf16 {vr(s,16)}, {vr(KV+4)}, {vr(Q+8*q+4)}, {vr(s,16)}')
    k.nop(20)
    for q in range(2):
        s = S + 16*q
        for r in range(0, 16, 2):
            k(f'v_max3_f32 v{66+q}, v{66+q}, v{s+r}, v{s+r+1}')
    k('s_add_u32 s34, s34, 1'); k('s_cmp_lt_u32 s34, 16'); k(f's_cbranch_scc1 {LP}')
    for q in range(2):
        k(f'v_mov_b32 v68, v{66+q}')
        k.nop(2)
        k(f'v_permlane32_swap_b32 v{66+q}, v68')
        k.nop(1)
        k(f'v_max_f32 v{66+q}, v{66+q}, v68')
    k('s_lshl_b32 s35, s3, 8'); k(f's_add_u32 s35, s35, {LM}')
    k('v_lshlrev_b32 v8, 2, v4'); k('v_add_u32 v9, s35, v8')
    k('ds_write_b32 v9, v66'); k('ds_write_b32 v9, v67 offset:128')
    k('s_waitcnt lgkmcnt(0)')
    k('s_barrier')
    k('s_lshl_b32 s35, s13, 8'); k(f's_add_u32 s35, s35, {LM}')
    k('v_add_u32 v9, s35, v8')
    for j in range(4):
        k(f'ds_read_b32 v{32+2*j}, v9 offset:{j*512}')
        k(f'ds_read_b32 v{33+2*j}, v9 offset:{j*512+128}')
    k('s_waitcnt lgkmcnt(0)')
    for q in range(2):
        k(f'v_max3_f32 v{32+q}, v{32+q}, v{34+q}, v{36+q}')
        k(f'v_max_f32 v{32+q}, v{32+q}, v{38+q}')
        k(f'v_add_f32 v{C+q}, v{C+q}, v{32+q}')
        set_shift(q, C+q)
    k('s_barrier')
    k.vm = []
    for kb in range(D): kvload(kb)
    k(f's_branch {MAIN}')
    epilogue(k)
    return k

def gen_gemmr(name, KS, abase, wbase, xold, xnew, stnew, final, DP):
    kw = KS // 4
    k = K(name, 256, 224, 49152, 256 + 64, accum=256)
    ptrs = [(72, 4, WS_BYTES)]
    if final: ptrs.append((56, 8, 2048*448*2))
    prologue(k, ptrs)
    lane_setup(k)
    R = 16
    RES = 240
    k('s_and_b32 s12, s2, 7'); k('s_lshr_b32 s13, s2, 3')
    k('s_and_b32 s14, s13, 3'); k('s_lshl_b32 s15, s12, 2'); k('s_add_u32 s15, s15, s14')
    k('s_lshr_b32 s16, s13, 2')
    k(f's_mul_i32 s17, s3, {kw}')
    k(f's_mul_i32 s18, s16, {2*KS}'); k('s_add_u32 s18, s18, s17'); k('s_lshl_b32 s18, s18, 10')
    k(f's_add_u32 s18, s18, 0x{wbase:x}'); k(f's_add_u32 s19, s18, {KS*1024}')
    k(f's_mul_i32 s20, s15, {2*KS}'); k('s_add_u32 s20, s20, s17'); k('s_lshl_b32 s20, s20, 10')
    k(f's_add_u32 s20, s20, 0x{abase:x}'); k(f's_add_u32 s21, s20, {KS*1024}')
    k('s_lshr_b32 s22, s3, 1'); k('s_and_b32 s23, s3, 1')
    k('s_lshl_b32 s24, s15, 1'); k('s_add_u32 s24, s24, s22')
    k('s_lshl_b32 s25, s16, 1'); k('s_add_u32 s25, s25, s23')
    k('s_mul_i32 s26, s24, 28'); k('s_lshl_b32 s27, s25, 1'); k('s_add_u32 s26, s26, s27')
    k('s_lshl_b32 s26, s26, 10')
    def load(ks):
        b = R + 16 * (ks % DP)
        if ks % 4 == 0 or ks == DP:
            base = (ks // 4) * 4096
            for i in range(4): k(f's_add_u32 s{28+i}, s{18+i}, {base}')
        for i in range(4):
            k.vmem(f'buffer_load_dwordx4 {vr(b+4*i)}, v5, s[4:7], s{28+i} offen offset:{(ks%4)*1024}', f'k{ks}')
    n0 = min(DP, kw)
    for ks in range(n0): load(ks)
    k(f's_add_u32 s32, s26, 0x{xold:x}')
    k.vmem(f'buffer_load_dwordx4 {vr(RES)}, v5, s[4:7], s32 offen', 'res')
    k.vmem(f'buffer_load_dwordx4 {vr(RES+4)}, v5, s[4:7], s32 offen offset:1024', 'res')
    for ks in range(kw):
        k.vm_wait(f'k{ks}')
        b = R + 16 * (ks % DP)
        for m in range(2):
            for n in range(2):
                a = (2*m + n) * 16
                c = '0' if ks == 0 else ar(a, 16)
                k(f'v_mfma_f32_32x32x16_bf16 {ar(a,16)}, {vr(b+4*n)}, {vr(b+8+4*m)}, {c}')
        if ks + DP < kw:
            load(ks + DP)
    k.nop(16)
    Ls = [k.new_label('red') for _ in range(4)]; Lj = k.new_label('red')
    for w in range(1, 4):
        k(f's_cmp_eq_u32 s3, {w}'); k(f's_cbranch_scc1 {Ls[w]}')
    for w in range(4):
        k.label(Ls[w])
        for d in range(1, 4):
            dst = (w + d) & 3
            slot = 3 - d if False else (w - dst - 1) % 4
            assert slot < 3
            for i in range(4):
                k(f'ds_write_b128 v5, {ar(dst*16+4*i)} offset:{dst*12288+slot*4096+i*1024}')
        for r in range(16): k(f'v_accvgpr_read_b32 v{16+r}, a{w*16+r}')
        if w < 3: k(f's_branch {Lj}')
    k.label(Lj)
    k('s_waitcnt lgkmcnt(0)')
    k('s_barrier')
    k('s_mul_i32 s33, s3, 12288'); k('v_add_u32 v6, s33, v5')
    for s in range(3):
        for i in range(4):
            k(f'ds_read_b128 {vr(32+16*s+4*i)}, v6 offset:{s*4096+i*1024}')
    k.vm_wait()
    for i in range(8):
        k(f'v_lshlrev_b32 v{80+2*i}, 16, v{RES+i}')
        k(f'v_and_b32 v{80+2*i+1}, 0xffff0000, v{RES+i}')
    for r in range(16): k(f'v_add_f32 v{16+r}, v{16+r}, v{80+r}')
    for s in range(3):
        k(f's_waitcnt lgkmcnt({8-4*s})')
        for r in range(16): k(f'v_add_f32 v{16+r}, v{16+r}, v{32+16*s+r}')
    for i in range(8): k(f'v_cvt_pk_bf16_f32 v{96+i}, v{16+2*i}, v{16+2*i+1}')
    if not final:
        k(f's_add_u32 s32, s26, 0x{xnew:x}')
        k('buffer_store_dwordx4 v[96:99], v5, s[4:7], s32 offen')
        k('buffer_store_dwordx4 v[100:103], v5, s[4:7], s32 offen offset:1024')
        k('v_mov_b32 v8, v16'); k('v_mul_f32 v9, v16, v16')
        for r in range(1, 16):
            k(f'v_add_f32 v8, v8, v{16+r}'); k(f'v_fmac_f32 v9, v{16+r}, v{16+r}')
        half_sum(k, 8, 10); half_sum(k, 9, 10)
        k('s_mul_i32 s33, s24, 14'); k('s_add_u32 s33, s33, s25'); k('s_lshl_b32 s33, s33, 8')
        k(f's_add_u32 s33, s33, 0x{stnew:x}')
        k('v_lshlrev_b32 v7, 3, v4')
        k('s_mov_b32 exec_hi, 0')
        k('buffer_store_dwordx2 v[8:9], v7, s[4:7], s33 offen')
    else:
        k.nop(2)
        for e in range(2):
            k(f'v_permlane32_swap_b32 v{96+4*e}, v{96+4*e+2}')
            k(f'v_permlane32_swap_b32 v{96+4*e+1}, v{96+4*e+3}')
        k('v_mul_u32_u24 v7, 896, v4'); k('v_lshl_add_u32 v7, v3, 4, v7')
        k(f's_mul_i32 s33, s24, {32*896}'); k('s_lshl_b32 s34, s25, 6'); k('s_add_u32 s33, s33, s34')
        k('buffer_store_dwordx4 v[96:99], v7, s[8:11], s33 offen')
        k('buffer_store_dwordx4 v[100:103], v7, s[8:11], s33 offen offset:32')
    epilogue(k)
    return k

def mish_pair(u0, u1, t0, t1, dst):
    L = []
    L += [f'v_exp_f32 v{t0}, v{u0}', f'v_exp_f32 v{t1}, v{u1}']
    L += [f'v_add_f32 v{t0}, 1.0, v{t0}', f'v_add_f32 v{t1}, 1.0, v{t1}']
    L += [f'v_fma_f32 v{t0}, v{t0}, v{t0}, 1.0', f'v_fma_f32 v{t1}, v{t1}, v{t1}, 1.0']
    L += [f'v_rcp_f32 v{t0}, v{t0}', f'v_rcp_f32 v{t1}, v{t1}']
    return L

def gen_ffn1(name, xin, stin):
    LC = 114688
    k = K(name, 256, 224, LC + 1024, 256)
    prologue(k, [(72, 4, WS_BYTES)])
    lane_setup(k)
    XF, WB, AC, SB = 16, 128, 160, 224
    k('s_and_b32 s8, s2, 7'); k('s_lshr_b32 s9, s2, 3')
    k('s_and_b32 s10, s9, 1'); k('s_lshl_b32 s11, s8, 1'); k('s_add_u32 s11, s11, s10')
    k('s_lshr_b32 s12, s9, 1')
    k('s_lshl_b32 s13, s11, 2'); k('s_add_u32 s13, s13, s3')
    k(f's_mul_i32 s14, s13, {28*1024}'); k(f's_add_u32 s14, s14, 0x{xin:x}')
    k('s_lshl_b32 s15, s12, 2'); k('s_add_u32 s15, s15, s3'); k(f's_mul_i32 s15, s15, {28*1024}')
    k(f's_add_u32 s15, s15, 0x{W1:x}')
    k('s_lshl_b32 s16, s3, 10')
    k(f's_mul_i32 s17, s13, {14*256}'); k(f's_add_u32 s17, s17, 0x{stin:x}')
    k('s_lshl_b32 s18, s12, 10'); k(f's_add_u32 s18, s18, 0x{C1:x}')
    stats_addr(k, 6)
    stages = [(0, 4), (4, 12), (12, 20), (20, 28)]
    for si, (a, b) in enumerate(stages):
        for ks in range(a, b):
            k(f's_add_u32 m0, s16, {4096*ks}')
            k(f's_add_u32 s20, s15, {1024*ks}')
            k.vmem('buffer_load_dwordx4 v5, s[4:7], s20 offen lds', f'W{si}')
        for ks in range(a, b):
            if ks % 4 == 0: k(f's_add_u32 s21, s14, {ks*1024}')
            k.vmem(f'buffer_load_dwordx4 {vr(XF+4*ks)}, v5, s[4:7], s21 offen offset:{(ks%4)*1024}', f'x{ks}')
    def wread(ks):
        b = WB + 16 * (ks % 2)
        for i in range(4):
            off = (ks*4 + i) * 1024
            if off < 65536: k.ds(f'ds_read_b128 {vr(b+4*i)}, v5 offset:{off}', f'w{ks}')
            else: k.ds(f'ds_read_b128 {vr(b+4*i)}, v7 offset:{off-65536}', f'w{ks}')
    k('v_add_u32 v7, 0x10000, v5')
    k.vm_wait('W0'); k('s_barrier')
    k(f's_mov_b32 m0, {LC}')
    k('s_nop 0')
    k.vmem('buffer_load_dwordx4 v5, s[4:7], s18 offen lds', 'cs')
    stats_load(k, 17, SB, 6)
    wread(0)
    stage_of = {ks: si for si, (a, b) in enumerate(stages) for ks in range(a, b)}
    for ks in range(28):
        if ks + 1 < 28:
            if stage_of[ks+1] != stage_of[ks]:
                k.vm_wait(f'W{stage_of[ks+1]}'); k('s_barrier')
            wread(ks + 1)
        k.vm_wait(f'x{ks}')
        k.lg_wait(f'w{ks}')
        b = WB + 16 * (ks % 2)
        for n in range(4):
            c = '0' if ks == 0 else vr(AC+16*n, 16)
            k(f'v_mfma_f32_32x32x16_bf16 {vr(AC+16*n,16)}, {vr(b+4*n)}, {vr(XF+4*ks)}, {c}')
    k.vm_wait(); k('s_barrier')
    RS, MR = 8, 9
    stats_finish(k, SB, RS, MR, 10)
    k(f'v_mul_f32 v{RS}, {fl(LOG2E)}, v{RS}')
    k('v_lshlrev_b32 v11, 6, v3'); k(f'v_add_u32 v11, {LC}, v11')
    k('s_mul_i32 s23, s13, 112'); k('s_lshl_b32 s24, s12, 3'); k('s_add_u32 s23, s23, s24')
    k('s_lshl_b32 s23, s23, 10'); k(f's_add_u32 s23, s23, 0x{ACT:x}')
    k(f'v_mov_b32 v12, {fl(-2*LN2)}'); k(f'v_mov_b32 v13, {fl(LN2)}')
    for n in range(4):
        CS, BB, T = 16, 32, 48
        for i in range(4): k(f'ds_read_b128 {vr(CS+4*i)}, v11 offset:{n*256+16*i}')
        for i in range(4): k(f'ds_read_b128 {vr(BB+4*i)}, v11 offset:{n*256+128+16*i}')
        k('s_waitcnt lgkmcnt(0)')
        A = AC + 16*n
        for r in range(16): k(f'v_fma_f32 v{CS+r}, v{MR}, v{CS+r}, v{BB+r}')
        for r in range(16): k(f'v_fma_f32 v{A+r}, v{RS}, v{A+r}, v{CS+r}')
        for r in range(16): k(f'v_exp_f32 v{T+r}, v{A+r}')
        for r in range(16): k(f'v_add_f32 v{T+r}, 1.0, v{T+r}')
        for r in range(16): k(f'v_fma_f32 v{T+r}, v{T+r}, v{T+r}, 1.0')
        for r in range(16): k(f'v_rcp_f32 v{T+r}, v{T+r}')
        for r in range(16): k(f'v_fma_f32 v{T+r}, v{T+r}, v12, v13')
        for r in range(16): k(f'v_mul_f32 v{A+r}, v{A+r}, v{T+r}')
        d = 64 + 8*n
        for i in range(8): k(f'v_cvt_pk_bf16_f32 v{d+i}, v{A+2*i}, v{A+2*i+1}')
        k(f's_add_u32 s24, s23, {n*2048}')
        k(f'buffer_store_dwordx4 {vr(d)}, v5, s[4:7], s24 offen')
        k(f'buffer_store_dwordx4 {vr(d+4)}, v5, s[4:7], s24 offen offset:1024')
    epilogue(k)
    return k

def build(path, extra_empty=0):
    ks = [gen_prep(),
          gen_qkv('qkv1_kernel', X[0], ST[0]), gen_attn('attn_kernel'),
          gen_gemmr('wo1_kernel', 32, OF, WO, X[0], X[1], ST[1], False, 8),
          gen_ffn1('ffa1_kernel', X[1], ST[1]),
          gen_gemmr('ffb1_kernel', 112, ACT, W2, X[1], X[2], ST[2], False, 14),
          gen_qkv('qkv2_kernel', X[2], ST[2]),
          gen_gemmr('wo2_kernel', 32, OF, WO, X[2], X[3], ST[3], False, 8),
          gen_ffn1('ffa2_kernel', X[3], ST[3]),
          gen_gemmr('ffb2_kernel', 112, ACT, W2, X[3], None, None, True, 14)]
    launches = [NAME + '_kernel', 'qkv1_kernel', 'attn_kernel', 'wo1_kernel', 'ffa1_kernel', 'ffb1_kernel',
                'qkv2_kernel', 'attn_kernel', 'wo2_kernel', 'ffa2_kernel', 'ffb2_kernel']
    if extra_empty:
        e = K('empty_kernel', 256, 256, 0, 64); e('s_endpgm'); ks.append(e)
        launches += ['empty_kernel'] * extra_empty
    ks[0].name_alias = None
    return emit_file(ks, launches, path)

if __name__ == '__main__':
    out = sys.argv[1] if len(sys.argv) > 1 else 'cdna_kernels/' + NAME + '.s'
    ee = int(sys.argv[2]) if len(sys.argv) > 2 else 0
    build(out, ee)
```

```python
NAME = 'interleave_layers__softmax_full_mha__dense_activation_mish__prompt'

import os
DEBUG = os.environ.get('KDEBUG','0')=='1'
class K:
    uid = 0
    def __init__(self, name, threads, nwg, lds, vgpr, accum=None):
        self.name = name; self.threads = threads; self.nwg = nwg; self.lds = lds
        self.vgpr = vgpr; self.accum = accum
        self.L = []
        self.vm = []
        self.lg = []
    def __call__(self, s):
        for ln in s.strip('\n').split('\n'):
            self.L.append('    ' + ln.strip())
    def label(self, n): self.L.append(n + ':')
    def new_label(self, p='L'):
        K.uid += 1
        return f'{p}_{K.uid}'
    def nop(self, n):
        while n > 0:
            m = min(n, 16); self(f's_nop {m-1}'); n -= m
    def vmem(self, s, tag=None):
        self(s); self.vm.append(tag)
    def vm_wait(self, tag=None):
        if tag is None:
            n = 0; self.vm = []
        else:
            idx = max([i for i, t in enumerate(self.vm) if t == tag], default=-1)
            if idx < 0: return
            n = len(self.vm) - 1 - idx
            self.vm = self.vm[idx+1:]
        assert n <= 63, n
        self(f's_waitcnt vmcnt({n})')
    def ds(self, s, tag=None):
        self(s); self.lg.append(tag)
    def lg_wait(self, tag=None):
        if tag is None:
            n = 0; self.lg = []
        else:
            idx = max([i for i, t in enumerate(self.lg) if t == tag], default=-1)
            if idx < 0: return
            n = len(self.lg) - 1 - idx
            self.lg = self.lg[idx+1:]
        if n > 15: return self.lg_force(n)
        self(f's_waitcnt lgkmcnt({n})')
    def lg_force(self, n):
        self('s_waitcnt lgkmcnt(15)')
    def stamp(self, idx, rt=False):
        if not DEBUG: return
        self(f's_{"memrealtime" if rt else "memtime"} s[{64+2*idx}:{65+2*idx}]')
        self('s_waitcnt lgkmcnt(0)')
        self.lg = []
        self.nst = max(getattr(self, 'nst', 0), idx + 1)
    def dbg_store(self):
        if not DEBUG: return
        L = self.new_label('dbg')
        self('s_cmp_lg_u32 s3, 0'); self(f's_cbranch_scc1 {L}')
        self('s_mov_b32 s88, 0')
        self('s_cmp_eq_u32 s2, 0'); L2 = self.new_label('dbg'); self(f's_cbranch_scc1 {L2}')
        self('s_mov_b32 s88, 64')
        self(f's_cmp_eq_u32 s2, {self.nwg//2+1}'); self(f's_cbranch_scc1 {L2}')
        self('s_mov_b32 s88, 128')
        self(f's_cmp_eq_u32 s2, {self.nwg-1}'); self(f's_cbranch_scc1 {L2}')
        self(f's_branch {L}')
        self.label(L2)
        self('s_load_dwordx2 s[84:85], s[0:1], 64')
        self('s_mov_b32 s86, 256'); self('s_mov_b32 s87, 0x00020000')
        self('s_waitcnt lgkmcnt(0)')
        self('s_mov_b32 exec_lo, 1'); self('s_mov_b32 exec_hi, 0')
        self('v_mov_b32 v1, 0')
        for i in range(getattr(self, 'nst', 0)):
            self(f'v_mov_b32 v2, s{64+2*i}')
            self(f'buffer_store_dword v2, v1, s[84:87], s88 offen offset:{4*i}')
            self('s_nop 1')
        self.label(L)
    def text(self):
        return (f".globl {self.name}\n.p2align 8\n.type {self.name},@function\n{self.name}:\n"
                + '\n'.join(self.L) + '\n')
    def desc(self):
        vg = self.vgpr
        acc = self.accum if self.accum is not None else (vg + 3) // 4 * 4
        return f""".p2align 6
.amdhsa_kernel {self.name}
  .amdhsa_next_free_vgpr {vg}
  .amdhsa_next_free_sgpr 96
  .amdhsa_accum_offset {acc}
  .amdhsa_group_segment_fixed_size 0
  .amdhsa_kernarg_size 80
  .amdhsa_user_sgpr_count 2
  .amdhsa_user_sgpr_kernarg_segment_ptr 1
  .amdhsa_system_sgpr_workgroup_id_x 1
.end_amdhsa_kernel
"""

def vr(b, n=4): return f'v[{b}:{b+n-1}]' if n > 1 else f'v{b}'
def ar(b, n=4): return f'a[{b}:{b+n-1}]' if n > 1 else f'a{b}'
def sr(b, n=4): return f's[{b}:{b+n-1}]' if n > 1 else f's{b}'

HDR = open('cdna_kernels/' + NAME + '.s.ref').read().split('; Override')[0]

def emit_file(kernels, launches, path):
    byname = {k.name: k for k in kernels}
    s = HDR
    for n in launches:
        k = byname[n]
        s += f"; @launch kernel={k.name} grid=({k.nwg},1,1) block=({k.threads},1,1) lds={k.lds}\n"
    s += '.amdgcn_target "amdgcn-amd-amdhsa--gfx950"\n.text\n'
    for k in kernels: s += k.text()
    s += '.section .rodata,"a"\n'
    for k in kernels: s += k.desc()
    open(path, 'w').write(s)
    return s
```

```python
import sys, os, struct
sys.path.insert(0, 'dev')
from asmlib import *
WQ = 0x900000; WO = 0xA80000; W1 = 0xB00000; W2 = 0xD00000; CSQ = 0xF00000; C1 = 0xF10000
FL = 0xF40000; FLS = 0x4000
FQ, FA, FW, F1, F2 = 0, 0x800, 0x1000, 0x2000, 0x3000
R0 = 0x1000000; LS = 0; KVLS = 0x400000
XIN = R0; STI = R0 + 0x1C0000; STM = R0 + 0x230000; KN = R0 + 0x2A0000; XMID = R0 + 0x2C0000
QF = R0 + 0x480000; OF = R0 + 0x680000; KVF = R0 + 0x880000; ACT = R0 + 0x1080000
STB = 14 * 512
WS_BYTES = 0x10000000
LOG2E = 1.4426950408889634
LN2 = 0.6931471805599453
def f2u(x): return struct.unpack('<I', struct.pack('<f', x))[0]
def fl(x): return f'0x{f2u(x):08x}'
def srd(k, s, nrec):
    k(f's_mov_b32 s{s+2}, 0x{nrec:x}'); k(f's_mov_b32 s{s+3}, 0x00020000')
def prologue(k, ptrs):
    k(f's_cmp_ge_u32 s2, {k.nwg}')
    k(f's_cbranch_scc1 {k.name}_end')
    for off, s, n in ptrs: k(f's_load_dwordx2 s[{s}:{s+1}], s[0:1], {off}')
    k('v_lshrrev_b32 v2, 6, v0'); k('v_and_b32 v1, 63, v0'); k('s_nop 0')
    k('v_readfirstlane_b32 s3, v2')
    k('s_waitcnt lgkmcnt(0)')
    for off, s, n in ptrs: srd(k, s, n)
def half_sum(k, va, vb):
    k(f'v_mov_b32 v{vb}, v{va}'); k.nop(2)
    k(f'v_permlane32_swap_b32 v{va}, v{vb}'); k.nop(1)
    k(f'v_add_f32 v{va}, v{va}, v{vb}')
def wave_max(k, v):
    for sh in (1, 2, 4, 8):
        k.nop(2); k(f'v_max_f32_dpp v{v}, v{v}, v{v} row_shr:{sh} row_mask:0xf bank_mask:0xf')
    k.nop(2); k(f'v_max_f32_dpp v{v}, v{v}, v{v} row_bcast:15 row_mask:0xa bank_mask:0xf')
    k.nop(2); k(f'v_max_f32_dpp v{v}, v{v}, v{v} row_bcast:31 row_mask:0xc bank_mask:0xf')

def gen_prep():
    import gen as G
    G.X[0] = XIN
    k = G.gen_prep()
    L = k.L
    out = []
    for i, ln in enumerate(L):
        s = ln.strip()
        if s == 's_mul_i32 s37, s2, 14*256': ln = f'    s_mul_i32 s37, s2, {STB}'
        elif s == 's_lshl_b32 s36, s3, 8' and L[i-1].strip() == 's_mul_i32 s37, s2, 14*256': ln = '    s_lshl_b32 s36, s3, 9'
        elif s == f's_add_u32 s37, s37, 0x{G.ST[0]:x}': ln = f'    s_add_u32 s37, s37, 0x{STI:x}'
        elif s == 'v_lshlrev_b32 v7, 3, v4': ln = '    v_lshlrev_b32 v7, 4, v4'
        elif s.startswith('s_add_u32 s38, s37, '):
            ii = int(s.split(',')[-1]) // 1024; ln = f'    s_add_u32 s38, s37, {ii*2048}'
        elif s == 'buffer_store_dwordx2 v[8:9], v7, s[4:7], s38 offen':
            out.append('    v_mov_b32 v10, 0'); out.append('    v_mov_b32 v11, 0')
            ln = '    buffer_store_dwordx4 v[8:11], v7, s[4:7], s38 offen'
        out.append(ln)
        if s == 'v_lshlrev_b32 v5, 4, v1':
            out += ['    s_cmp_ge_u32 s2, 32', '    s_cbranch_scc1 prep_nf', '    s_cmp_lg_u32 s3, 0', '    s_cbranch_scc1 prep_nf',
                    '    v_mov_b32 v8, 0', '    v_mov_b32 v9, 0', '    v_mov_b32 v10, 0', '    v_mov_b32 v11, 0',
                    '    s_lshl_b32 s32, s2, 10', f'    s_add_u32 s32, s32, 0x{FL:x}',
                    '    buffer_store_dwordx4 v[8:11], v5, s[4:7], s32 offen', '    s_nop 1', 'prep_nf:']
    k.L = out
    return k
```

```python
from g2a import *
DBG = os.environ.get('K2DEBUG', '0') == '1'
STOP = int(os.environ.get('STOP', '99'))
LWQ = 65536; LCS = LWQ + 86016; LSC = LCS + 512
LWO = 69632; LFLAG = 159744; LM = LFLAG + 64
LC1 = 57344; LST = LC1 + 2048; LE = 65536
POLLMAX = 1 << 15
def stamp(k, i):
    if not DBG: return
    L = k.new_label('st')
    k('s_cmp_lg_u32 s89, 0'); k(f's_cbranch_scc1 {L}')
    k('s_memtime s[90:91]'); k('s_waitcnt lgkmcnt(0)'); k.lg = []
    k('v_mov_b32 v2, s90')
    k(f'buffer_store_dword v2, off, s[84:87], s88 offset:{4*i}')
    k.label(L)
def poll(k, s_addr, n):
    L, Ld, Lt = k.new_label('pl'), k.new_label('pl'), k.new_label('pl')
    k('s_cmp_lg_u32 s3, 0'); k(f's_cbranch_scc1 {Ld}')
    k(f's_mov_b32 exec_lo, 0x{(1 << n) - 1:x}'); k('s_mov_b32 exec_hi, 0')
    k('v_lshlrev_b32 v8, 2, v1'); k('s_mov_b32 s18, 0')
    k.label(L)
    k(f'buffer_load_dword v9, v8, s[4:7], s{s_addr} offen sc1')
    k('s_waitcnt vmcnt(0)')
    k('v_cmp_eq_u32 vcc, 0, v9')
    k('s_add_u32 s18, s18, 1')
    k('s_nop 0')
    k('s_cmp_eq_u32 vcc_lo, 0'); k(f's_cbranch_scc1 {Lt}')
    k(f's_cmp_ge_u32 s18, {POLLMAX}'); k(f's_cbranch_scc1 {Lt}')
    k('s_sleep 1'); k(f's_branch {L}')
    k.label(Lt)
    k('s_mov_b32 exec_lo, -1'); k('s_mov_b32 exec_hi, -1')
    k.label(Ld)
    k('s_barrier')
def publish(k, s_addr):
    k('s_waitcnt vmcnt(0)'); k.vm = []
    k('s_barrier')
    Ld = k.new_label('pb')
    k('s_cmp_lg_u32 s3, 0'); k(f's_cbranch_scc1 {Ld}')
    k('s_mov_b32 exec_lo, 1'); k('s_mov_b32 exec_hi, 0')
    k('v_mov_b32 v9, 1')
    k(f'buffer_store_dword v9, off, s[4:7], s{s_addr} sc1')
    k('s_mov_b32 exec_lo, -1'); k('s_mov_b32 exec_hi, -1')
    k.label(Ld)
def stats_load(k, s_off, vb, vaddr):
    k(f'v_mul_u32_u24 v{vaddr}, {7*512}, v3'); k(f'v_lshl_add_u32 v{vaddr}, v4, 4, v{vaddr}')
    for i in range(7):
        k.vmem(f'buffer_load_dwordx4 {vr(vb+4*i)}, v{vaddr}, s[4:7], s{s_off} offen offset:{i*512} sc1', 'st')
def stats_finish(k, vb, rs, mr, tmp):
    for i in range(1, 7):
        for j in range(4): k(f'v_add_f32 v{vb+j}, v{vb+j}, v{vb+4*i+j}')
    k(f'v_add_f32 v{vb}, v{vb}, v{vb+2}'); k(f'v_add_f32 v{vb+1}, v{vb+1}, v{vb+3}')
    half_sum(k, vb, tmp); half_sum(k, vb+1, tmp)
    k(f'v_mul_f32 v{vb}, {fl(1/448)}, v{vb}'); k(f'v_mul_f32 v{vb+1}, {fl(1/448)}, v{vb+1}')
    k(f'v_fma_f32 v{vb+1}, -v{vb}, v{vb}, v{vb+1}')
    k(f'v_max_f32 v{vb+1}, 0, v{vb+1}'); k(f'v_add_f32 v{vb+1}, {fl(1e-5)}, v{vb+1}')
    k(f'v_rsq_f32 v{rs}, v{vb+1}'); k.nop(1)
    k(f'v_mul_f32 v{mr}, v{vb}, v{rs}'); k(f'v_sub_f32 v{mr}, 0, v{mr}')
def ldsr(dst, off):
    b = off >> 16
    return f'ds_read_b128 {vr(dst)}, v{5+b} offset:{off & 0xffff}'
MF = 'v_mfma_f32_32x32x16_bf16'

def wq_prefetch(k):
    k('s_lshr_b32 s18, s13, 1')
    k(f's_mul_i32 s19, s18, 86016'); k(f's_add_u32 s19, s19, 0x{WQ:x}')
    k('s_lshl_b32 s20, s3, 10'); k('s_add_u32 s19, s19, s20'); k(f's_add_u32 s20, s20, {LWQ}')
    for i in range(11):
        L = None
        if i == 10:
            L = k.new_label('wq'); k('s_cmp_ge_u32 s3, 4'); k(f's_cbranch_scc1 {L}')
        k(f's_add_u32 m0, s20, {8192*i}'); k(f's_add_u32 s21, s19, {8192*i}')
        k('buffer_load_dwordx4 v5, s[4:7], s21 offen lds')
    L2 = k.new_label('wq'); k(f's_branch {L2}')
    k.label(L)
    k('s_cmp_lg_u32 s3, 4'); k(f's_cbranch_scc1 {L2}')
    k('s_lshl_b32 s21, s18, 9'); k(f's_add_u32 s21, s21, 0x{CSQ:x}')
    k(f's_mov_b32 m0, {LCS}'); k('s_mov_b32 exec_hi, 0')
    k('buffer_load_dwordx4 v5, s[4:7], s21 offen lds')
    k('s_mov_b32 exec_hi, -1')
    k.label(L2)

def qkv(k):
    XF, WB, AQ, AK, AV, SB = 16, 128, 160, 176, 192, 208
    Lend = k.new_label('qe')
    k('s_and_b32 s22, s13, 1'); k('s_lshl_b32 s23, s12, 1'); k('s_add_u32 s22, s22, s23'); k('s_lshr_b32 s23, s13, 1')
    Ln = k.new_label('q0')
    k('s_cmp_eq_u32 s15, 0'); k(f's_cbranch_scc1 {Ln}')
    k('s_lshl_b32 s24, s22, 7'); k(f's_add_u32 s24, s24, {FL + F2}')
    k('s_waitcnt vmcnt(0)')
    poll(k, 24, 14)
    Lg = k.new_label('q1'); k(f's_branch {Lg}')
    k.label(Ln); k('s_waitcnt vmcnt(0)'); k('s_barrier'); k.label(Lg)
    stamp(k, 1)
    k('s_cmp_ge_u32 s3, 4'); k(f's_cbranch_scc1 {Lend}')
    k('s_lshl_b32 s25, s22, 2'); k('s_add_u32 s25, s25, s3')
    k(f's_mul_i32 s26, s25, {28*1024}'); k('s_add_u32 s26, s26, s14'); k(f's_add_u32 s26, s26, 0x{XIN:x}')
    k(f's_mul_i32 s27, s25, {STB}'); k('s_add_u32 s27, s27, s14'); k(f's_add_u32 s27, s27, 0x{STI:x}')
    DEPTH = 14
    def xload(ks):
        if ks % 4 == 0: k(f's_add_u32 s21, s26, {ks*1024}')
        k.vmem(f'buffer_load_dwordx4 {vr(XF+4*ks)}, v5, s[4:7], s21 offen offset:{(ks%4)*1024} sc1', f'x{ks}')
    def wread(ks):
        b = WB + 12 * (ks % 2)
        for i in range(3): k.ds(ldsr(b+4*i, LWQ + (ks*3+i)*1024), f'w{ks}')
    for ks in range(DEPTH): xload(ks)
    stats_load(k, 27, SB, 0)
    wread(0)
    nxt = DEPTH
    for ks in range(28):
        if ks + 1 < 28: wread(ks + 1)
        k.vm_wait(f'x{ks}'); k.lg_wait(f'w{ks}')
        b = WB + 12 * (ks % 2); x = vr(XF + 4*ks)
        c = lambda A: '0' if ks == 0 else vr(A, 16)
        k(f'{MF} {vr(AQ,16)}, {vr(b)}, {x}, {c(AQ)}')
        k(f'{MF} {vr(AK,16)}, {vr(b+4)}, {x}, {c(AK)}')
        k(f'{MF} {vr(AV,16)}, {x}, {vr(b+8)}, {c(AV)}')
        if nxt < 28:
            if nxt % 4 and ks == 0: k(f's_add_u32 s21, s26, {(nxt//4)*4096}')
            xload(nxt); nxt += 1
    stamp(k, 2)
    k.vm_wait()
    RS, MR = 8, 9
    stats_finish(k, SB, RS, MR, 10)
    k('s_lshl_b32 s28, s3, 8'); k(f's_add_u32 s28, s28, {LSC}')
    k('v_lshlrev_b32 v10, 3, v4'); k('v_add_u32 v10, s28, v10')
    k(f'ds_write_b64 v10, v[{RS}:{MR}]')
    k('v_lshlrev_b32 v11, 6, v3'); k(f'v_add_u32 v11, {LCS}, v11')
    for i in range(4): k(f'ds_read_b128 {vr(16+4*i)}, v11 offset:{16*i}')
    for i in range(4): k(f'ds_read_b128 {vr(32+4*i)}, v11 offset:{128+16*i}')
    k('v_lshlrev_b32 v11, 2, v4'); k(f'v_add_u32 v11, {LCS+256}, v11')
    k('ds_read_b32 v48, v11')
    k('s_waitcnt lgkmcnt(0)')
    k('v_lshlrev_b32 v11, 5, v3'); k('v_add_u32 v11, s28, v11')
    for g in range(4):
        k(f'ds_read_b128 {vr(64+8*g)}, v11 offset:{64*g}')
        k(f'ds_read_b128 {vr(64+8*g+4)}, v11 offset:{64*g+16}')
    SC = (28 ** -0.5) * LOG2E
    k(f'v_mul_f32 v14, {fl(SC)}, v{RS}'); k(f'v_mul_f32 v15, {fl(SC)}, v{MR}')
    k('v_mov_b32 v12, 0'); k('v_mov_b32 v13, 0')
    for r in range(16): k(f'v_mul_f32 v{16+r}, v15, v{16+r}')
    for r in range(16): k(f'v_fma_f32 v{AQ+r}, v14, v{AQ+r}, v{16+r}')
    for r in range(16): k(f'v_mul_f32 v{32+r}, v{MR}, v{32+r}')
    for r in range(16): k(f'v_fma_f32 v{AK+r}, v{RS}, v{AK+r}, v{32+r}')
    k('v_mov_b32 v10, 0'); k('v_mov_b32 v11, 0')
    for r in range(0, 16, 2):
        k(f'v_fmac_f32 v12, v{AQ+r}, v{AQ+r}'); k(f'v_fmac_f32 v13, v{AK+r}, v{AK+r}')
        k(f'v_fmac_f32 v10, v{AQ+r+1}, v{AQ+r+1}'); k(f'v_fmac_f32 v11, v{AK+r+1}, v{AK+r+1}')
    k('v_add_f32 v12, v12, v10'); k('v_add_f32 v13, v13, v11')
    half_sum(k, 12, 10); half_sum(k, 13, 10)
    k('v_sqrt_f32 v12, v12'); k.nop(1)
    k('s_mov_b32 exec_lo, 0')
    k(f'v_mov_b32 v{AQ+14}, v12'); k(f'v_mov_b32 v{AK+12}, 1.0'); k(f'v_mov_b32 v{AK+13}, 1.0')
    k('s_mov_b32 exec_lo, -1')
    wave_max(k, 13)
    k('v_cmp_eq_u32 vcc, 28, v4'); k('v_mov_b32 v49, 0'); k('v_mov_b32 v50, 1.0'); k.nop(1)
    k('v_cndmask_b32 v49, v49, v50, vcc')
    k('s_waitcnt lgkmcnt(0)')
    for r in range(16):
        g, i = r >> 2, r & 3
        k(f'v_fma_f32 v{64+8*g+2*i+1}, v{64+8*g+2*i+1}, v48, v49')
    for r in range(16):
        g, i = r >> 2, r & 3
        k(f'v_fma_f32 v{AV+r}, v{64+8*g+2*i}, v{AV+r}, v{64+8*g+2*i+1}')
    for A, d in ((AQ, 16), (AK, 24), (AV, 32)):
        for i in range(8): k(f'v_cvt_pk_bf16_f32 v{d+i}, v{A+2*i}, v{A+2*i+1}')
    k('s_lshl_b32 s29, s23, 6'); k('s_add_u32 s29, s29, s25')
    k('s_lshl_b32 s30, s29, 11'); k('s_add_u32 s30, s30, s14'); k(f's_add_u32 s30, s30, 0x{QF:x}')
    k('s_lshl_b32 s31, s29, 12'); k('s_add_u32 s31, s31, s14'); k(f's_add_u32 s31, s31, 0x{KVF:x}')
    k('s_lshl_b32 s32, s29, 2'); k('s_add_u32 s32, s32, s14'); k(f's_add_u32 s32, s32, 0x{KN:x}')
    for i in range(4): k(f'buffer_store_dwordx4 {vr(24+4*i)}, v5, s[4:7], s31 offen offset:{1024*i} sc1')
    k(f'buffer_store_dwordx4 v[16:19], v5, s[4:7], s30 offen sc1')
    k(f'buffer_store_dwordx4 v[20:23], v5, s[4:7], s30 offen offset:1024 sc1')
    k('s_mov_b32 exec_lo, 0'); k('s_mov_b32 exec_hi, 0x80000000')
    k('buffer_store_dword v13, off, s[4:7], s32 sc1')
    k('s_mov_b32 exec_lo, -1'); k('s_mov_b32 exec_hi, -1')
    k.label(Lend)
    k.lg = []
    k('s_lshl_b32 s24, s23, 7'); k('s_lshl_b32 s25, s22, 2'); k('s_add_u32 s24, s24, s25'); k('s_add_u32 s24, s24, s16')
    stamp(k, 3)
    publish(k, 24)

def w1reg(ks): return 176 + 4*ks if ks < 20 else 96 + 4*(ks - 20)

def tl_roles(k):
    k('s_and_b32 s50, s13, 3'); k('s_lshl_b32 s51, s12, 2'); k('s_add_u32 s50, s50, s51'); k('s_lshr_b32 s51, s13, 2')

def attn(k):
    Q, KV, S, P, O, C = 16, 32, 96, 128, 144, 14
    D = 4
    tl_roles(k)
    k('s_and_b32 s20, s13, 1'); k('s_lshl_b32 s22, s12, 1'); k('s_add_u32 s22, s22, s20')
    k('s_lshr_b32 s21, s13, 1')
    k('s_lshl_b32 s24, s22, 7'); k('s_add_u32 s24, s24, s16')
    poll(k, 24, 16)
    stamp(k, 4)
    k('s_and_b32 s23, s3, 1'); k('s_lshr_b32 s24, s3, 1')
    k('s_lshl_b32 s25, s21, 2'); k('s_lshl_b32 s26, s23, 1'); k('s_add_u32 s25, s25, s26')
    k('s_lshl_b32 s27, s22, 6')
    k('s_add_u32 s28, s27, s25'); k('s_lshl_b32 s28, s28, 11'); k('s_add_u32 s28, s28, s14'); k(f's_add_u32 s28, s28, 0x{QF:x}')
    k('s_lshl_b32 s29, s24, 4'); k('s_add_u32 s29, s29, s27'); k('s_lshl_b32 s29, s29, 12')
    k('s_add_u32 s29, s29, s14'); k(f's_add_u32 s29, s29, 0x{KVF:x}')
    k('s_lshl_b32 s30, s27, 2'); k('s_add_u32 s30, s30, s14'); k(f's_add_u32 s30, s30, 0x{KN:x}')
    k('v_lshlrev_b32 v0, 2, v1')
    k.vmem('buffer_load_dword v11, v0, s[4:7], s30 offen sc1', 'kn')
    for i in range(4): k.vmem(f'buffer_load_dwordx4 {vr(Q+4*i)}, v5, s[4:7], s28 offen offset:{1024*i} sc1', 'q')
    k('v_mov_b32 v8, 0'); k(f'v_mov_b32 v9, {LFLAG}'); k('ds_write_b32 v9, v8')
    k('s_mov_b32 s40, 0')
    def kvload(kb):
        b = KV + 16 * (kb % D)
        k(f's_add_u32 s31, s29, {kb*4096}')
        for i in range(4):
            k.vmem(f'buffer_load_dwordx4 {vr(b+4*i)}, v5, s[4:7], s31 offen offset:{1024*i}', f'k{kb}' if i < 2 else f'v{kb}')
    for kb in range(D): kvload(kb)
    k('s_lshl_b32 s52, s51, 16'); k('s_lshl_b32 s53, s3, 10'); k('s_add_u32 s52, s52, s53'); k(f's_add_u32 s52, s52, 0x{WO:x}')
    k(f's_add_u32 s53, s53, {LWO}')
    k('s_lshl_b32 s54, s51, 3'); k('s_add_u32 s54, s54, s3'); k(f's_mul_i32 s54, s54, {28*1024}'); k(f's_add_u32 s54, s54, 0x{W1:x}')
    def pf(n):
        if n < 8:
            k(f's_add_u32 m0, s53, {8192*n}'); k(f's_add_u32 s55, s52, {8192*n}')
            k.vmem('buffer_load_dwordx4 v5, s[4:7], s55 offen lds', 'pf')
        elif n < 36:
            ks = n - 8
            k(f's_add_u32 s55, s54, {(ks//4)*4096}')
            k.vmem(f'buffer_load_dwordx4 {vr(w1reg(ks))}, v5, s[4:7], s55 offen offset:{(ks%4)*1024}', 'pf')
    k.vm_wait('kn')
    wave_max(k, 11); k.nop(1)
    k('v_readlane_b32 s32, v11, 63'); k.nop(2)
    k('v_sqrt_f32 v11, s32'); k.nop(1)
    k(f'v_mul_f32 v11, {fl(1.0+1/64)}, v11')
    k.vm_wait('q')
    def set_shift(q, cv):
        d = Q + 8*q + 4 + 2
        k(f'v_cvt_pk_bf16_f32 v8, v{cv}, v{cv}'); k('v_and_b32 v8, 0xffff0000, v8')
        k(f'v_sub_f32 v9, v{cv}, v8'); k(f'v_cvt_pk_bf16_f32 v10, v9, v9'); k('v_and_b32 v10, 0xffff0000, v10')
        k(f'v_add_f32 v{cv}, v8, v10'); k('v_cvt_pk_bf16_f32 v9, -v8, -v10')
        k('s_mov_b32 exec_lo, 0'); k(f'v_mov_b32 v{d}, v9'); k('s_mov_b32 exec_lo, -1')
    for q in range(2):
        k(f'v_lshlrev_b32 v{C+q}, 16, v{Q+8*q+4+3}'); k(f'v_mul_f32 v{C+q}, v{C+q}, v11')
        set_shift(q, C+q)
    MAIN = k.new_label('main'); FIN = k.new_label('fin')
    k.label(MAIN)
    NT = 32
    def smf(n, which):
        kb, q = n >> 1, n & 1
        b = KV + 16*(kb % D); s = S + 16*(n % 2)
        if which == 0: return f'{MF} {vr(s,16)}, {vr(b)}, {vr(Q+8*q)}, 0'
        return f'{MF} {vr(s,16)}, {vr(b+4)}, {vr(Q+8*q+4)}, {vr(s,16)}'
    def pmf(n, which):
        kb, q = n >> 1, n & 1
        b = KV + 16*(kb % D) + 8; p = P + 8*(n % 2); o = O + 16*q
        c = '0' if (n < 2 and which == 0) else vr(o, 16)
        return f'{MF} {vr(o,16)}, {vr(b+4*which)}, {vr(p+4*which)}, {c}'
    k.vm_wait('k0')
    stamp(k, 5)
    k.nop(2); k(smf(0, 0)); k(smf(0, 1)); k.nop(16)
    PRIO = os.environ.get('APRIO', '1') == '1'
    for n in range(NT + 1):
        if PRIO and n % 8 == 0 and n < NT: k(f's_setprio {3 - n//8}')
        valu = []
        if n < NT:
            s = S + 16*(n % 2); p = P + 8*(n % 2)
            valu = [f'v_exp_f32 v{s+r}, v{s+r}' for r in range(16)]
            valu += [f'v_cvt_pk_bf16_f32 v{p+i}, v{s+2*i}, v{s+2*i+1}' for i in range(8)]
        mf = []
        if n + 1 < NT:
            if (n + 1) % 2 == 0: k.vm_wait(f'k{(n+1)>>1}')
            mf += [smf(n+1, 0), smf(n+1, 1)]
        if n >= 1:
            k.vm_wait(f'v{(n-1)>>1}')
            mf += [pmf(n-1, 0), pmf(n-1, 1)]
        if n == NT: k.nop(2)
        pos = [0, 6, 12, 18] if len(mf) == 4 else ([0, 6] if n == 0 else [12, 18])
        mi = 0
        if not valu:
            for m in mf: k(m)
        else:
            for i, v in enumerate(valu):
                while mi < len(mf) and pos[mi] == i:
                    k(mf[mi]); mi += 1
                k(v)
        if n >= 1 and (n - 1) % 2 == 1:
            kbn = ((n - 1) >> 1) + D
            if kbn < 16: kvload(kbn)
        if n < 28: pf(n)
    for n in range(28, 36): pf(n)
    k.nop(8)
    stamp(k, 6)
    k('s_lshl_b32 s33, s3, 13'); k('v_add_u32 v8, s33, v5')
    for q in range(2):
        for i in range(4): k(f'ds_write_b128 v8, {vr(O+16*q+4*i)} offset:{q*4096+i*1024}')
    k('s_waitcnt lgkmcnt(0)'); k('s_barrier')
    k('s_lshr_b32 s34, s24, 1'); k('s_and_b32 s35, s24, 1')
    k('s_lshl_b32 s36, s23, 13'); k('s_lshl_b32 s37, s34, 12'); k('s_add_u32 s36, s36, s37')
    k('s_lshl_b32 s37, s35, 11'); k('s_add_u32 s37, s37, s36')
    k('v_add_u32 v8, s37, v5')
    k('v_lshlrev_b32 v9, 4, v4'); k(f'v_add_u32 v9, {3*1024 + 32*16}, v9'); k('v_add_u32 v9, s36, v9')
    for j in range(4):
        k(f'ds_read_b128 {vr(32+8*j)}, v8 offset:{j*16384}')
        k(f'ds_read_b128 {vr(36+8*j)}, v8 offset:{j*16384+1024}')
        k(f'ds_read_b32 v{64+j}, v9 offset:{j*16384}')
    k('s_waitcnt lgkmcnt(0)')
    for j in range(1, 4):
        for r in range(8): k(f'v_add_f32 v{32+r}, v{32+r}, v{32+8*j+r}')
        k(f'v_add_f32 v64, v64, v{64+j}')
    k('v_rcp_f32 v65, v64')
    k(f'v_mov_b32 v66, {fl(2.0**-80)}'); k('v_cmp_nge_f32 vcc, v64, v66')
    k(f'v_mov_b32 v66, {fl(2.0**100)}'); k('v_cmp_nle_f32 s[38:39], v64, v66')
    for r in range(8): k(f'v_mul_f32 v{32+r}, v{32+r}, v65')
    for i in range(4): k(f'v_cvt_pk_bf16_f32 v{40+i}, v{32+2*i}, v{32+2*i+1}')
    k('s_add_u32 s41, s25, s34'); k('s_lshl_b32 s41, s41, 5'); k('s_lshl_b32 s42, s22, 1')
    k('s_add_u32 s41, s41, s42'); k('s_add_u32 s41, s41, s35'); k('s_lshl_b32 s41, s41, 10')
    k('s_add_u32 s41, s41, s14'); k(f's_add_u32 s41, s41, 0x{OF:x}')
    k('buffer_store_dwordx4 v[40:43], v5, s[4:7], s41 offen sc1')
    k('s_or_b64 vcc, vcc, s[38:39]')
    Lok = k.new_label('ok')
    k(f's_cbranch_vccz {Lok}')
    k('v_mov_b32 v8, 1'); k(f'v_mov_b32 v9, {LFLAG}'); k('ds_write_b32 v9, v8')
    k.label(Lok)
    k('s_waitcnt vmcnt(0) lgkmcnt(0)'); k.vm = []
    k('s_barrier')
    k(f'v_mov_b32 v9, {LFLAG}'); k('ds_read_b32 v8, v9'); k('s_waitcnt lgkmcnt(0)'); k('s_nop 0')
    k('v_readfirstlane_b32 s43, v8')
    k('s_cmp_eq_u32 s43, 0'); k(f's_cbranch_scc1 {FIN}')
    k('s_cmp_lg_u32 s40, 0'); k(f's_cbranch_scc1 {FIN}')
    k('s_mov_b32 s40, 1')
    k(f'v_mov_b32 v66, 0xff800000'); k(f'v_mov_b32 v67, 0xff800000')
    k('s_mov_b32 s44, 0')
    LP = k.new_label('mx'); k.label(LP)
    k('s_lshl_b32 s45, s44, 12'); k('s_add_u32 s45, s45, s29')
    k(f'buffer_load_dwordx4 {vr(KV)}, v5, s[4:7], s45 offen')
    k(f'buffer_load_dwordx4 {vr(KV+4)}, v5, s[4:7], s45 offen offset:1024')
    k('s_waitcnt vmcnt(0)')
    for q in range(2):
        s = 64 + 0 if False else 48 + 0
    for q in range(2):
        s = 128 + 16*q
        k(f'{MF} {vr(s,16)}, {vr(KV)}, {vr(Q+8*q)}, 0'); k(f'{MF} {vr(s,16)}, {vr(KV+4)}, {vr(Q+8*q+4)}, {vr(s,16)}')
    k.nop(20)
    for q in range(2):
        s = 128 + 16*q
        for r in range(0, 16, 2): k(f'v_max3_f32 v{66+q}, v{66+q}, v{s+r}, v{s+r+1}')
    k('s_add_u32 s44, s44, 1'); k('s_cmp_lt_u32 s44, 16'); k(f's_cbranch_scc1 {LP}')
    for q in range(2):
        k(f'v_mov_b32 v68, v{66+q}'); k.nop(2)
        k(f'v_permlane32_swap_b32 v{66+q}, v68'); k.nop(1)
        k(f'v_max_f32 v{66+q}, v{66+q}, v68')
    k('s_lshl_b32 s45, s3, 8'); k(f's_add_u32 s45, s45, {LM}')
    k('v_lshlrev_b32 v8, 2, v4'); k('v_add_u32 v9, s45, v8')
    k('ds_write_b32 v9, v66'); k('ds_write_b32 v9, v67 offset:128')
    k('s_waitcnt lgkmcnt(0)'); k('s_barrier')
    k('s_lshl_b32 s45, s23, 8'); k(f's_add_u32 s45, s45, {LM}'); k('v_add_u32 v9, s45, v8')
    for j in range(4):
        k(f'ds_read_b32 v{32+2*j}, v9 offset:{j*512}'); k(f'ds_read_b32 v{33+2*j}, v9 offset:{j*512+128}')
    k(f'v_mov_b32 v8, 0'); k(f'v_mov_b32 v10, {LFLAG}'); k('ds_write_b32 v10, v8')
    k('s_waitcnt lgkmcnt(0)')
    for q in range(2):
        k(f'v_max3_f32 v{32+q}, v{32+q}, v{34+q}, v{36+q}'); k(f'v_max_f32 v{32+q}, v{32+q}, v{38+q}')
        k(f'v_add_f32 v{C+q}, v{C+q}, v{32+q}')
        set_shift(q, C+q)
    k('s_barrier')
    k.vm = []
    for kb in range(D): kvload(kb)
    k(f's_branch {MAIN}')
    k.label(FIN)
    k.vm = []; k.lg = []
    k('s_setprio 0')
    k('s_lshl_b32 s24, s21, 7'); k('s_lshl_b32 s25, s22, 2'); k('s_add_u32 s24, s24, s25'); k('s_add_u32 s24, s24, s16')
    k(f's_add_u32 s24, s24, {FA}')
    Ld = k.new_label('pb')
    k('s_cmp_lg_u32 s3, 0'); k(f's_cbranch_scc1 {Ld}')
    k('s_mov_b32 exec_lo, 1'); k('s_mov_b32 exec_hi, 0'); k('v_mov_b32 v9, 1')
    k(f'buffer_store_dword v9, off, s[4:7], s24 sc1')
    k('s_mov_b32 exec_lo, -1'); k('s_mov_b32 exec_hi, -1')
    k.label(Ld)
    stamp(k, 7)
```

```python
import sys, math
sys.path.insert(0, 'dev')
from asmlib import *

X = [0x000000, 0x200000, 0x400000, 0x600000]
ST = [0x800000, 0x840000, 0x880000, 0x8C0000]
WQ = 0x900000
WO = 0xA80000
W1 = 0xB00000
W2 = 0xD00000
CSQ = 0xF00000
C1 = 0xF10000
KN = 0xF20000
QF = 0x1000000
KVF = 0x1200000
OF = 0x1600000
ACT = 0x1800000
WS_BYTES = 0x10000000
LOG2E = 1.4426950408889634
LN2 = 0.6931471805599453
import struct
def f2u(x): return struct.unpack('<I', struct.pack('<f', x))[0]
def fl(x): return f'0x{f2u(x):08x}'

def srd(k, s, lo, nrec):
    k(f's_mov_b32 s{s+2}, 0x{nrec:x}')
    k(f's_mov_b32 s{s+3}, 0x00020000')

def prologue(k, ptrs):
    k(f's_cmp_ge_u32 s2, {k.nwg}')
    end = k.name + '_end'
    k(f's_cbranch_scc1 {end}')
    k.stamp(0, rt=True); k.stamp(1)
    for off, s, n in ptrs:
        k(f's_load_dwordx2 s[{s}:{s+1}], s[0:1], {off}')
    k('v_lshrrev_b32 v2, 6, v0')
    k('v_and_b32 v1, 63, v0')
    k('s_nop 0')
    k('v_readfirstlane_b32 s3, v2')
    k('s_waitcnt lgkmcnt(0)')
    for off, s, n in ptrs:
        srd(k, s, None, n)

def epilogue(k):
    if DEBUG:
        k('s_waitcnt vmcnt(0)')
        k.stamp(6); k.stamp(7, rt=True)
        k('s_mov_b32 exec_lo, -1'); k('s_mov_b32 exec_hi, -1')
        k.dbg_store()
    k.label(k.name + '_end')
    k('s_endpgm')

def half_sum(k, va, vb):
    k(f'v_mov_b32 v{vb}, v{va}')
    k.nop(2)
    k(f'v_permlane32_swap_b32 v{va}, v{vb}')
    k.nop(1)
    k(f'v_add_f32 v{va}, v{va}, v{vb}')

def wave_max(k, v, tmp):
    for sh in (1, 2, 4, 8):
        k.nop(2)
        k(f'v_max_f32_dpp v{v}, v{v}, v{v} row_shr:{sh} row_mask:0xf bank_mask:0xf')
    k.nop(2)
    k(f'v_max_f32_dpp v{v}, v{v}, v{v} row_bcast:15 row_mask:0xa bank_mask:0xf')
    k.nop(2)
    k(f'v_max_f32_dpp v{v}, v{v}, v{v} row_bcast:31 row_mask:0xc bank_mask:0xf')

def gen_prep():
    k = K(NAME + '_kernel', 256, 252, 16384 + 64, 128)
    prologue(k, [(72, 4, WS_BYTES), (0, 8, 2048*448*2), (8, 12, 448*1344*2), (16, 16, 448*448*2),
                 (32, 20, 448*1792*2), (40, 24, 1792*2), (48, 28, 1792*448*2)])
    k('v_lshrrev_b32 v3, 5, v1')
    k('v_and_b32 v4, 31, v1')
    k('v_lshlrev_b32 v5, 4, v1')
    Lq, L1, L2, Lo = [k.new_label('prep') for _ in range(4)]
    k('s_cmp_ge_u32 s2, 224'); k(f's_cbranch_scc1 {Lo}')
    k('s_cmp_ge_u32 s2, 168'); k(f's_cbranch_scc1 {L2}')
    k('s_cmp_ge_u32 s2, 112'); k(f's_cbranch_scc1 {L1}')
    k('s_cmp_ge_u32 s2, 64'); k(f's_cbranch_scc1 {Lq}')
    k('v_mul_u32_u24 v6, 896, v4')
    k('v_lshl_add_u32 v6, v3, 4, v6')
    k('s_mul_i32 s32, s2, 32*896')
    k('s_lshl_b32 s33, s3, 6')
    k('s_add_u32 s32, s32, s33')
    for i in range(4):
        lab = None
        if i == 3:
            lab = k.new_label('px')
            k('s_cmp_ge_u32 s3, 2'); k(f's_cbranch_scc1 {lab}')
        k(f's_add_u32 s34, s32, {i*256}')
        k(f'buffer_load_dwordx4 {vr(16+8*i)}, v6, s[8:11], s34 offen')
        k(f'buffer_load_dwordx4 {vr(20+8*i)}, v6, s[8:11], s34 offen offset:32')
        if lab: k.label(lab)
    k('s_waitcnt vmcnt(0)')
    k('s_mul_i32 s35, s2, 28*1024')
    k('s_lshl_b32 s36, s3, 11')
    k('s_add_u32 s35, s35, s36')
    k(f's_add_u32 s35, s35, 0x{X[0]:x}')
    k('s_mul_i32 s37, s2, 14*256')
    k('s_lshl_b32 s36, s3, 8')
    k('s_add_u32 s37, s37, s36')
    k(f's_add_u32 s37, s37, 0x{ST[0]:x}')
    k('v_lshlrev_b32 v7, 3, v4')
    for i in range(4):
        lab = None
        if i == 3:
            lab = k.new_label('px')
            k('s_cmp_ge_u32 s3, 2'); k(f's_cbranch_scc1 {lab}')
        b = 16 + 8*i
        k('v_mov_b32 v8, 0'); k('v_mov_b32 v9, 0'); k(f'v_mov_b32 v10, 0x3f803f80')
        for r in range(8):
            k(f'v_dot2_f32_bf16 v8, v{b+r}, v10, v8')
            k(f'v_dot2_f32_bf16 v9, v{b+r}, v{b+r}, v9')
        for e in range(2):
            k(f'v_permlane32_swap_b32 v{b+4*e}, v{b+4*e+2}')
            k(f'v_permlane32_swap_b32 v{b+4*e+1}, v{b+4*e+3}')
        half_sum(k, 8, 11)
        half_sum(k, 9, 11)
        k(f's_add_u32 s38, s35, {i*8192}')
        k(f'buffer_store_dwordx4 {vr(b)}, v5, s[4:7], s38 offen')
        k(f'buffer_store_dwordx4 {vr(b+4)}, v5, s[4:7], s38 offen offset:1024')
        k(f's_add_u32 s38, s37, {i*1024}')
        k('s_mov_b32 exec_hi, 0')
        k(f'buffer_store_dwordx2 v[8:9], v7, s[4:7], s38 offen')
        k('s_mov_b32 exec_hi, -1')
        k.nop(2)
        if lab: k.label(lab)
    k('s_endpgm')

    def wtask(srdb, stride, rowoffs, ncols, s_src, s_dst, dstride, mask_odd=False):
        n = len(rowoffs)
        k(f'v_mul_u32_u24 v6, {4*stride}, v3')
        k('v_lshl_add_u32 v6, v4, 1, v6')
        if ncols < 32:
            k(f'v_cmp_gt_u32 vcc, {ncols}, v4')
            k('v_mov_b32 v7, 0x40000000')
            k.nop(1)
            k('v_cndmask_b32 v6, v7, v6, vcc')
        if mask_odd:
            k('v_cmp_eq_u32 vcc, 0, v3')
            k('v_mov_b32 v7, 0x40000000')
            k.nop(1)
            k('v_cndmask_b32 v7, v7, v6, vcc')
        for ks in range(n):
            for j in range(8):
                ro = rowoffs[ks] + 8*(j >> 2) + (j & 3)
                k(f's_add_u32 s40, s{s_src}, {ro*stride}')
                vo = 'v7' if (mask_odd and (ks & 1) and j >= 4) else 'v6'
                k(f'buffer_load_ushort v{16+8*ks+j}, {vo}, s[{srdb}:{srdb+3}], s40 offen')
            if ks == 6: pass
        k('s_waitcnt vmcnt(0)')
        for ks in range(n):
            for i in range(4):
                k(f'v_lshl_or_b32 v{80+4*ks+i}, v{16+8*ks+2*i+1}, 16, v{16+8*ks+2*i}')
            k(f's_add_u32 s40, s{s_dst}, {ks*dstride}')
            k(f'buffer_store_dwordx4 {vr(80+4*ks)}, v5, s[4:7], s40 offen')

    def colsum(btype, n):
        for i in range(4): k(f'v_mov_b32 v{112+i}, 0x3f803f80')
        k.nop(2)
        for ks in range(n):
            c = '0' if ks == 0 else 'v[16:31]'
            if btype: k(f'v_mfma_f32_32x32x16_bf16 v[16:31], v[112:115], {vr(80+4*ks)}, {c}')
            else: k(f'v_mfma_f32_32x32x16_bf16 v[16:31], {vr(80+4*ks)}, v[112:115], {c}')
        k.nop(16)

    def reduce4():
        k('s_lshl_b32 s41, s3, 12')
        k('v_add_u32 v6, s41, v5')
        for i in range(4):
            k(f'ds_write_b128 v6, {vr(16+4*i)} offset:{i*1024}')
        k('s_waitcnt lgkmcnt(0)')
        k('s_barrier')
        k('s_cmp_lg_u32 s3, 0')
        k(f's_cbranch_scc1 {k.name}_end')
        for w in range(1, 4):
            for i in range(4):
                k(f'ds_read_b128 {vr(32+4*i)}, v5 offset:{w*4096+i*1024}')
            k('s_waitcnt lgkmcnt(0)')
            for r in range(16):
                k(f'v_add_f32 v{16+r}, v{16+r}, v{32+r}')

    def store_dl(s_off, imm=0):
        k('v_lshlrev_b32 v6, 6, v3')
        k('s_mov_b32 exec_lo, 1'); k('s_mov_b32 exec_hi, 1')
        for i in range(4):
            k(f'buffer_store_dwordx4 {vr(16+4*i)}, v6, s[4:7], s{s_off} offen offset:{imm+16*i}')
        k('s_mov_b32 exec_lo, -1'); k('s_mov_b32 exec_hi, -1')

    k.label(Lq)
    k('s_sub_u32 s42, s2, 64')
    k('s_lshr_b32 s43, s42, 4')
    k('s_and_b32 s44, s42, 15')
    k(f's_mul_i32 s45, s3, {7*16*2688}')
    k('s_mul_i32 s46, s43, 896'); k('s_add_u32 s45, s45, s46')
    k('s_mul_i32 s46, s44, 56'); k('s_add_u32 s45, s45, s46')
    k('s_mul_i32 s47, s44, 28'); k('s_mul_i32 s46, s3, 7'); k('s_add_u32 s47, s47, s46')
    k('s_mul_i32 s47, s47, 3'); k('s_add_u32 s47, s47, s43'); k('s_lshl_b32 s47, s47, 10')
    k(f's_add_u32 s47, s47, 0x{WQ:x}')
    wtask(12, 2688, [16*i for i in range(7)], 28, 45, 47, 3072)
    Lv, Lj = k.new_label('pq'), k.new_label('pq')
    k('s_cmp_eq_u32 s43, 2'); k(f's_cbranch_scc1 {Lv}')
    colsum(False, 7)
    k(f's_branch {Lj}')
    k.label(Lv)
    colsum(True, 7)
    k.label(Lj)
    reduce4()
    k('s_lshl_b32 s46, s44, 9'); k('s_lshl_b32 s48, s43, 7'); k('s_add_u32 s46, s46, s48')
    k(f's_add_u32 s46, s46, 0x{CSQ:x}')
    Lv2 = k.new_label('pq')
    k('s_cmp_eq_u32 s43, 2'); k(f's_cbranch_scc1 {Lv2}')
    store_dl(46)
    k('s_endpgm')
    k.label(Lv2)
    k('v_lshlrev_b32 v6, 2, v1')
    k('s_mov_b32 exec_hi, 0')
    k('buffer_store_dword v16, v6, s[4:7], s46 offen')
    k('s_endpgm')

    k.label(L1)
    k('s_sub_u32 s42, s2, 112')
    k(f's_mul_i32 s45, s3, {7*16*3584}')
    k('s_lshl_b32 s46, s42, 6'); k('s_add_u32 s45, s45, s46')
    k('s_mul_i32 s47, s42, 28'); k('s_mul_i32 s46, s3, 7'); k('s_add_u32 s47, s47, s46')
    k('s_lshl_b32 s47, s47, 10'); k(f's_add_u32 s47, s47, 0x{W1:x}')
    wtask(20, 3584, [16*i for i in range(7)], 32, 45, 47, 1024)
    colsum(False, 7)
    reduce4()
    for r in range(16): k(f'v_mul_f32 v{16+r}, {fl(LOG2E)}, v{16+r}')
    k('s_lshl_b32 s46, s42, 8'); k(f's_add_u32 s46, s46, 0x{C1:x}')
    store_dl(46)
    k('v_and_b32 v6, 15, v1')
    k('v_lshrrev_b32 v7, 2, v6'); k('v_lshlrev_b32 v7, 3, v7')
    k('v_and_b32 v6, 3, v6'); k('v_add_u32 v7, v7, v6')
    k('v_lshrrev_b32 v6, 4, v1'); k('v_and_b32 v6, 1, v6'); k('v_lshl_add_u32 v7, v6, 2, v7')
    k('v_lshlrev_b32 v7, 1, v7')
    k('s_lshl_b32 s48, s42, 6')
    k('buffer_load_ushort v8, v7, s[24:27], s48 offen')
    k('s_waitcnt vmcnt(0)')
    k('v_lshlrev_b32 v8, 16, v8')
    k(f'v_mul_f32 v8, {fl(LOG2E)}, v8')
    k('v_lshlrev_b32 v6, 2, v1')
    k('s_mov_b32 exec_hi, 0')
    k('buffer_store_dword v8, v6, s[4:7], s46 offen offset:128')
    k('s_endpgm')

    k.label(L2)
    k('s_sub_u32 s42, s2, 168')
    k('s_lshr_b32 s43, s42, 2'); k('s_and_b32 s44, s42, 3')
    k('s_mul_i32 s46, s44, 28'); k('s_mul_i32 s48, s3, 7'); k('s_add_u32 s46, s46, s48')
    k(f's_mul_i32 s45, s46, {16*896}')
    k('s_lshl_b32 s48, s43, 6'); k('s_add_u32 s45, s45, s48')
    k('s_mul_i32 s47, s43, 112'); k('s_add_u32 s47, s47, s46'); k('s_lshl_b32 s47, s47, 10')
    k(f's_add_u32 s47, s47, 0x{W2:x}')
    wtask(28, 896, [16*i for i in range(7)], 32, 45, 47, 1024)
    k('s_endpgm')

    k.label(Lo)
    k('s_sub_u32 s42, s2, 224')
    k('s_lshr_b32 s43, s42, 1'); k('s_and_b32 s44, s42, 1')
    k('s_lshl_b32 s46, s44, 3'); k('s_lshl_b32 s48, s3, 1'); k('s_add_u32 s46, s46, s48')
    k(f's_mul_i32 s45, s46, {28*896}')
    k('s_lshl_b32 s48, s43, 6'); k('s_add_u32 s45, s45, s48')
    k('s_lshl_b32 s47, s43, 5'); k('s_lshl_b32 s48, s46, 1'); k('s_add_u32 s47, s47, s48')
    k('s_lshl_b32 s47, s47, 10'); k(f's_add_u32 s47, s47, 0x{WO:x}')
    wtask(16, 896, [0, 16, 28, 44], 32, 45, 47, 1024, mask_odd=True)
    epilogue(k)
    return k

def lane_setup(k):
    k('v_lshrrev_b32 v3, 5, v1')
    k('v_and_b32 v4, 31, v1')
    k('v_lshlrev_b32 v5, 4, v1')

def stats_load(k, s_off, vb, vaddr, tag='st'):
    for i in range(7):
        k.vmem(f'buffer_load_dwordx2 {vr(vb+2*i,2)}, v{vaddr}, s[4:7], s{s_off} offen offset:{i*256}', tag)

def stats_addr(k, vaddr):
    k(f'v_mul_u32_u24 v{vaddr}, {7*256}, v3')
    k(f'v_lshl_add_u32 v{vaddr}, v4, 3, v{vaddr}')

def stats_finish(k, vb, v_rstd, v_mr, tmp):
    for i in range(1, 7):
        k(f'v_add_f32 v{vb}, v{vb}, v{vb+2*i}')
        k(f'v_add_f32 v{vb+1}, v{vb+1}, v{vb+2*i+1}')
    half_sum(k, vb, tmp)
    half_sum(k, vb+1, tmp)
    k(f'v_mul_f32 v{vb}, {fl(1/448)}, v{vb}')
    k(f'v_mul_f32 v{vb+1}, {fl(1/448)}, v{vb+1}')
    k(f'v_fma_f32 v{vb+1}, -v{vb}, v{vb}, v{vb+1}')
    k(f'v_max_f32 v{vb+1}, 0, v{vb+1}')
    k(f'v_add_f32 v{vb+1}, {fl(1e-5)}, v{vb+1}')
    k(f'v_rsq_f32 v{v_rstd}, v{vb+1}')
    k.nop(1)
    k(f'v_mul_f32 v{v_mr}, v{vb}, v{v_rstd}')
    k(f'v_sub_f32 v{v_mr}, 0, v{v_mr}')

def gen_qkv(name, xin, stin):
    LW, LCS, LSC = 0, 86016, 86528
    k = K(name, 256, 256, LSC + 1024, 224)
    prologue(k, [(72, 4, WS_BYTES)])
    lane_setup(k)
    XF, WB, AQ, AK, AV, SB = 16, 128, 160, 176, 192, 208
    k('s_and_b32 s8, s2, 7'); k('s_lshr_b32 s9, s2, 3')
    k('s_and_b32 s10, s9, 1'); k('s_lshl_b32 s11, s8, 1'); k('s_add_u32 s11, s11, s10')
    k('s_lshr_b32 s12, s9, 1')
    k('s_lshl_b32 s13, s11, 2'); k('s_add_u32 s13, s13, s3')
    k(f's_mul_i32 s14, s13, {28*1024}'); k(f's_add_u32 s14, s14, 0x{xin:x}')
    k(f's_mul_i32 s15, s12, 86016'); k(f's_add_u32 s15, s15, 0x{WQ:x}')
    k('s_lshl_b32 s16, s3, 10'); k('s_add_u32 s15, s15, s16')
    k(f's_mul_i32 s17, s13, {14*256}'); k(f's_add_u32 s17, s17, 0x{stin:x}')
    k('s_lshl_b32 s18, s12, 9'); k(f's_add_u32 s18, s18, 0x{CSQ:x}')
    stats_addr(k, 6)
    stages = [(0, 8), (8, 16), (16, 24), (24, 28)]
    pi = 0
    for si, (a, b) in enumerate(stages):
        for i in range((b - a) * 3 // 4):
            k(f's_add_u32 m0, s16, {4096*pi}')
            k(f's_add_u32 s20, s15, {4096*pi}')
            k.vmem('buffer_load_dwordx4 v5, s[4:7], s20 offen lds', f'W{si}')
            pi += 1
        for ks in range(a, b):
            if ks % 4 == 0: k(f's_add_u32 s21, s14, {ks*1024}')
            k.vmem(f'buffer_load_dwordx4 {vr(XF+4*ks)}, v5, s[4:7], s21 offen offset:{(ks%4)*1024}', f'x{ks}')
        if si == 0:
            k(f's_mov_b32 m0, {LCS}')
            k('s_mov_b32 exec_hi, 0')
            k.vmem('buffer_load_dwordx4 v5, s[4:7], s18 offen lds', 'cs')
            k('s_mov_b32 exec_hi, -1')
            stats_load(k, 17, SB, 6)
    def wread(ks):
        b = WB + 12 * (ks % 2)
        for i in range(3):
            k.ds(f'ds_read_b128 {vr(b+4*i)}, v5 offset:{(ks*3+i)*1024 if (ks*3+i)*1024 < 65536 else 0}' if (ks*3+i)*1024 < 65536
                 else f'ds_read_b128 {vr(b+4*i)}, v7 offset:{(ks*3+i)*1024-65536}', f'w{ks}')
    k('v_add_u32 v7, 0x10000, v5')
    k.stamp(2)
    k.vm_wait('W0'); k('s_barrier')
    k.stamp(3)
    wread(0)
    stage_of = {ks: si for si, (a, b) in enumerate(stages) for ks in range(a, b)}
    for ks in range(28):
        if ks + 1 < 28:
            if stage_of[ks+1] != stage_of[ks]:
                k.vm_wait(f'W{stage_of[ks+1]}'); k('s_barrier')
            wread(ks + 1)
        k.vm_wait(f'x{ks}')
        k.lg_wait(f'w{ks}')
        b = WB + 12 * (ks % 2)
        x = vr(XF + 4*ks)
        c = lambda A: '0' if ks == 0 else vr(A, 16)
        k(f'v_mfma_f32_32x32x16_bf16 {vr(AQ,16)}, {vr(b)}, {x}, {c(AQ)}')
        k(f'v_mfma_f32_32x32x16_bf16 {vr(AK,16)}, {vr(b+4)}, {x}, {c(AK)}')
        k(f'v_mfma_f32_32x32x16_bf16 {vr(AV,16)}, {x}, {vr(b+8)}, {c(AV)}')
    k.stamp(4)
    k.vm_wait()
    RS, MR = 8, 9
    stats_finish(k, SB, RS, MR, 10)
    k('s_lshl_b32 s22, s3, 8'); k(f's_add_u32 s22, s22, {LSC}')
    k('v_lshlrev_b32 v10, 3, v4'); k('v_add_u32 v10, s22, v10')
    k(f'v_mov_b32 v12, v{RS}'); k(f'v_mov_b32 v13, v{MR}')
    k('ds_write_b64 v10, v[12:13]')
    k('v_lshlrev_b32 v11, 6, v3'); k(f'v_add_u32 v11, {LCS}, v11')
    for i in range(4): k(f'ds_read_b128 {vr(16+4*i)}, v11 offset:{16*i}')
    for i in range(4): k(f'ds_read_b128 {vr(32+4*i)}, v11 offset:{128+16*i}')
    k('v_lshlrev_b32 v11, 2, v4'); k(f'v_add_u32 v11, {LCS+256}, v11')
    k('ds_read_b32 v48, v11')
    k('s_waitcnt lgkmcnt(0)')
    k('v_lshlrev_b32 v11, 5, v3'); k('v_add_u32 v11, s22, v11')
    for g in range(4):
        k(f'ds_read_b128 {vr(64+8*g)}, v11 offset:{64*g}')
        k(f'ds_read_b128 {vr(64+8*g+4)}, v11 offset:{64*g+16}')
    SC = (28 ** -0.5) * LOG2E
    k(f'v_mul_f32 v14, {fl(SC)}, v{RS}'); k(f'v_mul_f32 v15, {fl(SC)}, v{MR}')
    k('v_mov_b32 v12, 0'); k('v_mov_b32 v13, 0')
    for r in range(16):
        k(f'v_mul_f32 v{16+r}, v15, v{16+r}')
        k(f'v_fma_f32 v{AQ+r}, v14, v{AQ+r}, v{16+r}')
        k(f'v_fmac_f32 v12, v{AQ+r}, v{AQ+r}')
    for r in range(16):
        k(f'v_mul_f32 v{32+r}, v{MR}, v{32+r}')
        k(f'v_fma_f32 v{AK+r}, v{RS}, v{AK+r}, v{32+r}')
        k(f'v_fmac_f32 v13, v{AK+r}, v{AK+r}')
    half_sum(k, 12, 10)
    half_sum(k, 13, 10)
    k('v_sqrt_f32 v12, v12')
    k.nop(1)
    k('s_mov_b32 exec_lo, 0')
    k(f'v_mov_b32 v{AQ+14}, v12')
    k(f'v_mov_b32 v{AK+12}, 1.0'); k(f'v_mov_b32 v{AK+13}, 1.0')
    k('s_mov_b32 exec_lo, -1')
    wave_max(k, 13, 10)
    k('v_cmp_eq_u32 vcc, 28, v4')
    k('v_mov_b32 v49, 0'); k('v_mov_b32 v50, 1.0')
    k.nop(1)
    k('v_cndmask_b32 v49, v49, v50, vcc')
    k('s_waitcnt lgkmcnt(0)')
    for r in range(16):
        g, i = r >> 2, r & 3
        rs, mr = 64 + 8*g + 2*i, 64 + 8*g + 2*i + 1
        k(f'v_fma_f32 v{mr}, v{mr}, v48, v49')
        k(f'v_fma_f32 v{AV+r}, v{rs}, v{AV+r}, v{mr}')
    for A, d in ((AQ, 16), (AK, 24), (AV, 32)):
        for i in range(8):
            k(f'v_cvt_pk_bf16_f32 v{d+i}, v{A+2*i}, v{A+2*i+1}')
    k.stamp(5)
    k('s_lshl_b32 s23, s12, 6'); k('s_add_u32 s23, s23, s13')
    k('s_lshl_b32 s24, s23, 11'); k(f's_add_u32 s24, s24, 0x{QF:x}')
    k('s_lshl_b32 s25, s23, 12'); k(f's_add_u32 s25, s25, 0x{KVF:x}')
    k('s_lshl_b32 s26, s23, 2'); k(f's_add_u32 s26, s26, 0x{KN:x}')
    k(f'buffer_store_dwordx4 v[16:19], v5, s[4:7], s24 offen')
    k(f'buffer_store_dwordx4 v[20:23], v5, s[4:7], s24 offen offset:1024')
    for i in range(4):
        k(f'buffer_store_dwordx4 {vr(24+4*i)}, v5, s[4:7], s25 offen offset:{1024*i}')
    k('v_mov_b32 v10, 0')
    k('s_mov_b32 exec_lo, 0'); k('s_mov_b32 exec_hi, 0x80000000')
    k('buffer_store_dword v13, v10, s[4:7], s26 offen')
    epilogue(k)
    return k

def gen_attn(name):
    LFLAG = 65536
    LM = 65536 + 64
    k = K(name, 512, 256, LM + 2048, 192)
    prologue(k, [(72, 4, WS_BYTES)])
    lane_setup(k)
    Q, KV, S, P, O = 16, 32, 96, 128, 144
    D = 4
    C = 176
    k('s_and_b32 s8, s2, 7'); k('s_lshr_b32 s9, s2, 3')
    k('s_and_b32 s10, s9, 1'); k('s_lshl_b32 s12, s8, 1'); k('s_add_u32 s12, s12, s10')
    k('s_lshr_b32 s11, s9, 1')
    k('s_and_b32 s13, s3, 1')
    k('s_lshr_b32 s14, s3, 1')
    k('s_lshl_b32 s15, s11, 2'); k('s_lshl_b32 s16, s13, 1'); k('s_add_u32 s15, s15, s16')
    k('s_lshl_b32 s17, s12, 6')
    k('s_add_u32 s18, s17, s15'); k('s_lshl_b32 s18, s18, 11'); k(f's_add_u32 s18, s18, 0x{QF:x}')
    k('s_lshl_b32 s19, s14, 4'); k('s_add_u32 s19, s19, s17'); k('s_lshl_b32 s19, s19, 12')
    k(f's_add_u32 s19, s19, 0x{KVF:x}')
    k('s_lshl_b32 s20, s17, 2'); k(f's_add_u32 s20, s20, 0x{KN:x}')
    k('v_lshlrev_b32 v6, 2, v1')
    k.vmem('buffer_load_dword v7, v6, s[4:7], s20 offen', 'kn')
    for i in range(4):
        k.vmem(f'buffer_load_dwordx4 {vr(Q+4*i)}, v5, s[4:7], s18 offen offset:{1024*i}', 'q')
    k('v_mov_b32 v8, 0'); k(f'v_mov_b32 v9, {LFLAG}')
    k('ds_write_b32 v9, v8')
    k('s_mov_b32 s30, 0')
    def kvload(kb):
        b = KV + 16 * (kb % D)
        k(f's_add_u32 s21, s19, {kb*4096}')
        for i in range(4):
            k.vmem(f'buffer_load_dwordx4 {vr(b+4*i)}, v5, s[4:7], s21 offen offset:{1024*i}', f'k{kb}' if i < 2 else f'v{kb}')
    for kb in range(D): kvload(kb)
    k.stamp(2)
    k.vm_wait('kn')
    wave_max(k, 7, 8)
    k.nop(1)
    k('v_readlane_b32 s22, v7, 63')
    k.nop(2)
    k('v_sqrt_f32 v7, s22')
    k.nop(1)
    k(f'v_mul_f32 v7, {fl(1.0+1/64)}, v7')
    k.vm_wait('q')
    def set_shift(q, cv):
        d = Q + 8*q + 4 + 2
        k(f'v_cvt_pk_bf16_f32 v8, v{cv}, v{cv}')
        k('v_and_b32 v8, 0xffff0000, v8')
        k(f'v_sub_f32 v9, v{cv}, v8')
        k(f'v_cvt_pk_bf16_f32 v10, v9, v9')
        k('v_and_b32 v10, 0xffff0000, v10')
        k(f'v_add_f32 v{cv}, v8, v10')
        k('v_cvt_pk_bf16_f32 v9, -v8, -v10')
        k('s_mov_b32 exec_lo, 0')
        k(f'v_mov_b32 v{d}, v9')
        k('s_mov_b32 exec_lo, -1')
    for q in range(2):
        d3 = Q + 8*q + 4 + 3
        k(f'v_lshlrev_b32 v{C+q}, 16, v{d3}')
        k(f'v_mul_f32 v{C+q}, v{C+q}, v7')
        set_shift(q, C+q)
    MAIN = k.new_label('main')
    k.label(MAIN)
    NT = 32
    def smf(n, which):
        kb, q = n >> 1, n & 1
        b = KV + 16*(kb % D); s = S + 16*(n % 2)
        if which == 0: return f'v_mfma_f32_32x32x16_bf16 {vr(s,16)}, {vr(b)}, {vr(Q+8*q)}, 0'
        return f'v_mfma_f32_32x32x16_bf16 {vr(s,16)}, {vr(b+4)}, {vr(Q+8*q+4)}, {vr(s,16)}'
    def pmf(n, which):
        kb, q = n >> 1, n & 1
        b = KV + 16*(kb % D) + 8; p = P + 8*(n % 2); o = O + 16*q
        c = '0' if (n < 2 and which == 0) else vr(o, 16)
        return f'v_mfma_f32_32x32x16_bf16 {vr(o,16)}, {vr(b+4*which)}, {vr(p+4*which)}, {c}'
    k.vm_wait('k0')
    k.stamp(3)
    k.nop(2)
    k(smf(0, 0)); k(smf(0, 1))
    k.nop(16)
    for n in range(NT + 1):
        kb, q = n >> 1, n & 1
        valu = []
        if n < NT:
            s = S + 16*(n % 2); p = P + 8*(n % 2)
            valu = [f'v_exp_f32 v{s+r}, v{s+r}' for r in range(16)]
            valu += [f'v_cvt_pk_bf16_f32 v{p+i}, v{s+2*i}, v{s+2*i+1}' for i in range(8)]
        mf = []
        if n + 1 < NT:
            if (n + 1) % 2 == 0: k.vm_wait(f'k{(n+1)>>1}')
            mf += [smf(n+1, 0), smf(n+1, 1)]
        if n >= 1:
            k.vm_wait(f'v{(n-1)>>1}')
            mf += [pmf(n-1, 0), pmf(n-1, 1)]
        if n == NT:
            k.nop(2)
        pos = [0, 6, 12, 18] if len(mf) == 4 else ([0, 6] if n == 0 else [12, 18])
        mi = 0
        if not valu:
            for m in mf: k(m)
        else:
            for i, v in enumerate(valu):
                while mi < len(mf) and pos[mi] == i:
                    k(mf[mi]); mi += 1
                k(v)
        if n >= 1 and (n - 1) % 2 == 1:
            kbn = ((n - 1) >> 1) + D
            if kbn < 16: kvload(kbn)
    k.nop(16)
    k.stamp(4)
    k('s_lshl_b32 s23, s3, 13')
    k('v_add_u32 v8, s23, v5')
    for q in range(2):
        for i in range(4):
            k(f'ds_write_b128 v8, {vr(O+16*q+4*i)} offset:{q*4096+i*1024}')
    k('s_waitcnt lgkmcnt(0)')
    k('s_barrier')
    k('s_lshr_b32 s24, s14, 1'); k('s_and_b32 s25, s14, 1')
    k('s_lshl_b32 s26, s13, 13'); k('s_lshl_b32 s27, s24, 12'); k('s_add_u32 s26, s26, s27')
    k('s_lshl_b32 s27, s25, 11'); k('s_add_u32 s27, s27, s26')
    k('v_add_u32 v8, s27, v5')
    k('v_lshlrev_b32 v9, 4, v4'); k(f'v_add_u32 v9, {3*1024 + 32*16}, v9'); k('v_add_u32 v9, s26, v9')
    for j in range(4):
        k(f'ds_read_b128 {vr(32+8*j)}, v8 offset:{j*16384}')
        k(f'ds_read_b128 {vr(36+8*j)}, v8 offset:{j*16384+1024}')
        k(f'ds_read_b32 v{64+j}, v9 offset:{j*16384}')
    k('s_waitcnt lgkmcnt(0)')
    for j in range(1, 4):
        for r in range(8): k(f'v_add_f32 v{32+r}, v{32+r}, v{32+8*j+r}')
        k(f'v_add_f32 v64, v64, v{64+j}')
    k('v_rcp_f32 v65, v64')
    k(f'v_cmp_nge_f32 vcc, v64, {fl(2.0**-80)}' if False else f'v_mov_b32 v66, {fl(2.0**-80)}')
    k('v_cmp_nge_f32 vcc, v64, v66')
    k(f'v_mov_b32 v66, {fl(2.0**100)}')
    k('v_cmp_nle_f32 s[28:29], v64, v66')
    for r in range(8): k(f'v_mul_f32 v{32+r}, v{32+r}, v65')
    for i in range(4): k(f'v_cvt_pk_bf16_f32 v{40+i}, v{32+2*i}, v{32+2*i+1}')
    k('s_add_u32 s31, s15, s24'); k('s_lshl_b32 s31, s31, 5'); k('s_lshl_b32 s32, s12, 1')
    k('s_add_u32 s31, s31, s32'); k('s_add_u32 s31, s31, s25'); k('s_lshl_b32 s31, s31, 10')
    k(f's_add_u32 s31, s31, 0x{OF:x}')
    k.stamp(5)
    k('buffer_store_dwordx4 v[40:43], v5, s[4:7], s31 offen')
    k('s_or_b64 vcc, vcc, s[28:29]')
    Lok = k.new_label('ok')
    k(f's_cbranch_vccz {Lok}')
    k('v_mov_b32 v8, 1'); k(f'v_mov_b32 v9, {LFLAG}')
    k('ds_write_b32 v9, v8')
    k.label(Lok)
    k('s_waitcnt lgkmcnt(0)')
    k('s_barrier')
    k(f'v_mov_b32 v9, {LFLAG}')
    k('ds_read_b32 v8, v9')
    k('s_waitcnt lgkmcnt(0)')
    k('s_nop 0')
    k('v_readfirstlane_b32 s33, v8')
    k('s_cmp_eq_u32 s33, 0')
    k(f's_cbranch_scc1 {k.name}_fin')
    k('s_cmp_lg_u32 s30, 0')
    k(f's_cbranch_scc1 {k.name}_fin')
    k('s_mov_b32 s30, 1')
    k('s_waitcnt vmcnt(0)')
    k(f'v_mov_b32 v66, 0xff800000'); k(f'v_mov_b32 v67, 0xff800000')
    k('s_mov_b32 s34, 0')
    LP = k.new_label('mx')
    k.label(LP)
    k('s_lshl_b32 s35, s34, 12'); k('s_add_u32 s35, s35, s19')
    k(f'buffer_load_dwordx4 {vr(KV)}, v5, s[4:7], s35 offen')
    k(f'buffer_load_dwordx4 {vr(KV+4)}, v5, s[4:7], s35 offen offset:1024')
    k('s_waitcnt vmcnt(0)')
    for q in range(2):
        s = S + 16*q
        k(f'v_mfma_f32_32x32x16_bf16 {vr(s,16)}, {vr(KV)}, {vr(Q+8*q)}, 0')
        k(f'v_mfma_f32_32x32x16_bf16 {vr(s,16)}, {vr(KV+4)}, {vr(Q+8*q+4)}, {vr(s,16)}')
    k.nop(20)
    for q in range(2):
        s = S + 16*q
        for r in range(0, 16, 2):
            k(f'v_max3_f32 v{66+q}, v{66+q}, v{s+r}, v{s+r+1}')
    k('s_add_u32 s34, s34, 1'); k('s_cmp_lt_u32 s34, 16'); k(f's_cbranch_scc1 {LP}')
    for q in range(2):
        k(f'v_mov_b32 v68, v{66+q}')
        k.nop(2)
        k(f'v_permlane32_swap_b32 v{66+q}, v68')
        k.nop(1)
        k(f'v_max_f32 v{66+q}, v{66+q}, v68')
    k('s_lshl_b32 s35, s3, 8'); k(f's_add_u32 s35, s35, {LM}')
    k('v_lshlrev_b32 v8, 2, v4'); k('v_add_u32 v9, s35, v8')
    k('ds_write_b32 v9, v66'); k('ds_write_b32 v9, v67 offset:128')
    k('s_waitcnt lgkmcnt(0)')
    k('s_barrier')
    k('s_lshl_b32 s35, s13, 8'); k(f's_add_u32 s35, s35, {LM}')
    k('v_add_u32 v9, s35, v8')
    for j in range(4):
        k(f'ds_read_b32 v{32+2*j}, v9 offset:{j*512}')
        k(f'ds_read_b32 v{33+2*j}, v9 offset:{j*512+128}')
    k('s_waitcnt lgkmcnt(0)')
    for q in range(2):
        k(f'v_max3_f32 v{32+q}, v{32+q}, v{34+q}, v{36+q}')
        k(f'v_max_f32 v{32+q}, v{32+q}, v{38+q}')
        k(f'v_add_f32 v{C+q}, v{C+q}, v{32+q}')
        set_shift(q, C+q)
    k('s_barrier')
    k.vm = []
    for kb in range(D): kvload(kb)
    k(f's_branch {MAIN}')
    k.label(k.name + '_fin')
    epilogue(k)
    return k

def gen_gemmr(name, KS, abase, wbase, xold, xnew, stnew, final, DP):
    kw = KS // 4
    k = K(name, 256, 224, 49152, 256 + 64, accum=256)
    ptrs = [(72, 4, WS_BYTES)]
    if final: ptrs.append((56, 8, 2048*448*2))
    prologue(k, ptrs)
    lane_setup(k)
    R = 16
    RES = 240
    k('s_and_b32 s12, s2, 7'); k('s_lshr_b32 s13, s2, 3')
    k('s_and_b32 s14, s13, 3'); k('s_lshl_b32 s15, s12, 2'); k('s_add_u32 s15, s15, s14')
    k('s_lshr_b32 s16, s13, 2')
    k(f's_mul_i32 s17, s3, {kw}')
    k(f's_mul_i32 s18, s16, {2*KS}'); k('s_add_u32 s18, s18, s17'); k('s_lshl_b32 s18, s18, 10')
    k(f's_add_u32 s18, s18, 0x{wbase:x}'); k(f's_add_u32 s19, s18, {KS*1024}')
    k(f's_mul_i32 s20, s15, {2*KS}'); k('s_add_u32 s20, s20, s17'); k('s_lshl_b32 s20, s20, 10')
    k(f's_add_u32 s20, s20, 0x{abase:x}'); k(f's_add_u32 s21, s20, {KS*1024}')
    k('s_lshr_b32 s22, s3, 1'); k('s_and_b32 s23, s3, 1')
    k('s_lshl_b32 s24, s15, 1'); k('s_add_u32 s24, s24, s22')
    k('s_lshl_b32 s25, s16, 1'); k('s_add_u32 s25, s25, s23')
    k('s_mul_i32 s26, s24, 28'); k('s_lshl_b32 s27, s25, 1'); k('s_add_u32 s26, s26, s27')
    k('s_lshl_b32 s26, s26, 10')
    def load(ks):
        b = R + 16 * (ks % DP)
        if ks % 4 == 0 or ks == DP:
            base = (ks // 4) * 4096
            for i in range(4): k(f's_add_u32 s{28+i}, s{18+i}, {base}')
        for i in range(4):
            k.vmem(f'buffer_load_dwordx4 {vr(b+4*i)}, v5, s[4:7], s{28+i} offen offset:{(ks%4)*1024}', f'k{ks}')
    n0 = min(DP, kw)
    for ks in range(n0): load(ks)
    k(f's_add_u32 s32, s26, 0x{xold:x}')
    k.vmem(f'buffer_load_dwordx4 {vr(RES)}, v5, s[4:7], s32 offen', 'res')
    k.vmem(f'buffer_load_dwordx4 {vr(RES+4)}, v5, s[4:7], s32 offen offset:1024', 'res')
    k.stamp(2)
    for ks in range(kw):
        k.vm_wait(f'k{ks}')
        if ks == 0: k.stamp(3)
        b = R + 16 * (ks % DP)
        for m in range(2):
            for n in range(2):
                a = (2*m + n) * 16
                c = '0' if ks == 0 else ar(a, 16)
                k(f'v_mfma_f32_32x32x16_bf16 {ar(a,16)}, {vr(b+4*n)}, {vr(b+8+4*m)}, {c}')
        if ks + DP < kw:
            load(ks + DP)
    k.nop(16)
    k.stamp(4)
    Ls = [k.new_label('red') for _ in range(4)]; Lj = k.new_label('red')
    for w in range(1, 4):
        k(f's_cmp_eq_u32 s3, {w}'); k(f's_cbranch_scc1 {Ls[w]}')
    for w in range(4):
        k.label(Ls[w])
        for d in range(1, 4):
            dst = (w + d) & 3
            slot = 3 - d if False else (w - dst - 1) % 4
            assert slot < 3
            for i in range(4):
                k(f'ds_write_b128 v5, {ar(dst*16+4*i)} offset:{dst*12288+slot*4096+i*1024}')
        for r in range(16): k(f'v_accvgpr_read_b32 v{16+r}, a{w*16+r}')
        if w < 3: k(f's_branch {Lj}')
    k.label(Lj)
    k('s_waitcnt lgkmcnt(0)')
    k('s_barrier')
    k('s_mul_i32 s33, s3, 12288'); k('v_add_u32 v6, s33, v5')
    for s in range(3):
        for i in range(4):
            k(f'ds_read_b128 {vr(32+16*s+4*i)}, v6 offset:{s*4096+i*1024}')
    k.vm_wait()
    for i in range(8):
        k(f'v_lshlrev_b32 v{80+2*i}, 16, v{RES+i}')
        k(f'v_and_b32 v{80+2*i+1}, 0xffff0000, v{RES+i}')
    for r in range(16): k(f'v_add_f32 v{16+r}, v{16+r}, v{80+r}')
    for s in range(3):
        k(f's_waitcnt lgkmcnt({8-4*s})')
        for r in range(16): k(f'v_add_f32 v{16+r}, v{16+r}, v{32+16*s+r}')
    k.stamp(5)
    for i in range(8): k(f'v_cvt_pk_bf16_f32 v{96+i}, v{16+2*i}, v{16+2*i+1}')
    if not final:
        k(f's_add_u32 s32, s26, 0x{xnew:x}')
        k('buffer_store_dwordx4 v[96:99], v5, s[4:7], s32 offen')
        k('buffer_store_dwordx4 v[100:103], v5, s[4:7], s32 offen offset:1024')
        k('v_mov_b32 v8, v16'); k('v_mul_f32 v9, v16, v16')
        for r in range(1, 16):
            k(f'v_add_f32 v8, v8, v{16+r}'); k(f'v_fmac_f32 v9, v{16+r}, v{16+r}')
        half_sum(k, 8, 10); half_sum(k, 9, 10)
        k('s_mul_i32 s33, s24, 14'); k('s_add_u32 s33, s33, s25'); k('s_lshl_b32 s33, s33, 8')
        k(f's_add_u32 s33, s33, 0x{stnew:x}')
        k('v_lshlrev_b32 v7, 3, v4')
        k('s_mov_b32 exec_hi, 0')
        k('buffer_store_dwordx2 v[8:9], v7, s[4:7], s33 offen')
    else:
        k.nop(2)
        for e in range(2):
            k(f'v_permlane32_swap_b32 v{96+4*e}, v{96+4*e+2}')
            k(f'v_permlane32_swap_b32 v{96+4*e+1}, v{96+4*e+3}')
        k('v_mul_u32_u24 v7, 896, v4'); k('v_lshl_add_u32 v7, v3, 4, v7')
        k(f's_mul_i32 s33, s24, {32*896}'); k('s_lshl_b32 s34, s25, 6'); k('s_add_u32 s33, s33, s34')
        k('buffer_store_dwordx4 v[96:99], v7, s[8:11], s33 offen')
        k('buffer_store_dwordx4 v[100:103], v7, s[8:11], s33 offen offset:32')
    epilogue(k)
    return k

def mish_pair(u0, u1, t0, t1, dst):
    L = []
    L += [f'v_exp_f32 v{t0}, v{u0}', f'v_exp_f32 v{t1}, v{u1}']
    L += [f'v_add_f32 v{t0}, 1.0, v{t0}', f'v_add_f32 v{t1}, 1.0, v{t1}']
    L += [f'v_fma_f32 v{t0}, v{t0}, v{t0}, 1.0', f'v_fma_f32 v{t1}, v{t1}, v{t1}, 1.0']
    L += [f'v_rcp_f32 v{t0}, v{t0}', f'v_rcp_f32 v{t1}, v{t1}']
    return L

def gen_ffn1(name, xin, stin):
    LC = 114688
    k = K(name, 256, 224, LC + 1024, 256)
    prologue(k, [(72, 4, WS_BYTES)])
    lane_setup(k)
    XF, WB, AC, SB = 16, 128, 160, 224
    k('s_and_b32 s8, s2, 7'); k('s_lshr_b32 s9, s2, 3')
    k('s_and_b32 s10, s9, 1'); k('s_lshl_b32 s11, s8, 1'); k('s_add_u32 s11, s11, s10')
    k('s_lshr_b32 s12, s9, 1')
    k('s_lshl_b32 s13, s11, 2'); k('s_add_u32 s13, s13, s3')
    k(f's_mul_i32 s14, s13, {28*1024}'); k(f's_add_u32 s14, s14, 0x{xin:x}')
    k('s_lshl_b32 s15, s12, 2'); k('s_add_u32 s15, s15, s3'); k(f's_mul_i32 s15, s15, {28*1024}')
    k(f's_add_u32 s15, s15, 0x{W1:x}')
    k('s_lshl_b32 s16, s3, 10')
    k(f's_mul_i32 s17, s13, {14*256}'); k(f's_add_u32 s17, s17, 0x{stin:x}')
    k('s_lshl_b32 s18, s12, 10'); k(f's_add_u32 s18, s18, 0x{C1:x}')
    stats_addr(k, 6)
    stages = [(0, 4), (4, 12), (12, 20), (20, 28)]
    for si, (a, b) in enumerate(stages):
        for ks in range(a, b):
            k(f's_add_u32 m0, s16, {4096*ks}')
            k(f's_add_u32 s20, s15, {1024*ks}')
            k.vmem('buffer_load_dwordx4 v5, s[4:7], s20 offen lds', f'W{si}')
        for ks in range(a, b):
            if ks % 4 == 0: k(f's_add_u32 s21, s14, {ks*1024}')
            k.vmem(f'buffer_load_dwordx4 {vr(XF+4*ks)}, v5, s[4:7], s21 offen offset:{(ks%4)*1024}', f'x{ks}')
    def wread(ks):
        b = WB + 16 * (ks % 2)
        for i in range(4):
            off = (ks*4 + i) * 1024
            if off < 65536: k.ds(f'ds_read_b128 {vr(b+4*i)}, v5 offset:{off}', f'w{ks}')
            else: k.ds(f'ds_read_b128 {vr(b+4*i)}, v7 offset:{off-65536}', f'w{ks}')
    k('v_add_u32 v7, 0x10000, v5')
    k.stamp(2)
    k.vm_wait('W0'); k('s_barrier')
    k.stamp(3)
    k(f's_mov_b32 m0, {LC}')
    k('s_nop 0')
    k.vmem('buffer_load_dwordx4 v5, s[4:7], s18 offen lds', 'cs')
    stats_load(k, 17, SB, 6)
    wread(0)
    stage_of = {ks: si for si, (a, b) in enumerate(stages) for ks in range(a, b)}
    for ks in range(28):
        if ks + 1 < 28:
            if stage_of[ks+1] != stage_of[ks]:
                k.vm_wait(f'W{stage_of[ks+1]}'); k('s_barrier')
            wread(ks + 1)
        k.vm_wait(f'x{ks}')
        k.lg_wait(f'w{ks}')
        b = WB + 16 * (ks % 2)
        for n in range(4):
            c = '0' if ks == 0 else vr(AC+16*n, 16)
            k(f'v_mfma_f32_32x32x16_bf16 {vr(AC+16*n,16)}, {vr(b+4*n)}, {vr(XF+4*ks)}, {c}')
    k.stamp(4)
    k.vm_wait(); k('s_barrier')
    RS, MR = 8, 9
    stats_finish(k, SB, RS, MR, 10)
    k(f'v_mul_f32 v{RS}, {fl(LOG2E)}, v{RS}')
    k('v_lshlrev_b32 v11, 6, v3'); k(f'v_add_u32 v11, {LC}, v11')
    k('s_mul_i32 s23, s13, 112'); k('s_lshl_b32 s24, s12, 3'); k('s_add_u32 s23, s23, s24')
    k('s_lshl_b32 s23, s23, 10'); k(f's_add_u32 s23, s23, 0x{ACT:x}')
    k(f'v_mov_b32 v12, {fl(-2*LN2)}'); k(f'v_mov_b32 v13, {fl(LN2)}')
    for n in range(4):
        CS, BB, T = 16, 32, 48
        for i in range(4): k(f'ds_read_b128 {vr(CS+4*i)}, v11 offset:{n*256+16*i}')
        for i in range(4): k(f'ds_read_b128 {vr(BB+4*i)}, v11 offset:{n*256+128+16*i}')
        k('s_waitcnt lgkmcnt(0)')
        A = AC + 16*n
        for r in range(16): k(f'v_fma_f32 v{CS+r}, v{MR}, v{CS+r}, v{BB+r}')
        for r in range(16): k(f'v_fma_f32 v{A+r}, v{RS}, v{A+r}, v{CS+r}')
        for r in range(16): k(f'v_exp_f32 v{T+r}, v{A+r}')
        for r in range(16): k(f'v_add_f32 v{T+r}, 1.0, v{T+r}')
        for r in range(16): k(f'v_fma_f32 v{T+r}, v{T+r}, v{T+r}, 1.0')
        for r in range(16): k(f'v_rcp_f32 v{T+r}, v{T+r}')
        for r in range(16): k(f'v_fma_f32 v{T+r}, v{T+r}, v12, v13')
        for r in range(16): k(f'v_mul_f32 v{A+r}, v{A+r}, v{T+r}')
        d = 64 + 8*n
        for i in range(8): k(f'v_cvt_pk_bf16_f32 v{d+i}, v{A+2*i}, v{A+2*i+1}')
        k(f's_add_u32 s24, s23, {n*2048}')
        k(f'buffer_store_dwordx4 {vr(d)}, v5, s[4:7], s24 offen')
        k(f'buffer_store_dwordx4 {vr(d+4)}, v5, s[4:7], s24 offen offset:1024')
    epilogue(k)
    return k

def build(path, extra_empty=0):
    ks = [gen_prep(),
          gen_qkv('qkv1_kernel', X[0], ST[0]), gen_attn('attn_kernel'),
          gen_gemmr('wo1_kernel', 32, OF, WO, X[0], X[1], ST[1], False, 8),
          gen_ffn1('ffa1_kernel', X[1], ST[1]),
          gen_gemmr('ffb1_kernel', 112, ACT, W2, X[1], X[2], ST[2], False, 14),
          gen_qkv('qkv2_kernel', X[2], ST[2]),
          gen_gemmr('wo2_kernel', 32, OF, WO, X[2], X[3], ST[3], False, 8),
          gen_ffn1('ffa2_kernel', X[3], ST[3]),
          gen_gemmr('ffb2_kernel', 112, ACT, W2, X[3], None, None, True, 14)]
    launches = [NAME + '_kernel', 'qkv1_kernel', 'attn_kernel', 'wo1_kernel', 'ffa1_kernel', 'ffb1_kernel',
                'qkv2_kernel', 'attn_kernel', 'wo2_kernel', 'ffa2_kernel', 'ffb2_kernel']
    if extra_empty:
        e = K('empty_kernel', 256, 256, 0, 64); e('s_endpgm'); ks.append(e)
        launches += ['empty_kernel'] * extra_empty
    ks[0].name_alias = None
    return emit_file(ks, launches, path)

if __name__ == '__main__':
    out = sys.argv[1] if len(sys.argv) > 1 else 'cdna_kernels/' + NAME + '.s'
    ee = int(sys.argv[2]) if len(sys.argv) > 2 else 0
    build(out, ee)
```

```python
from g2b import *

def wave_roles(k):
    k('s_and_b32 s56, s3, 3'); k('s_lshr_b32 s57, s3, 2')
    k('s_lshl_b32 s58, s50, 1'); k('s_add_u32 s58, s58, s57')
    k('s_lshl_b32 s59, s51, 2'); k('s_add_u32 s59, s59, s56')

def reduce_fin(k, acc, tmp, res, xdst, stdst, final_ok, pre=None):
    k.nop(16)
    k('s_barrier')
    if pre: pre()
    k('s_lshl_b32 s60, s57, 15'); k('s_lshl_b32 s61, s56, 11'); k('s_add_u32 s61, s61, s60'); k('v_add_u32 v8, s61, v5')
    for j in range(4):
        k(f'ds_write_b128 v8, {vr(acc+8*j)} offset:{j*8192}')
        k(f'ds_write_b128 v8, {vr(acc+8*j+4)} offset:{j*8192+1024}')
    k('s_lshl_b32 s61, s56, 13'); k('s_add_u32 s61, s61, s60'); k('v_add_u32 v9, s61, v5')
    k('s_mul_i32 s62, s58, 28'); k('s_add_u32 s62, s62, s59'); k('s_lshl_b32 s62, s62, 10'); k('s_add_u32 s62, s62, s14')
    k(f's_add_u32 s62, s62, 0x{xdst:x}')
    k('s_lshr_b32 s63, s59, 1'); k('s_mul_i32 s60, s58, 14'); k('s_add_u32 s63, s63, s60'); k('s_lshl_b32 s63, s63, 9')
    k('s_and_b32 s60, s59, 1'); k('s_lshl_b32 s60, s60, 3'); k('s_add_u32 s63, s63, s60'); k('s_add_u32 s63, s63, s14')
    k(f's_add_u32 s63, s63, 0x{stdst:x}')
    k('s_waitcnt lgkmcnt(0)'); k('s_barrier')
    for s in range(4):
        k(f'ds_read_b128 {vr(tmp+8*s)}, v9 offset:{s*2048}'); k(f'ds_read_b128 {vr(tmp+8*s+4)}, v9 offset:{s*2048+1024}')
    for i in range(4):
        k(f'v_lshlrev_b32 v{acc+2*i}, 16, v{res+i}'); k(f'v_and_b32 v{acc+2*i+1}, 0xffff0000, v{res+i}')
    for s in range(4):
        k(f's_waitcnt lgkmcnt({6-2*s})')
        for r in range(8): k(f'v_add_f32 v{acc+r}, v{acc+r}, v{tmp+8*s+r}')
    k.lg = []
    for i in range(4): k(f'v_cvt_pk_bf16_f32 v{tmp+i}, v{acc+2*i}, v{acc+2*i+1}')
    Lf, Le = k.new_label('rf'), k.new_label('re')
    if final_ok:
        k('s_cmp_lg_u32 s15, 0'); k(f's_cbranch_scc1 {Lf}')
    k(f'buffer_store_dwordx4 {vr(tmp)}, v5, s[4:7], s62 offen sc1')
    k(f'v_add_f32 v8, v{acc}, v{acc+1}'); k(f'v_mul_f32 v9, v{acc}, v{acc}'); k(f'v_fmac_f32 v9, v{acc+1}, v{acc+1}')
    k(f'v_add_f32 v10, v{acc+2}, v{acc+3}'); k(f'v_mul_f32 v11, v{acc+2}, v{acc+2}'); k(f'v_fmac_f32 v11, v{acc+3}, v{acc+3}')
    for r in range(4, 8, 2):
        k(f'v_add_f32 v8, v8, v{acc+r}'); k(f'v_fmac_f32 v9, v{acc+r}, v{acc+r}')
        k(f'v_add_f32 v10, v10, v{acc+r+1}'); k(f'v_fmac_f32 v11, v{acc+r+1}, v{acc+r+1}')
    k('v_add_f32 v8, v8, v10'); k('v_add_f32 v9, v9, v11')
    half_sum(k, 8, 10); half_sum(k, 9, 10)
    k('v_lshlrev_b32 v10, 4, v4')
    k('s_mov_b32 exec_hi, 0')
    k('buffer_store_dwordx2 v[8:9], v10, s[4:7], s63 offen sc1')
    k('s_mov_b32 exec_hi, -1')
    if final_ok:
        k(f's_branch {Le}')
        k.label(Lf)
        k.nop(2)
        k(f'v_permlane32_swap_b32 v{tmp}, v{tmp+2}'); k(f'v_permlane32_swap_b32 v{tmp+1}, v{tmp+3}')
        k('v_mul_u32_u24 v10, 896, v4'); k('v_lshl_add_u32 v10, v3, 4, v10')
        k(f's_mul_i32 s62, s58, {32*896}'); k('s_lshl_b32 s63, s59, 5'); k('s_add_u32 s62, s62, s63')
        k(f'buffer_store_dwordx4 {vr(tmp)}, v10, s[8:11], s62 offen')
        k.label(Le)

def res_load(k, res, xsrc):
    k('s_mul_i32 s60, s58, 28'); k('s_add_u32 s60, s60, s59'); k('s_lshl_b32 s60, s60, 10'); k('s_add_u32 s60, s60, s14')
    k(f's_add_u32 s60, s60, 0x{xsrc:x}')
    k.vmem(f'buffer_load_dwordx4 {vr(res)}, v5, s[4:7], s60 offen sc1', 'res')

def wo(k):
    OFR, WB, ACC, RES = 16, 48, 128, 80
    wave_roles(k)
    k('s_lshr_b32 s24, s50, 1'); k('s_lshl_b32 s24, s24, 7'); k('s_add_u32 s24, s24, s16'); k(f's_add_u32 s24, s24, {FA}')
    k('s_lshl_b32 s25, s56, 13'); k(f's_add_u32 s25, s25, {LWO}'); k('v_add_u32 v12, s25, v5')
    def wread(i):
        for n in range(2): k.ds(f'ds_read_b128 {vr(WB+8*(i%4)+4*n)}, v12 offset:{n*32768+i*1024}', f'w{i}')
    for i in range(4): wread(i)
    k('s_lshl_b32 s26, s58, 5'); k('s_lshl_b32 s27, s56, 3'); k('s_add_u32 s26, s26, s27'); k('s_lshl_b32 s26, s26, 10')
    k('s_add_u32 s26, s26, s14'); k(f's_add_u32 s26, s26, 0x{OF:x}'); k('s_add_u32 s27, s26, 4096')
    poll(k, 24, 16)
    stamp(k, 8)
    for i in range(8):
        k.vmem(f'buffer_load_dwordx4 {vr(OFR+4*i)}, v5, s[4:7], s{26+i//4} offen offset:{(i%4)*1024} sc1', f'o{i}')
    res_load(k, RES, XIN)
    for i in range(8):
        k.vm_wait(f'o{i}'); k.lg_wait(f'w{i}')
        for n in range(2):
            c = '0' if i == 0 else vr(ACC+16*n, 16)
            k(f'{MF} {vr(ACC+16*n,16)}, {vr(WB+8*(i%4)+4*n)}, {vr(OFR+4*i)}, {c}')
        if i + 4 < 8: wread(i + 4)
    k.vm_wait('res')
    stamp(k, 9)
    reduce_fin(k, ACC, 16, RES, XMID, STM, False)
    k('s_lshl_b32 s24, s50, 7'); k('s_lshl_b32 s25, s51, 2'); k('s_add_u32 s24, s24, s25'); k('s_add_u32 s24, s24, s16')
    k(f's_add_u32 s24, s24, {FW}')
    publish(k, 24)

def w2src(k, sdst):
    k(f's_mul_i32 s{sdst}, s51, 224'); k(f's_mul_i32 s60, s56, 28'); k(f's_add_u32 s{sdst}, s{sdst}, s60')
    k(f's_lshl_b32 s{sdst}, s{sdst}, 10'); k(f's_add_u32 s{sdst}, s{sdst}, 0x{W2:x}')
def w2reg(i, n):
    if i < 6: return 128 + 8*i + 4*n
    assert 18 <= i < 22
    return 96 + 8*(i-18) + 4*n

def ffn1(k):
    A0, A1, T, U, XB = 16, 32, 48, 64, 80
    k('s_lshl_b32 s24, s50, 7'); k('s_add_u32 s24, s24, s16'); k(f's_add_u32 s24, s24, {FW}')
    k('s_lshl_b32 s25, s51, 3'); k('s_add_u32 s25, s25, s3')
    k('s_lshl_b32 s26, s25, 8'); k(f's_add_u32 s26, s26, 0x{C1:x}')
    k('s_lshl_b32 s27, s3, 8'); k(f's_add_u32 m0, s27, {LC1}')
    k('s_mov_b32 exec_lo, 0xffff'); k('s_mov_b32 exec_hi, 0')
    k('buffer_load_dwordx4 v5, s[4:7], s26 offen lds')
    k('s_mov_b32 exec_lo, -1'); k('s_mov_b32 exec_hi, -1')
    k(f's_mul_i32 s28, s50, {56*1024}'); k('s_lshl_b32 s29, s3, 10'); k('s_add_u32 s28, s28, s29')
    k('s_add_u32 s28, s28, s14'); k(f's_add_u32 s28, s28, 0x{XMID:x}')
    w2src(k, 30); k(f's_add_u32 s31, s30, {112*1024}')
    k(f's_mul_i32 s32, s57, {112*1024}'); k('s_add_u32 s32, s32, s30')
    k('s_mul_i32 s33, s56, 24576'); k('s_lshl_b32 s34, s57, 10'); k('s_add_u32 s33, s33, s34'); k(f's_add_u32 s33, s33, {LE}')
    k('s_mul_i32 s35, s56, 12288'); k('s_add_u32 s35, s35, s34')
    poll(k, 24, 7)
    stamp(k, 10)
    for i in range(7):
        k(f's_add_u32 m0, s29, {8192*i}'); k(f's_add_u32 s36, s28, {8192*i}')
        k.vmem('buffer_load_dwordx4 v5, s[4:7], s36 offen sc1 lds', f'xt{i}')
    Ls = k.new_label('fs')
    k('s_cmp_ge_u32 s3, 2'); k(f's_cbranch_scc1 {Ls}')
    k('s_lshl_b32 s37, s50, 1'); k('s_add_u32 s37, s37, s3'); k(f's_mul_i32 s37, s37, {STB}'); k('s_add_u32 s37, s37, s14')
    k(f's_add_u32 s37, s37, 0x{STM:x}')
    sv = list(k.vm)
    stats_load(k, 37, 16, 0)
    k('s_waitcnt vmcnt(0)')
    stats_finish(k, 16, 8, 9, 10)
    k(f'v_mul_f32 v8, {fl(LOG2E)}, v8')
    k('s_lshl_b32 s37, s3, 8'); k(f's_add_u32 s37, s37, {LST}'); k('v_lshlrev_b32 v10, 3, v4'); k('v_add_u32 v10, s37, v10')
    k('ds_write_b64 v10, v[8:9]'); k('s_waitcnt lgkmcnt(0)')
    k.label(Ls)
    k.vm = sv
    def pfe(j):
        if j < 12:
            i = 6 + j
            k(f's_add_u32 m0, s33, {2048*j}'); k(f's_add_u32 s36, s32, {1024*i}')
            k.vmem('buffer_load_dwordx4 v5, s[4:7], s36 offen lds', 'pf')
        elif j < 24:
            i, n = (j - 12) >> 1, (j - 12) & 1
            k(f's_add_u32 s36, s{30+n}, {(i//4)*4096}')
            k.vmem(f'buffer_load_dwordx4 {vr(w2reg(i,n))}, v5, s[4:7], s36 offen offset:{(i%4)*1024}', 'pf')
    def pfl(j):
        if j < 6:
            i = 22 + j
            k(f's_add_u32 m0, s35, {2048*j}'); k(f's_add_u32 s36, s32, {1024*i}')
            k.vmem('buffer_load_dwordx4 v5, s[4:7], s36 offen lds', 'pf')
        else:
            i, n = 18 + ((j - 6) >> 1), (j - 6) & 1
            k(f's_add_u32 s36, s{30+n}, {(i//4)*4096}')
            k.vmem(f'buffer_load_dwordx4 {vr(w2reg(i,n))}, v5, s[4:7], s36 offen offset:{(i%4)*1024}', 'pf')
    def xread(tb, ks): k.ds(ldsr(XB + 4*((tb*28+ks) % 4), (tb*28+ks)*1024), f'x{tb}_{ks}')
    def mish(A, tbl):
        rs, mr = 8 + 2*tbl, 9 + 2*tbl
        L = []
        for i in range(4): L.append(('ds', f'ds_read_b128 {vr(T+4*i)}, v14 offset:{16*i}', 'cs'))
        for i in range(4): L.append(('ds', f'ds_read_b128 {vr(U+4*i)}, v14 offset:{128+16*i}', 'cs'))
        L.append(('lw', 'cs'))
        V = lambda s: L.append(('v', s))
        for r in range(16): V(f'v_fma_f32 v{T+r}, v{mr}, v{T+r}, v{U+r}')
        for r in range(16): V(f'v_fma_f32 v{A+r}, v{rs}, v{A+r}, v{T+r}')
        for r in range(16): V(f'v_exp_f32 v{T+r}, v{A+r}')
        for r in range(16): V(f'v_add_f32 v{T+r}, 1.0, v{T+r}')
        for r in range(16): V(f'v_fma_f32 v{T+r}, v{T+r}, v{T+r}, 1.0')
        for r in range(16): V(f'v_rcp_f32 v{T+r}, v{T+r}')
        for r in range(16): V(f'v_fma_f32 v{T+r}, v{T+r}, v12, v13')
        for r in range(16): V(f'v_mul_f32 v{A+r}, v{A+r}, v{T+r}')
        for i in range(8): V(f'v_cvt_pk_bf16_f32 v{U+i}, v{A+2*i}, v{A+2*i+1}')
        L.append(('st', f'buffer_store_dwordx4 {vr(U)}, v5, s[4:7], s{38+tbl} offen sc1'))
        L.append(('st', f'buffer_store_dwordx4 {vr(U+4)}, v5, s[4:7], s{38+tbl} offen offset:1024 sc1'))
        return L
    def emit(it):
        if it[0] == 'ds': k.ds(it[1], it[2])
        elif it[0] == 'lw': k.lg_wait(it[1])
        elif it[0] == 'st': k.vmem(it[1], 'st')
        else: k(it[1])
    k('s_mul_i32 s38, s50, 224'); k('s_lshl_b32 s39, s25, 1'); k('s_add_u32 s38, s38, s39'); k('s_lshl_b32 s38, s38, 10')
    k('s_add_u32 s38, s38, s14'); k(f's_add_u32 s38, s38, 0x{ACT:x}'); k(f's_add_u32 s39, s38, {112*1024}')
    k(f'v_mov_b32 v12, {fl(-2*LN2)}'); k(f'v_mov_b32 v13, {fl(LN2)}')
    k('v_lshlrev_b32 v14, 6, v3'); k(f'v_add_u32 v14, {LC1}, v14'); k('v_add_u32 v14, s27, v14')
    k.vm_wait('xt3'); k('s_barrier')
    stamp(k, 11)
    for ks in range(3): xread(0, ks)
    for ks in range(28):
        if ks + 3 < 28: xread(0, ks + 3)
        k.lg_wait(f'x0_{ks}')
        k(f'{MF} {vr(A0,16)}, {vr(w1reg(ks))}, {vr(XB+4*(ks%4))}, {"0" if ks == 0 else vr(A0,16)}')
        if ks < 24: pfe(ks)
    k.vm_wait('xt6'); k('s_barrier')
    k('v_lshlrev_b32 v15, 3, v4'); k(f'v_add_u32 v15, {LST}, v15')
    k.ds('ds_read_b64 v[8:9], v15', 's'); k.ds('ds_read_b64 v[10:11], v15 offset:256', 's')
    for ks in range(3): xread(1, ks)
    M = mish(A0, 0); mi = 0
    per = (len(M) + 27) // 28
    for ks in range(28):
        if ks + 3 < 28: xread(1, ks + 3)
        k.lg_wait(f'x1_{ks}')
        k(f'{MF} {vr(A1,16)}, {vr(w1reg(ks))}, {vr(XB+4*((28+ks)%4))}, {"0" if ks == 0 else vr(A1,16)}')
        for _ in range(per):
            if mi < len(M): emit(M[mi]); mi += 1
    while mi < len(M): emit(M[mi]); mi += 1
    stamp(k, 12)
    k('s_barrier')
    for j in range(14): pfl(j)
    for it in mish(A1, 1): emit(it)
    k('s_lshl_b32 s24, s50, 7'); k('s_lshl_b32 s25, s51, 2'); k('s_add_u32 s24, s24, s25'); k('s_add_u32 s24, s24, s16')
    k(f's_add_u32 s24, s24, {F1}')
    publish(k, 24)

def ffn2(k):
    ACC, WB, RES, RING, RD = 16, 48, 80, 176, 20
    k('s_lshl_b32 s24, s50, 7'); k('s_add_u32 s24, s24, s16'); k(f's_add_u32 s24, s24, {F1}')
    k('s_mul_i32 s25, s58, 112'); k('s_mul_i32 s26, s56, 28'); k('s_add_u32 s25, s25, s26'); k('s_lshl_b32 s25, s25, 10')
    k('s_add_u32 s25, s25, s14'); k(f's_add_u32 s25, s25, 0x{ACT:x}')
    k('s_mul_i32 s26, s56, 24576'); k(f's_add_u32 s26, s26, {LE}'); k('v_add_u32 v12, s26, v5')
    k('s_mul_i32 s26, s56, 12288'); k('v_add_u32 v13, s26, v5')
    res_load(k, RES, XMID)
    order = list(range(28))
    ldsi = [i for i in order if 6 <= i < 18 or i >= 22]
    slot = {i: j % 4 for j, i in enumerate(ldsi)}
    def wread(i):
        for n in range(2):
            if i < 18: k.ds(f'ds_read_b128 {vr(WB+8*slot[i]+4*n)}, v12 offset:{(i-6)*2048+n*1024}', f'w{i}')
            else: k.ds(f'ds_read_b128 {vr(WB+8*slot[i]+4*n)}, v13 offset:{(i-22)*2048+n*1024}', f'w{i}')
    for i in ldsi[:4]: wread(i)
    poll(k, 24, 7)
    stamp(k, 13)
    PD = 14
    def aload(i):
        if i % 4 == 0: k(f's_add_u32 s27, s25, {i*1024}')
        k.vmem(f'buffer_load_dwordx4 {vr(RING+4*(i%RD))}, v5, s[4:7], s27 offen offset:{(i%4)*1024} sc1', f'a{i}')
    for i in range(PD): aload(i)
    nl = 4
    for i in order:
        k.vm_wait(f'a{i}')
        if i in slot: k.lg_wait(f'w{i}')
        for n in range(2):
            a = WB + 8*slot[i] + 4*n if i in slot else w2reg(i, n)
            k(f'{MF} {vr(ACC+16*n,16)}, {vr(a)}, {vr(RING+4*(i%RD))}, {"0" if i == 0 else vr(ACC+16*n,16)}')
        if i in slot and nl < len(ldsi): wread(ldsi[nl]); nl += 1
        if i + PD < 28: aload(i + PD)
    stamp(k, 14)
    def pre():
        L = k.new_label('np')
        k('s_cmp_lg_u32 s15, 0'); k(f's_cbranch_scc1 {L}')
        wq_prefetch(k)
        k.label(L)
    reduce_fin(k, ACC, 48, RES, XIN + LS, STI + LS, True, pre)
    k('s_lshr_b32 s24, s50, 1'); k('s_lshl_b32 s24, s24, 7'); k('s_and_b32 s25, s50, 1'); k('s_mul_i32 s25, s25, 7')
    k('s_add_u32 s25, s25, s51'); k('s_lshl_b32 s25, s25, 2'); k('s_add_u32 s24, s24, s25'); k('s_add_u32 s24, s24, s16')
    k(f's_add_u32 s24, s24, {F2}')
    publish(k, 24)

def gen_main():
    k = K('main_kernel', 512, 256, 163840, 256)
    prologue(k, [(72, 4, WS_BYTES), (56, 8, 2048*448*2)])
    k('v_lshrrev_b32 v3, 5, v1'); k('v_and_b32 v4, 31, v1'); k('v_lshlrev_b32 v5, 4, v1')
    k('v_add_u32 v6, 0x10000, v5'); k('v_add_u32 v7, 0x20000, v5')
    k('s_and_b32 s12, s2, 7'); k('s_lshr_b32 s13, s2, 3')
    k('s_mov_b32 s14, 0'); k('s_mov_b32 s15, 0'); k(f's_mov_b32 s16, {FL}')
    if DBG:
        DW = int(os.environ.get('DBGWG', '0'))
        k('s_load_dwordx2 s[84:85], s[0:1], 64'); k('s_mov_b32 s86, 256'); k('s_mov_b32 s87, 0x00020000')
        k('s_mov_b32 s88, 0'); k('s_mov_b32 s89, 1')
        L = k.new_label('d')
        k(f's_cmp_lg_u32 s2, {DW}'); k(f's_cbranch_scc1 {L}'); k('s_mov_b32 s89, s3'); k.label(L)
        k('s_waitcnt lgkmcnt(0)')
    stamp(k, 0)
    wq_prefetch(k)
    TOP = k.new_label('top'); IDLE = k.new_label('idle'); NEXT = k.new_label('next'); END = k.name + '_end'
    k.label(TOP)
    def stopchk(ph):
        if STOP < 5 and ph == STOP: k(f's_branch {END}')
        elif STOP >= 5 and STOP < 10 and ph == STOP - 5:
            k('s_cmp_eq_u32 s15, 1'); k(f's_cbranch_scc1 {END}')
    qkv(k); stopchk(0)
    attn(k); stopchk(1)
    k('s_cmp_ge_u32 s13, 28'); k(f's_cbranch_scc1 {IDLE}')
    wo(k); stopchk(2)
    ffn1(k); stopchk(3)
    ffn2(k); stopchk(4)
    k(f's_branch {NEXT}')
    k.label(IDLE)
    if STOP < 5: k(f's_branch {END}')
    k('s_cmp_lg_u32 s15, 0'); k(f's_cbranch_scc1 {END}')
    wq_prefetch(k)
    k.label(NEXT)
    stamp(k, 15)
    k('s_cmp_lg_u32 s15, 0'); k(f's_cbranch_scc1 {END}')
    k('s_mov_b32 s15, 1'); k(f's_mov_b32 s14, 0x{LS:x}'); k(f's_mov_b32 s16, {FL + FLS}')
    if DBG: k('s_mov_b32 s88, 64')
    k(f's_branch {TOP}')
    k.label(END)
    k('s_endpgm')
    return k

def build(path):
    p = gen_prep(); m = gen_main()
    return emit_file([p, m], [NAME + '_kernel', 'main_kernel'], path)
if __name__ == '__main__':
    build(sys.argv[1] if len(sys.argv) > 1 else 'p1.s')
```

```python
from g2a import *
DBG = os.environ.get('K2DEBUG', '0') == '1'
STOP = int(os.environ.get('STOP', '99'))
LWQ = 65536; LCS = LWQ + 86016; LSC = LCS + 512
LWO = 69632; LFLAG = 159744; LM = LFLAG + 64
LC1 = 57344; LST = LC1 + 2048; LE = 65536
POLLMAX = 1 << 15
def stamp(k, i):
    if not DBG: return
    L = k.new_label('st')
    k('s_cmp_lg_u32 s89, 0'); k(f's_cbranch_scc1 {L}')
    k('s_memtime s[90:91]'); k('s_waitcnt lgkmcnt(0)'); k.lg = []
    k('v_mov_b32 v2, s90')
    k(f'buffer_store_dword v2, off, s[84:87], s88 offset:{4*i}')
    k.label(L)
def poll(k, s_addr, n):
    L, Ld, Lt = k.new_label('pl'), k.new_label('pl'), k.new_label('pl')
    k('s_cmp_lg_u32 s3, 0'); k(f's_cbranch_scc1 {Ld}')
    k(f's_mov_b32 exec_lo, 0x{(1 << n) - 1:x}'); k('s_mov_b32 exec_hi, 0')
    k('v_lshlrev_b32 v8, 2, v1'); k('s_mov_b32 s18, 0')
    k.label(L)
    k(f'buffer_load_dword v9, v8, s[4:7], s{s_addr} offen sc1')
    k('s_waitcnt vmcnt(0)')
    k('v_cmp_eq_u32 vcc, 0, v9')
    k('s_add_u32 s18, s18, 1')
    k('s_nop 0')
    k('s_cmp_eq_u32 vcc_lo, 0'); k(f's_cbranch_scc1 {Lt}')
    k(f's_cmp_ge_u32 s18, {POLLMAX}'); k(f's_cbranch_scc1 {Lt}')
    k('s_sleep 1'); k(f's_branch {L}')
    k.label(Lt)
    k('s_mov_b32 exec_lo, -1'); k('s_mov_b32 exec_hi, -1')
    k.label(Ld)
    k('s_barrier')
FAST = os.environ.get('FAST', '1') == '1'
XT = 0x3800
def hstore(k, txts, tag=None):
    if not FAST:
        for t in txts: k.vmem(t + ' sc1', tag)
        return
    Ls, Lj = k.new_label('hs'), k.new_label('hs')
    k('s_cmp_eq_u32 s17, 0'); k(f's_cbranch_scc1 {Ls}')
    for t in txts: k(t)
    k(f's_branch {Lj}')
    k.label(Ls)
    for t in txts: k.vmem(t + ' sc1', tag)
    k.label(Lj)
def publish(k, s_addr, local=False, skip_hi=False):
    if skip_hi:
        Lh = k.new_label('ph'); k('s_cmp_ge_u32 s3, 4'); k(f's_cbranch_scc1 {Lh}')
    k('s_waitcnt vmcnt(0)'); k.vm = []
    if skip_hi: k.label(Lh)
    stamp(k, 16 + 0) if False else None
    k('s_barrier')
    Ld = k.new_label('pb')
    k('s_cmp_lg_u32 s3, 0'); k(f's_cbranch_scc1 {Ld}')
    k('s_mov_b32 exec_lo, 1'); k('s_mov_b32 exec_hi, 0')
    k('v_mov_b32 v9, 1')
    if local: hstore(k, [f'buffer_store_dword v9, off, s[4:7], s{s_addr}'])
    else: k(f'buffer_store_dword v9, off, s[4:7], s{s_addr} sc1')
    k.vm = []
    k('s_mov_b32 exec_lo, -1'); k('s_mov_b32 exec_hi, -1')
    k.label(Ld)
def stats_load(k, s_off, vb, vaddr):
    k(f'v_mul_u32_u24 v{vaddr}, {7*512}, v3'); k(f'v_lshl_add_u32 v{vaddr}, v4, 4, v{vaddr}')
    for i in range(7):
        k.vmem(f'buffer_load_dwordx4 {vr(vb+4*i)}, v{vaddr}, s[4:7], s{s_off} offen offset:{i*512} sc1', 'st')
def stats_finish(k, vb, rs, mr, tmp):
    for i in range(1, 7):
        for j in range(4): k(f'v_add_f32 v{vb+j}, v{vb+j}, v{vb+4*i+j}')
    k(f'v_add_f32 v{vb}, v{vb}, v{vb+2}'); k(f'v_add_f32 v{vb+1}, v{vb+1}, v{vb+3}')
    half_sum(k, vb, tmp); half_sum(k, vb+1, tmp)
    k(f'v_mul_f32 v{vb}, {fl(1/448)}, v{vb}'); k(f'v_mul_f32 v{vb+1}, {fl(1/448)}, v{vb+1}')
    k(f'v_fma_f32 v{vb+1}, -v{vb}, v{vb}, v{vb+1}')
    k(f'v_max_f32 v{vb+1}, 0, v{vb+1}'); k(f'v_add_f32 v{vb+1}, {fl(1e-5)}, v{vb+1}')
    k(f'v_rsq_f32 v{rs}, v{vb+1}'); k.nop(1)
    k(f'v_mul_f32 v{mr}, v{vb}, v{rs}'); k(f'v_sub_f32 v{mr}, 0, v{mr}')
def ldsr(dst, off):
    b = off >> 16
    return f'ds_read_b128 {vr(dst)}, v{5+b} offset:{off & 0xffff}'
MF = 'v_mfma_f32_32x32x16_bf16'

def wq_prefetch(k):
    k('s_lshr_b32 s18, s13, 1')
    k(f's_mul_i32 s19, s18, 86016'); k(f's_add_u32 s19, s19, 0x{WQ:x}')
    k('s_lshl_b32 s20, s3, 10'); k('s_add_u32 s19, s19, s20'); k(f's_add_u32 s20, s20, {LWQ}')
    for i in range(11):
        L = None
        if i == 10:
            L = k.new_label('wq'); k('s_cmp_ge_u32 s3, 4'); k(f's_cbranch_scc1 {L}')
        k(f's_add_u32 m0, s20, {8192*i}'); k(f's_add_u32 s21, s19, {8192*i}')
        k('buffer_load_dwordx4 v5, s[4:7], s21 offen lds')
    L2 = k.new_label('wq'); k(f's_branch {L2}')
    k.label(L)
    k('s_cmp_lg_u32 s3, 4'); k(f's_cbranch_scc1 {L2}')
    k('s_lshl_b32 s21, s18, 9'); k(f's_add_u32 s21, s21, 0x{CSQ:x}')
    k(f's_mov_b32 m0, {LCS}'); k('s_mov_b32 exec_hi, 0')
    k('buffer_load_dwordx4 v5, s[4:7], s21 offen lds')
    k('s_mov_b32 exec_hi, -1')
    k.label(L2)

def w1reg(ks): return 176 + 4*ks if ks < 20 else 96 + 4*(ks - 20)
def w1pf(k, ks):
    k(f's_add_u32 s55, s54, {(ks//4)*4096}')
    k.vmem(f'buffer_load_dwordx4 {vr(w1reg(ks))}, v5, s[4:7], s55 offen offset:{(ks%4)*1024}', 'pf')
def tl_roles(k):
    k('s_and_b32 s50, s13, 3'); k('s_lshl_b32 s51, s12, 2'); k('s_add_u32 s50, s50, s51'); k('s_lshr_b32 s51, s13, 2')
    k('s_lshl_b32 s54, s51, 3'); k('s_add_u32 s54, s54, s3'); k(f's_mul_i32 s54, s54, {28*1024}'); k(f's_add_u32 s54, s54, 0x{W1:x}')

def qkv(k):
    XF, WB, AQ, AK, AV, SB = 16, 72, 96, 112, 128, 144
    Lhi = k.new_label('qh')
    Lend = k.new_label('qe')
    k('s_and_b32 s22, s13, 1'); k('s_lshl_b32 s23, s12, 1'); k('s_add_u32 s22, s22, s23'); k('s_lshr_b32 s23, s13, 1')
    Ln = k.new_label('q0')
    k('s_cmp_eq_u32 s15, 0'); k(f's_cbranch_scc1 {Ln}')
    k('s_lshl_b32 s24, s22, 7'); k(f's_add_u32 s24, s24, {FL + F2}')
    k('s_waitcnt vmcnt(0)')
    poll(k, 24, 14)
    Lg = k.new_label('q1'); k(f's_branch {Lg}')
    k.label(Ln); k('s_waitcnt vmcnt(0)'); k('s_barrier'); k.label(Lg)
    stamp(k, 1)
    k('s_cmp_ge_u32 s3, 4'); k(f's_cbranch_scc1 {Lhi}')
    k('s_lshl_b32 s25, s22, 2'); k('s_add_u32 s25, s25, s3')
    k(f's_mul_i32 s26, s25, {28*1024}'); k('s_add_u32 s26, s26, s14'); k(f's_add_u32 s26, s26, 0x{XIN:x}')
    k(f's_mul_i32 s27, s25, {STB}'); k('s_add_u32 s27, s27, s14'); k(f's_add_u32 s27, s27, 0x{STI:x}')
    DEPTH = 14
    def xload(ks):
        if ks % 4 == 0: k(f's_add_u32 s21, s26, {ks*1024}')
        k.vmem(f'buffer_load_dwordx4 {vr(XF+4*(ks%DEPTH))}, v5, s[4:7], s21 offen offset:{(ks%4)*1024} sc1', f'x{ks}')
    def wread(ks):
        b = WB + 12 * (ks % 2)
        for i in range(3): k.ds(ldsr(b+4*i, LWQ + (ks*3+i)*1024), f'w{ks}')
    for ks in range(DEPTH): xload(ks)
    stats_load(k, 27, SB, 0)
    wread(0)
    nxt = DEPTH; npf = 0
    for ks in range(28):
        if ks + 1 < 28: wread(ks + 1)
        k.vm_wait(f'x{ks}'); k.lg_wait(f'w{ks}')
        b = WB + 12 * (ks % 2); x = vr(XF + 4*(ks%DEPTH))
        c = lambda A: '0' if ks == 0 else vr(A, 16)
        k(f'{MF} {vr(AQ,16)}, {vr(b)}, {x}, {c(AQ)}')
        k(f'{MF} {vr(AK,16)}, {vr(b+4)}, {x}, {c(AK)}')
        k(f'{MF} {vr(AV,16)}, {x}, {vr(b+8)}, {c(AV)}')
        if nxt < 28:
            if nxt % 4 and ks == 0: k(f's_add_u32 s21, s26, {(nxt//4)*4096}')
            xload(nxt); nxt += 1
        else:
            for _ in range(2 if ks < 20 else 1):
                if npf < 20: w1pf(k, npf); npf += 1
    assert npf == 20
    k('s_barrier')
    stamp(k, 2)
    k.vm_wait()
    RS, MR = 8, 9
    stats_finish(k, SB, RS, MR, 10)
    k('s_lshl_b32 s28, s3, 8'); k(f's_add_u32 s28, s28, {LSC}')
    k('v_lshlrev_b32 v10, 3, v4'); k('v_add_u32 v10, s28, v10')
    k(f'ds_write_b64 v10, v[{RS}:{MR}]')
    k('v_lshlrev_b32 v11, 6, v3'); k(f'v_add_u32 v11, {LCS}, v11')
    for i in range(4): k(f'ds_read_b128 {vr(16+4*i)}, v11 offset:{16*i}')
    for i in range(4): k(f'ds_read_b128 {vr(32+4*i)}, v11 offset:{128+16*i}')
    k('v_lshlrev_b32 v11, 2, v4'); k(f'v_add_u32 v11, {LCS+256}, v11')
    k('ds_read_b32 v48, v11')
    k('s_waitcnt lgkmcnt(0)')
    k('v_lshlrev_b32 v11, 5, v3'); k('v_add_u32 v11, s28, v11')
    for g in range(4):
        k(f'ds_read_b128 {vr(64+8*g)}, v11 offset:{64*g}')
        k(f'ds_read_b128 {vr(64+8*g+4)}, v11 offset:{64*g+16}')
    SC = (28 ** -0.5) * LOG2E
    k(f'v_mul_f32 v14, {fl(SC)}, v{RS}'); k(f'v_mul_f32 v15, {fl(SC)}, v{MR}')
    k('v_mov_b32 v12, 0'); k('v_mov_b32 v13, 0')
    for r in range(16): k(f'v_mul_f32 v{16+r}, v15, v{16+r}')
    for r in range(16): k(f'v_fma_f32 v{AQ+r}, v14, v{AQ+r}, v{16+r}')
    for r in range(16): k(f'v_mul_f32 v{32+r}, v{MR}, v{32+r}')
    for r in range(16): k(f'v_fma_f32 v{AK+r}, v{RS}, v{AK+r}, v{32+r}')
    k('v_mov_b32 v10, 0'); k('v_mov_b32 v11, 0')
    for r in range(0, 16, 2):
        k(f'v_fmac_f32 v12, v{AQ+r}, v{AQ+r}'); k(f'v_fmac_f32 v13, v{AK+r}, v{AK+r}')
        k(f'v_fmac_f32 v10, v{AQ+r+1}, v{AQ+r+1}'); k(f'v_fmac_f32 v11, v{AK+r+1}, v{AK+r+1}')
    k('v_add_f32 v12, v12, v10'); k('v_add_f32 v13, v13, v11')
    half_sum(k, 12, 10); half_sum(k, 13, 10)
    k('v_sqrt_f32 v12, v12'); k.nop(1)
    k('s_mov_b32 exec_lo, 0')
    k(f'v_mov_b32 v{AQ+14}, v12'); k(f'v_mov_b32 v{AK+12}, 1.0'); k(f'v_mov_b32 v{AK+13}, 1.0')
    k('s_mov_b32 exec_lo, -1')
    wave_max(k, 13)
    k('v_cmp_eq_u32 vcc, 28, v4'); k('v_mov_b32 v49, 0'); k('v_mov_b32 v50, 1.0'); k.nop(1)
    k('v_cndmask_b32 v49, v49, v50, vcc')
    k('s_waitcnt lgkmcnt(0)')
    for r in range(16):
        g, i = r >> 2, r & 3
        k(f'v_fma_f32 v{64+8*g+2*i+1}, v{64+8*g+2*i+1}, v48, v49')
    for r in range(16):
        g, i = r >> 2, r & 3
        k(f'v_fma_f32 v{AV+r}, v{64+8*g+2*i}, v{AV+r}, v{64+8*g+2*i+1}')
    for A, d in ((AQ, 16), (AK, 24), (AV, 32)):
        for i in range(8): k(f'v_cvt_pk_bf16_f32 v{d+i}, v{A+2*i}, v{A+2*i+1}')
    k('s_lshl_b32 s29, s23, 6'); k('s_add_u32 s29, s29, s25')
    k('s_lshl_b32 s30, s29, 11'); k('s_add_u32 s30, s30, s14'); k(f's_add_u32 s30, s30, 0x{QF:x}')
    k('s_lshl_b32 s31, s29, 12'); k('s_add_u32 s31, s31, s14'); k(f's_add_u32 s31, s31, 0x{KVF:x}')
    k('s_lshl_b32 s32, s29, 2'); k('s_add_u32 s32, s32, s14'); k(f's_add_u32 s32, s32, 0x{KN:x}')
    for i in range(4): k(f'buffer_store_dwordx4 {vr(24+4*i)}, v5, s[4:7], s31 offen offset:{1024*i} sc1')
    k(f'buffer_store_dwordx4 v[16:19], v5, s[4:7], s30 offen sc1')
    k(f'buffer_store_dwordx4 v[20:23], v5, s[4:7], s30 offen offset:1024 sc1')
    k('s_mov_b32 exec_lo, 0'); k('s_mov_b32 exec_hi, 0x80000000')
    k('buffer_store_dword v13, off, s[4:7], s32 sc1')
    k('s_mov_b32 exec_lo, -1'); k('s_mov_b32 exec_hi, -1')
    k(f's_branch {Lend}')
    k.label(Lhi)
    sv = list(k.vm)
    k('s_sleep 20')
    for i in range(20): w1pf(k, i)
    k('s_barrier')
    k('s_lshl_b32 s52, s51, 16'); k('s_sub_u32 s53, s3, 4'); k('s_lshl_b32 s53, s53, 10'); k('s_add_u32 s52, s52, s53')
    k(f's_add_u32 s52, s52, 0x{WO:x}'); k(f's_add_u32 s53, s53, {LWO}')
    for n in range(16):
        k(f's_add_u32 m0, s53, {4096*n}'); k(f's_add_u32 s55, s52, {4096*n}')
        k('buffer_load_dwordx4 v5, s[4:7], s55 offen lds')
    k.vm = sv
    k.label(Lend)
    k.lg = []
    k('s_lshl_b32 s24, s23, 7'); k('s_lshl_b32 s25, s22, 2'); k('s_add_u32 s24, s24, s25'); k('s_add_u32 s24, s24, s16')
    stamp(k, 3)
    publish(k, 24, skip_hi=True)

def attn(k):
    Q, KV, S, P, O, C = 16, 32, 96, 128, 144, 14
    D = 4
    k('s_and_b32 s20, s13, 1'); k('s_lshl_b32 s22, s12, 1'); k('s_add_u32 s22, s22, s20')
    k('s_lshr_b32 s21, s13, 1')
    k('s_lshl_b32 s24, s22, 7'); k('s_add_u32 s24, s24, s16')
    poll(k, 24, 16)
    stamp(k, 4)
    k('s_and_b32 s23, s3, 1'); k('s_lshr_b32 s24, s3, 1')
    k('s_lshl_b32 s25, s21, 2'); k('s_lshl_b32 s26, s23, 1'); k('s_add_u32 s25, s25, s26')
    k('s_lshl_b32 s27, s22, 6')
    k('s_add_u32 s28, s27, s25'); k('s_lshl_b32 s28, s28, 11'); k('s_add_u32 s28, s28, s14'); k(f's_add_u32 s28, s28, 0x{QF:x}')
    k('s_lshl_b32 s29, s24, 4'); k('s_add_u32 s29, s29, s27'); k('s_lshl_b32 s29, s29, 12')
    k('s_add_u32 s29, s29, s14'); k(f's_add_u32 s29, s29, 0x{KVF:x}')
    k('s_lshl_b32 s30, s27, 2'); k('s_add_u32 s30, s30, s14'); k(f's_add_u32 s30, s30, 0x{KN:x}')
    k('v_lshlrev_b32 v0, 2, v1')
    if FAST:
        k('s_lshl_b32 s18, s12, 7'); k(f's_add_u32 s18, s18, {FL + XT}'); k('v_lshlrev_b32 v8, 2, v4')
        k.vmem('buffer_load_dword v12, v8, s[4:7], s18 offen sc1', 'kn')
    k.vmem('buffer_load_dword v11, v0, s[4:7], s30 offen sc1', 'kn')
    for i in range(4): k.vmem(f'buffer_load_dwordx4 {vr(Q+4*i)}, v5, s[4:7], s28 offen offset:{1024*i} sc1', 'q')
    k('v_mov_b32 v8, 0'); k(f'v_mov_b32 v9, {LFLAG}'); k('ds_write_b32 v9, v8')
    k('s_mov_b32 s40, 0')
    def kvload(kb):
        b = KV + 16 * (kb % D)
        k(f's_add_u32 s31, s29, {kb*4096}')
        for i in range(4):
            k.vmem(f'buffer_load_dwordx4 {vr(b+4*i)}, v5, s[4:7], s31 offen offset:{1024*i}', f'k{kb}' if i < 2 else f'v{kb}')
    for kb in range(D): kvload(kb)
    k.vm_wait('kn')
    if FAST:
        k('v_cmp_ne_u32 vcc, s46, v12'); k('s_nop 1')
        k('s_or_b32 s18, vcc_lo, vcc_hi'); k('s_cmp_eq_u32 s18, 0'); k('s_cselect_b32 s17, 1, 0')
    wave_max(k, 11); k.nop(1)
    k('v_readlane_b32 s32, v11, 63'); k.nop(2)
    k('v_sqrt_f32 v11, s32'); k.nop(1)
    k(f'v_mul_f32 v11, {fl(1.0+1/64)}, v11')
    k.vm_wait('q')
    def set_shift(q, cv):
        d = Q + 8*q + 4 + 2
        k(f'v_cvt_pk_bf16_f32 v8, v{cv}, v{cv}'); k('v_and_b32 v8, 0xffff0000, v8')
        k(f'v_sub_f32 v9, v{cv}, v8'); k(f'v_cvt_pk_bf16_f32 v10, v9, v9'); k('v_and_b32 v10, 0xffff0000, v10')
        k(f'v_add_f32 v{cv}, v8, v10'); k('v_cvt_pk_bf16_f32 v9, -v8, -v10')
        k('s_mov_b32 exec_lo, 0'); k(f'v_mov_b32 v{d}, v9'); k('s_mov_b32 exec_lo, -1')
    for q in range(2):
        k(f'v_lshlrev_b32 v{C+q}, 16, v{Q+8*q+4+3}'); k(f'v_mul_f32 v{C+q}, v{C+q}, v11')
        set_shift(q, C+q)
    MAIN = k.new_label('main'); FIN = k.new_label('fin')
    k.label(MAIN)
    NT = 32
    def smf(n, which):
        kb, q = n >> 1, n & 1
        b = KV + 16*(kb % D); s = S + 16*(n % 2)
        if which == 0: return f'{MF} {vr(s,16)}, {vr(b)}, {vr(Q+8*q)}, 0'
        return f'{MF} {vr(s,16)}, {vr(b+4)}, {vr(Q+8*q+4)}, {vr(s,16)}'
    def pmf(n, which):
        kb, q = n >> 1, n & 1
        b = KV + 16*(kb % D) + 8; p = P + 8*(n % 2); o = O + 16*q
        c = '0' if (n < 2 and which == 0) else vr(o, 16)
        return f'{MF} {vr(o,16)}, {vr(b+4*which)}, {vr(p+4*which)}, {c}'
    k.vm_wait('k0')
    stamp(k, 5)
    k.nop(2); k(smf(0, 0)); k(smf(0, 1)); k.nop(16)
    PRIO = os.environ.get('APRIO', '1') == '1'
    for n in range(NT + 1):
        if PRIO and n % 8 == 0 and n < NT: k(f's_setprio {3 - n//8}')
        valu = []
        if n < NT:
            s = S + 16*(n % 2); p = P + 8*(n % 2)
            valu = [f'v_exp_f32 v{s+r}, v{s+r}' for r in range(16)]
            valu += [f'v_cvt_pk_bf16_f32 v{p+i}, v{s+2*i}, v{s+2*i+1}' for i in range(8)]
        mf = []
        if n + 1 < NT:
            if (n + 1) % 2 == 0: k.vm_wait(f'k{(n+1)>>1}')
            mf += [smf(n+1, 0), smf(n+1, 1)]
        if n >= 1:
            k.vm_wait(f'v{(n-1)>>1}')
            mf += [pmf(n-1, 0), pmf(n-1, 1)]
        if n == NT: k.nop(2)
        pos = [0, 6, 12, 18] if len(mf) == 4 else ([0, 6] if n == 0 else [12, 18])
        mi = 0
        if not valu:
            for m in mf: k(m)
        else:
            for i, v in enumerate(valu):
                while mi < len(mf) and pos[mi] == i:
                    k(mf[mi]); mi += 1
                k(v)
        if n >= 1 and (n - 1) % 2 == 1:
            kbn = ((n - 1) >> 1) + D
            if kbn < 16: kvload(kbn)
    for ks in range(20, 28): w1pf(k, ks)
    k.nop(8)
    stamp(k, 6)
    k('s_lshl_b32 s33, s3, 13'); k('v_add_u32 v8, s33, v5')
    for q in range(2):
        for i in range(4): k(f'ds_write_b128 v8, {vr(O+16*q+4*i)} offset:{q*4096+i*1024}')
    k('s_waitcnt lgkmcnt(0)'); k('s_barrier')
    k('s_lshr_b32 s34, s24, 1'); k('s_and_b32 s35, s24, 1')
    k('s_lshl_b32 s36, s23, 13'); k('s_lshl_b32 s37, s34, 12'); k('s_add_u32 s36, s36, s37')
    k('s_lshl_b32 s37, s35, 11'); k('s_add_u32 s37, s37, s36')
    k('v_add_u32 v8, s37, v5')
    k('v_lshlrev_b32 v9, 4, v4'); k(f'v_add_u32 v9, {3*1024 + 32*16}, v9'); k('v_add_u32 v9, s36, v9')
    for j in range(4):
        k(f'ds_read_b128 {vr(32+8*j)}, v8 offset:{j*16384}')
        k(f'ds_read_b128 {vr(36+8*j)}, v8 offset:{j*16384+1024}')
        k(f'ds_read_b32 v{64+j}, v9 offset:{j*16384}')
    k('s_waitcnt lgkmcnt(0)')
    for j in range(1, 4):
        for r in range(8): k(f'v_add_f32 v{32+r}, v{32+r}, v{32+8*j+r}')
        k(f'v_add_f32 v64, v64, v{64+j}')
    k('v_rcp_f32 v65, v64')
    k(f'v_mov_b32 v66, {fl(2.0**-80)}'); k('v_cmp_nge_f32 vcc, v64, v66')
    k(f'v_mov_b32 v66, {fl(2.0**100)}'); k('v_cmp_nle_f32 s[38:39], v64, v66')
    for r in range(8): k(f'v_mul_f32 v{32+r}, v{32+r}, v65')
    for i in range(4): k(f'v_cvt_pk_bf16_f32 v{40+i}, v{32+2*i}, v{32+2*i+1}')
    k('s_add_u32 s41, s25, s34'); k('s_lshl_b32 s41, s41, 5'); k('s_lshl_b32 s42, s22, 1')
    k('s_add_u32 s41, s41, s42'); k('s_add_u32 s41, s41, s35'); k('s_lshl_b32 s41, s41, 10')
    k('s_add_u32 s41, s41, s14'); k(f's_add_u32 s41, s41, 0x{OF:x}')
    k('buffer_store_dwordx4 v[40:43], v5, s[4:7], s41 offen sc1')
    k('s_or_b64 vcc, vcc, s[38:39]')
    Lok = k.new_label('ok')
    k(f's_cbranch_vccz {Lok}')
    k('v_mov_b32 v8, 1'); k(f'v_mov_b32 v9, {LFLAG}'); k('ds_write_b32 v9, v8')
    k.label(Lok)
    k('s_waitcnt vmcnt(0) lgkmcnt(0)'); k.vm = []
    k('s_barrier')
    k(f'v_mov_b32 v9, {LFLAG}'); k('ds_read_b32 v8, v9'); k('s_waitcnt lgkmcnt(0)'); k('s_nop 0')
    k('v_readfirstlane_b32 s43, v8')
    k('s_cmp_eq_u32 s43, 0'); k(f's_cbranch_scc1 {FIN}')
    k('s_cmp_lg_u32 s40, 0'); k(f's_cbranch_scc1 {FIN}')
    k('s_mov_b32 s40, 1')
    k(f'v_mov_b32 v66, 0xff800000'); k(f'v_mov_b32 v67, 0xff800000')
    k('s_mov_b32 s44, 0')
    LP = k.new_label('mx'); k.label(LP)
    k('s_lshl_b32 s45, s44, 12'); k('s_add_u32 s45, s45, s29')
    k(f'buffer_load_dwordx4 {vr(KV)}, v5, s[4:7], s45 offen')
    k(f'buffer_load_dwordx4 {vr(KV+4)}, v5, s[4:7], s45 offen offset:1024')
    k('s_waitcnt vmcnt(0)')
    for q in range(2):
        s = 64 + 0 if False else 48 + 0
    for q in range(2):
        s = 128 + 16*q
        k(f'{MF} {vr(s,16)}, {vr(KV)}, {vr(Q+8*q)}, 0'); k(f'{MF} {vr(s,16)}, {vr(KV+4)}, {vr(Q+8*q+4)}, {vr(s,16)}')
    k.nop(20)
    for q in range(2):
        s = 128 + 16*q
        for r in range(0, 16, 2): k(f'v_max3_f32 v{66+q}, v{66+q}, v{s+r}, v{s+r+1}')
    k('s_add_u32 s44, s44, 1'); k('s_cmp_lt_u32 s44, 16'); k(f's_cbranch_scc1 {LP}')
    for q in range(2):
        k(f'v_mov_b32 v68, v{66+q}'); k.nop(2)
        k(f'v_permlane32_swap_b32 v{66+q}, v68'); k.nop(1)
        k(f'v_max_f32 v{66+q}, v{66+q}, v68')
    k('s_lshl_b32 s45, s3, 8'); k(f's_add_u32 s45, s45, {LM}')
    k('v_lshlrev_b32 v8, 2, v4'); k('v_add_u32 v9, s45, v8')
    k('ds_write_b32 v9, v66'); k('ds_write_b32 v9, v67 offset:128')
    k('s_waitcnt lgkmcnt(0)'); k('s_barrier')
    k('s_lshl_b32 s45, s23, 8'); k(f's_add_u32 s45, s45, {LM}'); k('v_add_u32 v9, s45, v8')
    for j in range(4):
        k(f'ds_read_b32 v{32+2*j}, v9 offset:{j*512}'); k(f'ds_read_b32 v{33+2*j}, v9 offset:{j*512+128}')
    k(f'v_mov_b32 v8, 0'); k(f'v_mov_b32 v10, {LFLAG}'); k('ds_write_b32 v10, v8')
    k('s_waitcnt lgkmcnt(0)')
    for q in range(2):
        k(f'v_max3_f32 v{32+q}, v{32+q}, v{34+q}, v{36+q}'); k(f'v_max_f32 v{32+q}, v{32+q}, v{38+q}')
        k(f'v_add_f32 v{C+q}, v{C+q}, v{32+q}')
        set_shift(q, C+q)
    k('s_barrier')
    k.vm = []
    for kb in range(D): kvload(kb)
    k(f's_branch {MAIN}')
    k.label(FIN)
    k.vm = []; k.lg = []
    k('s_setprio 0')
    k('s_lshl_b32 s24, s21, 7'); k('s_lshl_b32 s25, s22, 2'); k('s_add_u32 s24, s24, s25'); k('s_add_u32 s24, s24, s16')
    k(f's_add_u32 s24, s24, {FA}')
    Ld = k.new_label('pb')
    k('s_cmp_lg_u32 s3, 0'); k(f's_cbranch_scc1 {Ld}')
    k('s_mov_b32 exec_lo, 1'); k('s_mov_b32 exec_hi, 0'); k('v_mov_b32 v9, 1')
    k(f'buffer_store_dword v9, off, s[4:7], s24 sc1')
    k('s_mov_b32 exec_lo, -1'); k('s_mov_b32 exec_hi, -1')
    k.label(Ld)
    stamp(k, 7)
```

```python
from g2b import *

def wave_roles(k):
    k('s_and_b32 s56, s3, 3'); k('s_lshr_b32 s57, s3, 2')
    k('s_lshl_b32 s58, s50, 1'); k('s_add_u32 s58, s58, s57')
    k('s_lshl_b32 s59, s51, 2'); k('s_add_u32 s59, s59, s56')

def reduce_fin(k, acc, tmp, res, xdst, stdst, final_ok, pre=None):
    k.nop(16)
    k('s_barrier')
    if pre: pre()
    k('s_lshl_b32 s60, s57, 15'); k('s_lshl_b32 s61, s56, 11'); k('s_add_u32 s61, s61, s60'); k('v_add_u32 v8, s61, v5')
    for j in range(4):
        k(f'ds_write_b128 v8, {vr(acc+8*j)} offset:{j*8192}')
        k(f'ds_write_b128 v8, {vr(acc+8*j+4)} offset:{j*8192+1024}')
    k('s_lshl_b32 s61, s56, 13'); k('s_add_u32 s61, s61, s60'); k('v_add_u32 v9, s61, v5')
    k('s_mul_i32 s62, s58, 28'); k('s_add_u32 s62, s62, s59'); k('s_lshl_b32 s62, s62, 10'); k('s_add_u32 s62, s62, s14')
    k(f's_add_u32 s62, s62, 0x{xdst:x}')
    k('s_lshr_b32 s63, s59, 1'); k('s_mul_i32 s60, s58, 14'); k('s_add_u32 s63, s63, s60'); k('s_lshl_b32 s63, s63, 9')
    k('s_and_b32 s60, s59, 1'); k('s_lshl_b32 s60, s60, 3'); k('s_add_u32 s63, s63, s60'); k('s_add_u32 s63, s63, s14')
    k(f's_add_u32 s63, s63, 0x{stdst:x}')
    k('s_waitcnt lgkmcnt(0)'); k('s_barrier')
    for s in range(4):
        k(f'ds_read_b128 {vr(tmp+8*s)}, v9 offset:{s*2048}'); k(f'ds_read_b128 {vr(tmp+8*s+4)}, v9 offset:{s*2048+1024}')
    for i in range(4):
        k(f'v_lshlrev_b32 v{acc+2*i}, 16, v{res+i}'); k(f'v_and_b32 v{acc+2*i+1}, 0xffff0000, v{res+i}')
    for s in range(4):
        k(f's_waitcnt lgkmcnt({6-2*s})')
        for r in range(8): k(f'v_add_f32 v{acc+r}, v{acc+r}, v{tmp+8*s+r}')
    k.lg = []
    for i in range(4): k(f'v_cvt_pk_bf16_f32 v{tmp+i}, v{acc+2*i}, v{acc+2*i+1}')
    Lf, Le = k.new_label('rf'), k.new_label('re')
    if final_ok:
        k('s_cmp_lg_u32 s15, 0'); k(f's_cbranch_scc1 {Lf}')
    hstore(k, [f'buffer_store_dwordx4 {vr(tmp)}, v5, s[4:7], s62 offen'])
    k(f'v_add_f32 v8, v{acc}, v{acc+1}'); k(f'v_mul_f32 v9, v{acc}, v{acc}'); k(f'v_fmac_f32 v9, v{acc+1}, v{acc+1}')
    k(f'v_add_f32 v10, v{acc+2}, v{acc+3}'); k(f'v_mul_f32 v11, v{acc+2}, v{acc+2}'); k(f'v_fmac_f32 v11, v{acc+3}, v{acc+3}')
    for r in range(4, 8, 2):
        k(f'v_add_f32 v8, v8, v{acc+r}'); k(f'v_fmac_f32 v9, v{acc+r}, v{acc+r}')
        k(f'v_add_f32 v10, v10, v{acc+r+1}'); k(f'v_fmac_f32 v11, v{acc+r+1}, v{acc+r+1}')
    k('v_add_f32 v8, v8, v10'); k('v_add_f32 v9, v9, v11')
    half_sum(k, 8, 10); half_sum(k, 9, 10)
    k('v_lshlrev_b32 v10, 4, v4')
    k('s_mov_b32 exec_hi, 0')
    hstore(k, ['buffer_store_dwordx2 v[8:9], v10, s[4:7], s63 offen'])
    k('s_mov_b32 exec_hi, -1')
    if final_ok:
        k(f's_branch {Le}')
        k.label(Lf)
        k.nop(2)
        k(f'v_permlane32_swap_b32 v{tmp}, v{tmp+2}'); k(f'v_permlane32_swap_b32 v{tmp+1}, v{tmp+3}')
        k('v_mul_u32_u24 v10, 896, v4'); k('v_lshl_add_u32 v10, v3, 4, v10')
        k(f's_mul_i32 s62, s58, {32*896}'); k('s_lshl_b32 s63, s59, 5'); k('s_add_u32 s62, s62, s63')
        k(f'buffer_store_dwordx4 {vr(tmp)}, v10, s[8:11], s62 offen')
        k.label(Le)

def res_load(k, res, xsrc):
    k('s_mul_i32 s60, s58, 28'); k('s_add_u32 s60, s60, s59'); k('s_lshl_b32 s60, s60, 10'); k('s_add_u32 s60, s60, s14')
    k(f's_add_u32 s60, s60, 0x{xsrc:x}')
    k.vmem(f'buffer_load_dwordx4 {vr(res)}, v5, s[4:7], s60 offen sc1', 'res')

def wo(k):
    OFR, WB, ACC, RES = 16, 48, 128, 80
    wave_roles(k)
    k('s_lshr_b32 s24, s50, 1'); k('s_lshl_b32 s24, s24, 7'); k('s_add_u32 s24, s24, s16'); k(f's_add_u32 s24, s24, {FA}')
    k('s_lshl_b32 s25, s56, 13'); k(f's_add_u32 s25, s25, {LWO}'); k('v_add_u32 v12, s25, v5')
    def wread(i):
        for n in range(2): k.ds(f'ds_read_b128 {vr(WB+8*(i%4)+4*n)}, v12 offset:{n*32768+i*1024}', f'w{i}')
    for i in range(4): wread(i)
    k('s_lshl_b32 s26, s58, 5'); k('s_lshl_b32 s27, s56, 3'); k('s_add_u32 s26, s26, s27'); k('s_lshl_b32 s26, s26, 10')
    k('s_add_u32 s26, s26, s14'); k(f's_add_u32 s26, s26, 0x{OF:x}'); k('s_add_u32 s27, s26, 4096')
    poll(k, 24, 16)
    stamp(k, 8)
    for i in range(8):
        k.vmem(f'buffer_load_dwordx4 {vr(OFR+4*i)}, v5, s[4:7], s{26+i//4} offen offset:{(i%4)*1024} sc1', f'o{i}')
    res_load(k, RES, XIN)
    for i in range(8):
        k.vm_wait(f'o{i}'); k.lg_wait(f'w{i}')
        for n in range(2):
            c = '0' if i == 0 else vr(ACC+16*n, 16)
            k(f'{MF} {vr(ACC+16*n,16)}, {vr(WB+8*(i%4)+4*n)}, {vr(OFR+4*i)}, {c}')
        if i + 4 < 8: wread(i + 4)
    k.vm_wait('res')
    stamp(k, 9)
    reduce_fin(k, ACC, 16, RES, XMID, STM, False)
    k('s_lshl_b32 s24, s50, 7'); k('s_lshl_b32 s25, s51, 2'); k('s_add_u32 s24, s24, s25'); k('s_add_u32 s24, s24, s16')
    k(f's_add_u32 s24, s24, {FW}')
    publish(k, 24, local=True)

def w2src(k, sdst):
    k(f's_mul_i32 s{sdst}, s51, 224'); k(f's_mul_i32 s60, s56, 28'); k(f's_add_u32 s{sdst}, s{sdst}, s60')
    k(f's_lshl_b32 s{sdst}, s{sdst}, 10'); k(f's_add_u32 s{sdst}, s{sdst}, 0x{W2:x}')
def w2reg(i, n):
    if i < 6: return 128 + 8*i + 4*n
    assert 18 <= i < 22
    return 96 + 8*(i-18) + 4*n

def ffn1(k):
    A0, A1, T, U, XB = 16, 32, 48, 64, 80
    k('s_lshl_b32 s24, s50, 7'); k('s_add_u32 s24, s24, s16'); k(f's_add_u32 s24, s24, {FW}')
    k('s_lshl_b32 s25, s51, 3'); k('s_add_u32 s25, s25, s3')
    k('s_lshl_b32 s26, s25, 8'); k(f's_add_u32 s26, s26, 0x{C1:x}')
    k('s_lshl_b32 s27, s3, 8'); k(f's_add_u32 m0, s27, {LC1}')
    k('s_mov_b32 exec_lo, 0xffff'); k('s_mov_b32 exec_hi, 0')
    k('buffer_load_dwordx4 v5, s[4:7], s26 offen lds')
    k('s_mov_b32 exec_lo, -1'); k('s_mov_b32 exec_hi, -1')
    k(f's_mul_i32 s28, s50, {56*1024}'); k('s_lshl_b32 s29, s3, 10'); k('s_add_u32 s28, s28, s29')
    k('s_add_u32 s28, s28, s14'); k(f's_add_u32 s28, s28, 0x{XMID:x}')
    w2src(k, 30); k(f's_add_u32 s31, s30, {112*1024}')
    k(f's_mul_i32 s32, s57, {112*1024}'); k('s_add_u32 s32, s32, s30')
    k('s_mul_i32 s33, s56, 24576'); k('s_lshl_b32 s34, s57, 10'); k('s_add_u32 s33, s33, s34'); k(f's_add_u32 s33, s33, {LE}')
    k('s_mul_i32 s35, s56, 12288'); k('s_add_u32 s35, s35, s34')
    poll(k, 24, 7)
    stamp(k, 10)
    for i in range(7):
        k(f's_add_u32 m0, s29, {8192*i}'); k(f's_add_u32 s36, s28, {8192*i}')
        k.vmem('buffer_load_dwordx4 v5, s[4:7], s36 offen sc1 lds', f'xt{i}')
    Ls = k.new_label('fs')
    k('s_cmp_ge_u32 s3, 2'); k(f's_cbranch_scc1 {Ls}')
    k('s_lshl_b32 s37, s50, 1'); k('s_add_u32 s37, s37, s3'); k(f's_mul_i32 s37, s37, {STB}'); k('s_add_u32 s37, s37, s14')
    k(f's_add_u32 s37, s37, 0x{STM:x}')
    sv = list(k.vm)
    stats_load(k, 37, 16, 0)
    k('s_waitcnt vmcnt(0)')
    stats_finish(k, 16, 8, 9, 10)
    k(f'v_mul_f32 v8, {fl(LOG2E)}, v8')
    k('s_lshl_b32 s37, s3, 8'); k(f's_add_u32 s37, s37, {LST}'); k('v_lshlrev_b32 v10, 3, v4'); k('v_add_u32 v10, s37, v10')
    k('ds_write_b64 v10, v[8:9]'); k('s_waitcnt lgkmcnt(0)')
    k.label(Ls)
    k.vm = sv
    def pfe(j):
        if j < 12:
            i = 6 + j
            k(f's_add_u32 m0, s33, {2048*j}'); k(f's_add_u32 s36, s32, {1024*i}')
            k.vmem('buffer_load_dwordx4 v5, s[4:7], s36 offen lds', 'pf')
        elif j < 24:
            i, n = (j - 12) >> 1, (j - 12) & 1
            k(f's_add_u32 s36, s{30+n}, {(i//4)*4096}')
            k.vmem(f'buffer_load_dwordx4 {vr(w2reg(i,n))}, v5, s[4:7], s36 offen offset:{(i%4)*1024}', 'pf')
    def pfl(j):
        if j < 6:
            i = 22 + j
            k(f's_add_u32 m0, s35, {2048*j}'); k(f's_add_u32 s36, s32, {1024*i}')
            k.vmem('buffer_load_dwordx4 v5, s[4:7], s36 offen lds', 'pf')
        else:
            i, n = 18 + ((j - 6) >> 1), (j - 6) & 1
            k(f's_add_u32 s36, s{30+n}, {(i//4)*4096}')
            k.vmem(f'buffer_load_dwordx4 {vr(w2reg(i,n))}, v5, s[4:7], s36 offen offset:{(i%4)*1024}', 'pf')
    def xread(tb, ks): k.ds(ldsr(XB + 4*((tb*28+ks) % 4), (tb*28+ks)*1024), f'x{tb}_{ks}')
    def mish(A, tbl):
        rs, mr = 8 + 2*tbl, 9 + 2*tbl
        L = []
        for i in range(4): L.append(('ds', f'ds_read_b128 {vr(T+4*i)}, v14 offset:{16*i}', 'cs'))
        for i in range(4): L.append(('ds', f'ds_read_b128 {vr(U+4*i)}, v14 offset:{128+16*i}', 'cs'))
        L.append(('lw', 'cs'))
        V = lambda s: L.append(('v', s))
        for r in range(16): V(f'v_fma_f32 v{T+r}, v{mr}, v{T+r}, v{U+r}')
        for r in range(16): V(f'v_fma_f32 v{A+r}, v{rs}, v{A+r}, v{T+r}')
        for r in range(16): V(f'v_exp_f32 v{T+r}, v{A+r}')
        for r in range(16): V(f'v_add_f32 v{T+r}, 1.0, v{T+r}')
        for r in range(16): V(f'v_fma_f32 v{T+r}, v{T+r}, v{T+r}, 1.0')
        for r in range(16): V(f'v_rcp_f32 v{T+r}, v{T+r}')
        for r in range(16): V(f'v_fma_f32 v{T+r}, v{T+r}, v12, v13')
        for r in range(16): V(f'v_mul_f32 v{A+r}, v{A+r}, v{T+r}')
        for i in range(8): V(f'v_cvt_pk_bf16_f32 v{U+i}, v{A+2*i}, v{A+2*i+1}')
        L.append(('st', [f'buffer_store_dwordx4 {vr(U)}, v5, s[4:7], s{38+tbl} offen',
                         f'buffer_store_dwordx4 {vr(U+4)}, v5, s[4:7], s{38+tbl} offen offset:1024']))
        return L
    def emit(it):
        if it[0] == 'ds': k.ds(it[1], it[2])
        elif it[0] == 'lw': k.lg_wait(it[1])
        elif it[0] == 'st': hstore(k, it[1], 'st')
        else: k(it[1])
    k('s_mul_i32 s38, s50, 224'); k('s_lshl_b32 s39, s25, 1'); k('s_add_u32 s38, s38, s39'); k('s_lshl_b32 s38, s38, 10')
    k('s_add_u32 s38, s38, s14'); k(f's_add_u32 s38, s38, 0x{ACT:x}'); k(f's_add_u32 s39, s38, {112*1024}')
    k(f'v_mov_b32 v12, {fl(-2*LN2)}'); k(f'v_mov_b32 v13, {fl(LN2)}')
    k('v_lshlrev_b32 v14, 6, v3'); k(f'v_add_u32 v14, {LC1}, v14'); k('v_add_u32 v14, s27, v14')
    k.vm_wait('xt3'); k('s_barrier')
    stamp(k, 11)
    for ks in range(3): xread(0, ks)
    for ks in range(28):
        if ks + 3 < 28: xread(0, ks + 3)
        k.lg_wait(f'x0_{ks}')
        k(f'{MF} {vr(A0,16)}, {vr(w1reg(ks))}, {vr(XB+4*(ks%4))}, {"0" if ks == 0 else vr(A0,16)}')
        if ks % 2 == 1: pfe(ks // 2)
    k.vm_wait('xt6'); k('s_barrier')
    k('v_lshlrev_b32 v15, 3, v4'); k(f'v_add_u32 v15, {LST}, v15')
    k.ds('ds_read_b64 v[8:9], v15', 's'); k.ds('ds_read_b64 v[10:11], v15 offset:256', 's')
    for ks in range(3): xread(1, ks)
    M = mish(A0, 0); mi = 0
    per = (len(M) + 27) // 28
    for ks in range(28):
        if ks + 3 < 28: xread(1, ks + 3)
        k.lg_wait(f'x1_{ks}')
        k(f'{MF} {vr(A1,16)}, {vr(w1reg(ks))}, {vr(XB+4*((28+ks)%4))}, {"0" if ks == 0 else vr(A1,16)}')
        if ks % 2 == 1 and 14 + ks // 2 < 24: pfe(14 + ks // 2)
        for _ in range(per):
            if mi < len(M): emit(M[mi]); mi += 1
    while mi < len(M): emit(M[mi]); mi += 1
    stamp(k, 12)
    k('s_barrier')
    for j in range(14): pfl(j)
    for it in mish(A1, 1): emit(it)
    k('s_lshl_b32 s24, s50, 7'); k('s_lshl_b32 s25, s51, 2'); k('s_add_u32 s24, s24, s25'); k('s_add_u32 s24, s24, s16')
    k(f's_add_u32 s24, s24, {F1}')
    publish(k, 24, local=True)

def ffn2(k):
    ACC, WB, RES, RING, RD = 16, 48, 80, 176, 20
    k('s_lshl_b32 s24, s50, 7'); k('s_add_u32 s24, s24, s16'); k(f's_add_u32 s24, s24, {F1}')
    k('s_mul_i32 s25, s58, 112'); k('s_mul_i32 s26, s56, 28'); k('s_add_u32 s25, s25, s26'); k('s_lshl_b32 s25, s25, 10')
    k('s_add_u32 s25, s25, s14'); k(f's_add_u32 s25, s25, 0x{ACT:x}')
    k('s_mul_i32 s26, s56, 24576'); k(f's_add_u32 s26, s26, {LE}'); k('v_add_u32 v12, s26, v5')
    k('s_mul_i32 s26, s56, 12288'); k('v_add_u32 v13, s26, v5')
    res_load(k, RES, XMID)
    order = list(range(28))
    ldsi = [i for i in order if 6 <= i < 18 or i >= 22]
    slot = {i: j % 4 for j, i in enumerate(ldsi)}
    def wread(i):
        for n in range(2):
            if i < 18: k.ds(f'ds_read_b128 {vr(WB+8*slot[i]+4*n)}, v12 offset:{(i-6)*2048+n*1024}', f'w{i}')
            else: k.ds(f'ds_read_b128 {vr(WB+8*slot[i]+4*n)}, v13 offset:{(i-22)*2048+n*1024}', f'w{i}')
    for i in ldsi[:4]: wread(i)
    poll(k, 24, 7)
    stamp(k, 13)
    PD = 14
    def aload(i):
        if i % 4 == 0: k(f's_add_u32 s27, s25, {i*1024}')
        k.vmem(f'buffer_load_dwordx4 {vr(RING+4*(i%RD))}, v5, s[4:7], s27 offen offset:{(i%4)*1024} sc1', f'a{i}')
    for i in range(PD): aload(i)
    nl = 4
    for i in order:
        k.vm_wait(f'a{i}')
        if i in slot: k.lg_wait(f'w{i}')
        for n in range(2):
            a = WB + 8*slot[i] + 4*n if i in slot else w2reg(i, n)
            k(f'{MF} {vr(ACC+16*n,16)}, {vr(a)}, {vr(RING+4*(i%RD))}, {"0" if i == 0 else vr(ACC+16*n,16)}')
        if i in slot and nl < len(ldsi): wread(ldsi[nl]); nl += 1
        if i + PD < 28: aload(i + PD)
    stamp(k, 14)
    def pre():
        L = k.new_label('np')
        k('s_cmp_lg_u32 s15, 0'); k(f's_cbranch_scc1 {L}')
        wq_prefetch(k)
        k.label(L)
    reduce_fin(k, ACC, 48, RES, XIN + LS, STI + LS, True, pre)
    k('s_lshr_b32 s24, s50, 1'); k('s_lshl_b32 s24, s24, 7'); k('s_and_b32 s25, s50, 1'); k('s_mul_i32 s25, s25, 7')
    k('s_add_u32 s25, s25, s51'); k('s_lshl_b32 s25, s25, 2'); k('s_add_u32 s24, s24, s25'); k('s_add_u32 s24, s24, s16')
    k(f's_add_u32 s24, s24, {F2}')
    publish(k, 24, local=True)

def xcc_check(k):
    L = k.new_label('xk')
    k('s_cmp_lg_u32 s15, 0'); k(f's_cbranch_scc1 {L}')
    k('s_lshl_b32 s18, s12, 7'); k(f's_add_u32 s18, s18, {FL + XT}')
    k('v_lshlrev_b32 v8, 2, v4')
    k('buffer_load_dword v9, v8, s[4:7], s18 offen sc1')
    k('s_waitcnt vmcnt(0)')
    k('v_cmp_ne_u32 vcc, s46, v9')
    k('s_nop 1')
    k('s_or_b32 s18, vcc_lo, vcc_hi')
    k('s_cmp_eq_u32 s18, 0'); k('s_cselect_b32 s17, 1, 0')
    k.label(L)

def gen_main():
    k = K('main_kernel', 512, 256, 163840, 256)
    prologue(k, [(72, 4, WS_BYTES), (56, 8, 2048*448*2)])
    k('v_lshrrev_b32 v3, 5, v1'); k('v_and_b32 v4, 31, v1'); k('v_lshlrev_b32 v5, 4, v1')
    k('v_add_u32 v6, 0x10000, v5'); k('v_add_u32 v7, 0x20000, v5')
    k('s_and_b32 s12, s2, 7'); k('s_lshr_b32 s13, s2, 3')
    k('s_mov_b32 s14, 0'); k('s_mov_b32 s15, 0'); k(f's_mov_b32 s16, {FL}')
    if DBG:
        DW = int(os.environ.get('DBGWG', '0'))
        k('s_load_dwordx2 s[84:85], s[0:1], 64'); k('s_mov_b32 s86, 256'); k('s_mov_b32 s87, 0x00020000')
        k('s_mov_b32 s88, 0'); k('s_mov_b32 s89, 1')
        L = k.new_label('d')
        k(f's_cmp_lg_u32 s2, {DW}'); k(f's_cbranch_scc1 {L}'); k('s_mov_b32 s89, s3'); k.label(L)
        k('s_waitcnt lgkmcnt(0)')
    stamp(k, 0)
    tl_roles(k)
    k('s_mov_b32 s17, 0')
    if FAST:
        L = k.new_label('xc')
        k('s_getreg_b32 s46, hwreg(HW_REG_XCC_ID, 0, 4)'); k('s_add_u32 s46, s46, 1')
        k('s_cmp_lg_u32 s3, 0'); k(f's_cbranch_scc1 {L}')
        k('s_lshl_b32 s18, s12, 7'); k('s_lshl_b32 s19, s13, 2'); k('s_add_u32 s18, s18, s19'); k(f's_add_u32 s18, s18, {FL + XT}')
        k('v_mov_b32 v9, s46')
        k('s_mov_b32 exec_lo, 1'); k('s_mov_b32 exec_hi, 0')
        k('buffer_store_dword v9, off, s[4:7], s18 sc1')
        k('s_mov_b32 exec_lo, -1'); k('s_mov_b32 exec_hi, -1')
        k.label(L)
    wq_prefetch(k)
    TOP = k.new_label('top'); IDLE = k.new_label('idle'); NEXT = k.new_label('next'); END = k.name + '_end'
    k.label(TOP)
    def stopchk(ph):
        if STOP < 5 and ph == STOP: k(f's_branch {END}')
        elif STOP >= 5 and STOP < 10 and ph == STOP - 5:
            k('s_cmp_eq_u32 s15, 1'); k(f's_cbranch_scc1 {END}')
    qkv(k); stopchk(0)
    attn(k); stopchk(1)
    k('s_cmp_ge_u32 s13, 28'); k(f's_cbranch_scc1 {IDLE}')
    wo(k); stopchk(2)
    ffn1(k); stopchk(3)
    ffn2(k); stopchk(4)
    k(f's_branch {NEXT}')
    k.label(IDLE)
    if STOP < 5: k(f's_branch {END}')
    k('s_cmp_lg_u32 s15, 0'); k(f's_cbranch_scc1 {END}')
    wq_prefetch(k)
    k.label(NEXT)
    stamp(k, 15)
    k('s_cmp_lg_u32 s15, 0'); k(f's_cbranch_scc1 {END}')
    k('s_mov_b32 s15, 1'); k(f's_mov_b32 s14, 0x{LS:x}'); k(f's_mov_b32 s16, {FL + FLS}')
    if DBG: k('s_mov_b32 s88, 64')
    k(f's_branch {TOP}')
    k.label(END)
    k('s_endpgm')
    return k

def build(path):
    p = gen_prep(); m = gen_main()
    return emit_file([p, m], [NAME + '_kernel', 'main_kernel'], path)
if __name__ == '__main__':
    build(sys.argv[1] if len(sys.argv) > 1 else 'p1.s')
```

```python
from g2a import *
DBG = os.environ.get('K2DEBUG', '0') == '1'
STOP = int(os.environ.get('STOP', '99'))
LWQ = 65536; LCS = LWQ + 86016; LSC = LCS + 512
LWO = 69632; LFLAG = 159744; LM = LFLAG + 64
LC1 = 57344; LST = LC1 + 2048; LE = 65536
POLLMAX = 1 << 15
STN = []
SKIP = set(os.environ.get('STSKIP', '').split(','))
def stamp(k, name):
    if not DBG or name in SKIP: return
    i = len(STN); STN.append(name)
    assert i < 32
    k('s_memtime s[90:91]'); k(f's_add_u32 s92, s88, {i}'); k('s_waitcnt lgkmcnt(0)'); k.lg = []
    k('v_writelane_b32 v2, s90, s92')
def poll(k, s_addr, n):
    L, Ld, Lt = k.new_label('pl'), k.new_label('pl'), k.new_label('pl')
    k('s_cmp_lg_u32 s3, 0'); k(f's_cbranch_scc1 {Ld}')
    k(f's_mov_b32 exec_lo, 0x{(1 << n) - 1:x}'); k('s_mov_b32 exec_hi, 0')
    k('v_lshlrev_b32 v8, 2, v1'); k('s_mov_b32 s18, 0')
    k.label(L)
    k(f'buffer_load_dword v9, v8, s[4:7], s{s_addr} offen sc1')
    k('s_waitcnt vmcnt(0)')
    k('v_cmp_eq_u32 vcc, 0, v9')
    k('s_add_u32 s18, s18, 1')
    k('s_nop 0')
    k('s_cmp_eq_u32 vcc_lo, 0'); k(f's_cbranch_scc1 {Lt}')
    k(f's_cmp_ge_u32 s18, {POLLMAX}'); k(f's_cbranch_scc1 {Lt}')
    k('s_sleep 1'); k(f's_branch {L}')
    k.label(Lt)
    k('s_mov_b32 exec_lo, -1'); k('s_mov_b32 exec_hi, -1')
    k.label(Ld)
    k('s_barrier')
FAST = os.environ.get('FAST', '1') == '1'
XT = 0x3800
def hstore(k, txts, tag=None):
    if not FAST:
        for t in txts: k.vmem(t + ' sc1', tag)
        return
    Ls, Lj = k.new_label('hs'), k.new_label('hs')
    k('s_cmp_eq_u32 s17, 0'); k(f's_cbranch_scc1 {Ls}')
    for t in txts: k(t)
    k(f's_branch {Lj}')
    k.label(Ls)
    for t in txts: k.vmem(t + ' sc1', tag)
    k.label(Lj)
def publish(k, s_addr, local=False, skip_hi=False):
    if skip_hi:
        Lh = k.new_label('ph'); k('s_cmp_ge_u32 s3, 4'); k(f's_cbranch_scc1 {Lh}')
    k('s_waitcnt vmcnt(0)'); k.vm = []
    if skip_hi: k.label(Lh)
    stamp(k, 'drain')
    k('s_barrier')
    Ld = k.new_label('pb')
    k('s_cmp_lg_u32 s3, 0'); k(f's_cbranch_scc1 {Ld}')
    k('s_mov_b32 exec_lo, 1'); k('s_mov_b32 exec_hi, 0')
    k('v_mov_b32 v9, 1')
    if local: hstore(k, [f'buffer_store_dword v9, off, s[4:7], s{s_addr}'])
    else: k(f'buffer_store_dword v9, off, s[4:7], s{s_addr} sc1')
    k.vm = []
    k('s_mov_b32 exec_lo, -1'); k('s_mov_b32 exec_hi, -1')
    k.label(Ld)
    stamp(k, 'flag')
def stats_load(k, s_off, vb, vaddr):
    k(f'v_mul_u32_u24 v{vaddr}, {7*512}, v3'); k(f'v_lshl_add_u32 v{vaddr}, v4, 4, v{vaddr}')
    for i in range(7):
        k.vmem(f'buffer_load_dwordx4 {vr(vb+4*i)}, v{vaddr}, s[4:7], s{s_off} offen offset:{i*512} sc1', 'st')
def stats_finish(k, vb, rs, mr, tmp):
    for i in range(1, 7):
        for j in range(4): k(f'v_add_f32 v{vb+j}, v{vb+j}, v{vb+4*i+j}')
    k(f'v_add_f32 v{vb}, v{vb}, v{vb+2}'); k(f'v_add_f32 v{vb+1}, v{vb+1}, v{vb+3}')
    half_sum(k, vb, tmp); half_sum(k, vb+1, tmp)
    k(f'v_mul_f32 v{vb}, {fl(1/448)}, v{vb}'); k(f'v_mul_f32 v{vb+1}, {fl(1/448)}, v{vb+1}')
    k(f'v_fma_f32 v{vb+1}, -v{vb}, v{vb}, v{vb+1}')
    k(f'v_max_f32 v{vb+1}, 0, v{vb+1}'); k(f'v_add_f32 v{vb+1}, {fl(1e-5)}, v{vb+1}')
    k(f'v_rsq_f32 v{rs}, v{vb+1}'); k.nop(1)
    k(f'v_mul_f32 v{mr}, v{vb}, v{rs}'); k(f'v_sub_f32 v{mr}, 0, v{mr}')
def ldsr(dst, off):
    b = off >> 16
    return f'ds_read_b128 {vr(dst)}, v{5+b} offset:{off & 0xffff}'
MF = 'v_mfma_f32_32x32x16_bf16'

def wq_prefetch(k):
    k('s_lshr_b32 s18, s13, 1')
    k(f's_mul_i32 s19, s18, 86016'); k(f's_add_u32 s19, s19, 0x{WQ:x}')
    k('s_lshl_b32 s20, s3, 10'); k('s_add_u32 s19, s19, s20'); k(f's_add_u32 s20, s20, {LWQ}')
    for i in range(11):
        L = None
        if i == 10:
            L = k.new_label('wq'); k('s_cmp_ge_u32 s3, 4'); k(f's_cbranch_scc1 {L}')
        k(f's_add_u32 m0, s20, {8192*i}'); k(f's_add_u32 s21, s19, {8192*i}')
        k('buffer_load_dwordx4 v5, s[4:7], s21 offen lds')
    L2 = k.new_label('wq'); k(f's_branch {L2}')
    k.label(L)
    k('s_cmp_lg_u32 s3, 4'); k(f's_cbranch_scc1 {L2}')
    k('s_lshl_b32 s21, s18, 9'); k(f's_add_u32 s21, s21, 0x{CSQ:x}')
    k(f's_mov_b32 m0, {LCS}'); k('s_mov_b32 exec_hi, 0')
    k('buffer_load_dwordx4 v5, s[4:7], s21 offen lds')
    k('s_mov_b32 exec_hi, -1')
    k.label(L2)

def w1reg(ks): return 176 + 4*ks if ks < 20 else 96 + 4*(ks - 20)
def w1pf(k, ks):
    k(f's_add_u32 s55, s54, {(ks//4)*4096}')
    k.vmem(f'buffer_load_dwordx4 {vr(w1reg(ks))}, v5, s[4:7], s55 offen offset:{(ks%4)*1024}', 'pf')
def tl_roles(k):
    k('s_and_b32 s50, s13, 3'); k('s_lshl_b32 s51, s12, 2'); k('s_add_u32 s50, s50, s51'); k('s_lshr_b32 s51, s13, 2')
    k('s_lshl_b32 s54, s51, 3'); k('s_add_u32 s54, s54, s3'); k(f's_mul_i32 s54, s54, {28*1024}'); k(f's_add_u32 s54, s54, 0x{W1:x}')

def qkv(k):
    XF, WB, AQ, AK, AV, SB = 16, 72, 96, 112, 128, 144
    Lhi = k.new_label('qh')
    Lend = k.new_label('qe')
    k('s_and_b32 s22, s13, 1'); k('s_lshl_b32 s23, s12, 1'); k('s_add_u32 s22, s22, s23'); k('s_lshr_b32 s23, s13, 1')
    Ln = k.new_label('q0')
    k('s_cmp_eq_u32 s15, 0'); k(f's_cbranch_scc1 {Ln}')
    k('s_lshl_b32 s24, s22, 7'); k(f's_add_u32 s24, s24, {FL + F2}')
    k('s_waitcnt vmcnt(0)')
    poll(k, 24, 14)
    Lg = k.new_label('q1'); k(f's_branch {Lg}')
    k.label(Ln); k('s_waitcnt vmcnt(0)'); k('s_barrier'); k.label(Lg)
    stamp(k, 'q.sync')
    k('s_cmp_ge_u32 s3, 4'); k(f's_cbranch_scc1 {Lhi}')
    k('s_lshl_b32 s25, s22, 2'); k('s_add_u32 s25, s25, s3')
    k(f's_mul_i32 s26, s25, {28*1024}'); k('s_add_u32 s26, s26, s14'); k(f's_add_u32 s26, s26, 0x{XIN:x}')
    k(f's_mul_i32 s27, s25, {STB}'); k('s_add_u32 s27, s27, s14'); k(f's_add_u32 s27, s27, 0x{STI:x}')
    DEPTH = 14
    def xload(ks):
        if ks % 4 == 0: k(f's_add_u32 s21, s26, {ks*1024}')
        k.vmem(f'buffer_load_dwordx4 {vr(XF+4*(ks%DEPTH))}, v5, s[4:7], s21 offen offset:{(ks%4)*1024} sc1', f'x{ks}')
    def wread(ks):
        b = WB + 12 * (ks % 2)
        for i in range(3): k.ds(ldsr(b+4*i, LWQ + (ks*3+i)*1024), f'w{ks}')
    for ks in range(DEPTH): xload(ks)
    stats_load(k, 27, SB, 0)
    wread(0)
    nxt = DEPTH; npf = 0
    for ks in range(28):
        if ks + 1 < 28: wread(ks + 1)
        k.vm_wait(f'x{ks}'); k.lg_wait(f'w{ks}')
        b = WB + 12 * (ks % 2); x = vr(XF + 4*(ks%DEPTH))
        c = lambda A: '0' if ks == 0 else vr(A, 16)
        k(f'{MF} {vr(AQ,16)}, {vr(b)}, {x}, {c(AQ)}')
        k(f'{MF} {vr(AK,16)}, {vr(b+4)}, {x}, {c(AK)}')
        k(f'{MF} {vr(AV,16)}, {x}, {vr(b+8)}, {c(AV)}')
        if nxt < 28:
            if nxt % 4 and ks == 0: k(f's_add_u32 s21, s26, {(nxt//4)*4096}')
            xload(nxt); nxt += 1
    k('s_barrier')
    stamp(k, 'q.mfma')
    k.vm_wait()
    RS, MR = 8, 9
    stats_finish(k, SB, RS, MR, 10)
    k('s_lshl_b32 s28, s3, 8'); k(f's_add_u32 s28, s28, {LSC}')
    k('v_lshlrev_b32 v10, 3, v4'); k('v_add_u32 v10, s28, v10')
    k(f'ds_write_b64 v10, v[{RS}:{MR}]')
    k('v_lshlrev_b32 v11, 6, v3'); k(f'v_add_u32 v11, {LCS}, v11')
    for i in range(4): k(f'ds_read_b128 {vr(16+4*i)}, v11 offset:{16*i}')
    for i in range(4): k(f'ds_read_b128 {vr(32+4*i)}, v11 offset:{128+16*i}')
    k('v_lshlrev_b32 v11, 2, v4'); k(f'v_add_u32 v11, {LCS+256}, v11')
    k('ds_read_b32 v48, v11')
    k('s_waitcnt lgkmcnt(0)')
    k('v_lshlrev_b32 v11, 5, v3'); k('v_add_u32 v11, s28, v11')
    for g in range(4):
        k(f'ds_read_b128 {vr(64+8*g)}, v11 offset:{64*g}')
        k(f'ds_read_b128 {vr(64+8*g+4)}, v11 offset:{64*g+16}')
    SC = (28 ** -0.5) * LOG2E
    k(f'v_mul_f32 v14, {fl(SC)}, v{RS}'); k(f'v_mul_f32 v15, {fl(SC)}, v{MR}')
    k('v_mov_b32 v12, 0'); k('v_mov_b32 v13, 0')
    for r in range(16): k(f'v_mul_f32 v{16+r}, v15, v{16+r}')
    for r in range(16): k(f'v_fma_f32 v{AQ+r}, v14, v{AQ+r}, v{16+r}')
    for r in range(16): k(f'v_mul_f32 v{32+r}, v{MR}, v{32+r}')
    for r in range(16): k(f'v_fma_f32 v{AK+r}, v{RS}, v{AK+r}, v{32+r}')
    k('v_mov_b32 v10, 0'); k('v_mov_b32 v11, 0')
    for r in range(0, 16, 2):
        k(f'v_fmac_f32 v12, v{AQ+r}, v{AQ+r}'); k(f'v_fmac_f32 v13, v{AK+r}, v{AK+r}')
        k(f'v_fmac_f32 v10, v{AQ+r+1}, v{AQ+r+1}'); k(f'v_fmac_f32 v11, v{AK+r+1}, v{AK+r+1}')
    k('v_add_f32 v12, v12, v10'); k('v_add_f32 v13, v13, v11')
    half_sum(k, 12, 10); half_sum(k, 13, 10)
    k('v_sqrt_f32 v12, v12'); k.nop(1)
    k('s_mov_b32 exec_lo, 0')
    k(f'v_mov_b32 v{AQ+14}, v12'); k(f'v_mov_b32 v{AK+12}, 1.0'); k(f'v_mov_b32 v{AK+13}, 1.0')
    k('s_mov_b32 exec_lo, -1')
    wave_max(k, 13)
    k('v_cmp_eq_u32 vcc, 28, v4'); k('v_mov_b32 v49, 0'); k('v_mov_b32 v50, 1.0'); k.nop(1)
    k('v_cndmask_b32 v49, v49, v50, vcc')
    k('s_waitcnt lgkmcnt(0)')
    for r in range(16):
        g, i = r >> 2, r & 3
        k(f'v_fma_f32 v{64+8*g+2*i+1}, v{64+8*g+2*i+1}, v48, v49')
    for r in range(16):
        g, i = r >> 2, r & 3
        k(f'v_fma_f32 v{AV+r}, v{64+8*g+2*i}, v{AV+r}, v{64+8*g+2*i+1}')
    for A, d in ((AQ, 16), (AK, 24), (AV, 32)):
        for i in range(8): k(f'v_cvt_pk_bf16_f32 v{d+i}, v{A+2*i}, v{A+2*i+1}')
    k('s_lshl_b32 s29, s23, 6'); k('s_add_u32 s29, s29, s25')
    k('s_lshl_b32 s30, s29, 11'); k('s_add_u32 s30, s30, s14'); k(f's_add_u32 s30, s30, 0x{QF:x}')
    k('s_lshl_b32 s31, s29, 12'); k('s_add_u32 s31, s31, s14'); k(f's_add_u32 s31, s31, 0x{KVF:x}')
    k('s_lshl_b32 s32, s29, 2'); k('s_add_u32 s32, s32, s14'); k(f's_add_u32 s32, s32, 0x{KN:x}')
    for i in range(4): k(f'buffer_store_dwordx4 {vr(24+4*i)}, v5, s[4:7], s31 offen offset:{1024*i} sc1')
    k(f'buffer_store_dwordx4 v[16:19], v5, s[4:7], s30 offen sc1')
    k(f'buffer_store_dwordx4 v[20:23], v5, s[4:7], s30 offen offset:1024 sc1')
    k('s_mov_b32 exec_lo, 0'); k('s_mov_b32 exec_hi, 0x80000000')
    k('buffer_store_dword v13, off, s[4:7], s32 sc1')
    k('s_mov_b32 exec_lo, -1'); k('s_mov_b32 exec_hi, -1')
    k(f's_branch {Lend}')
    k.label(Lhi)
    sv = list(k.vm)
    k('s_barrier')
    k('s_lshl_b32 s52, s51, 16'); k('s_sub_u32 s53, s3, 4'); k('s_lshl_b32 s53, s53, 10'); k('s_add_u32 s52, s52, s53')
    k(f's_add_u32 s52, s52, 0x{WO:x}'); k(f's_add_u32 s53, s53, {LWO}')
    for n in range(16):
        k(f's_add_u32 m0, s53, {4096*n}'); k(f's_add_u32 s55, s52, {4096*n}')
        k('buffer_load_dwordx4 v5, s[4:7], s55 offen lds')
    k.vm = sv
    k.label(Lend)
    k.lg = []
    k('s_lshl_b32 s24, s23, 7'); k('s_lshl_b32 s25, s22, 2'); k('s_add_u32 s24, s24, s25'); k('s_add_u32 s24, s24, s16')
    stamp(k, 'q.epi')
    publish(k, 24, skip_hi=True)

def attn(k):
    Q, KV, S, P, O, C = 16, 32, 96, 128, 144, 14
    D = 4
    k('s_and_b32 s20, s13, 1'); k('s_lshl_b32 s22, s12, 1'); k('s_add_u32 s22, s22, s20')
    k('s_lshr_b32 s21, s13, 1')
    k('s_lshl_b32 s24, s22, 7'); k('s_add_u32 s24, s24, s16')
    poll(k, 24, 16)
    stamp(k, 'a.sync')
    k('s_and_b32 s23, s3, 1'); k('s_lshr_b32 s24, s3, 1')
    k('s_lshl_b32 s25, s21, 2'); k('s_lshl_b32 s26, s23, 1'); k('s_add_u32 s25, s25, s26')
    k('s_lshl_b32 s27, s22, 6')
    k('s_add_u32 s28, s27, s25'); k('s_lshl_b32 s28, s28, 11'); k('s_add_u32 s28, s28, s14'); k(f's_add_u32 s28, s28, 0x{QF:x}')
    k('s_lshl_b32 s29, s24, 4'); k('s_add_u32 s29, s29, s27'); k('s_lshl_b32 s29, s29, 12')
    k('s_add_u32 s29, s29, s14'); k(f's_add_u32 s29, s29, 0x{KVF:x}')
    k('s_lshl_b32 s30, s27, 2'); k('s_add_u32 s30, s30, s14'); k(f's_add_u32 s30, s30, 0x{KN:x}')
    k('v_lshlrev_b32 v0, 2, v1')
    if FAST:
        k('s_lshl_b32 s18, s12, 7'); k(f's_add_u32 s18, s18, {FL + XT}'); k('v_lshlrev_b32 v8, 2, v4')
        k.vmem('buffer_load_dword v12, v8, s[4:7], s18 offen sc1', 'kn')
    k.vmem('buffer_load_dword v11, v0, s[4:7], s30 offen sc1', 'kn')
    for i in range(4): k.vmem(f'buffer_load_dwordx4 {vr(Q+4*i)}, v5, s[4:7], s28 offen offset:{1024*i} sc1', 'q')
    k('v_mov_b32 v8, 0'); k(f'v_mov_b32 v9, {LFLAG}'); k('ds_write_b32 v9, v8')
    k('s_mov_b32 s40, 0')
    def kvload(kb):
        b = KV + 16 * (kb % D)
        k(f's_add_u32 s31, s29, {kb*4096}')
        for i in range(4):
            k.vmem(f'buffer_load_dwordx4 {vr(b+4*i)}, v5, s[4:7], s31 offen offset:{1024*i}', f'k{kb}' if i < 2 else f'v{kb}')
    for kb in range(D): kvload(kb)
    k.vm_wait('kn')
    if FAST:
        k('v_cmp_ne_u32 vcc, s46, v12'); k('s_nop 1')
        k('s_or_b32 s18, vcc_lo, vcc_hi'); k('s_cmp_eq_u32 s18, 0'); k('s_cselect_b32 s17, 1, 0')
    wave_max(k, 11); k.nop(1)
    k('v_readlane_b32 s32, v11, 63'); k.nop(2)
    k('v_sqrt_f32 v11, s32'); k.nop(1)
    k(f'v_mul_f32 v11, {fl(1.0+1/64)}, v11')
    k.vm_wait('q')
    def set_shift(q, cv):
        d = Q + 8*q + 4 + 2
        k(f'v_cvt_pk_bf16_f32 v8, v{cv}, v{cv}'); k('v_and_b32 v8, 0xffff0000, v8')
        k(f'v_sub_f32 v9, v{cv}, v8'); k(f'v_cvt_pk_bf16_f32 v10, v9, v9'); k('v_and_b32 v10, 0xffff0000, v10')
        k(f'v_add_f32 v{cv}, v8, v10'); k('v_cvt_pk_bf16_f32 v9, -v8, -v10')
        k('s_mov_b32 exec_lo, 0'); k(f'v_mov_b32 v{d}, v9'); k('s_mov_b32 exec_lo, -1')
    for q in range(2):
        k(f'v_lshlrev_b32 v{C+q}, 16, v{Q+8*q+4+3}'); k(f'v_mul_f32 v{C+q}, v{C+q}, v11')
        set_shift(q, C+q)
    MAIN = k.new_label('main'); FIN = k.new_label('fin')
    k.label(MAIN)
    NT = 32
    def smf(n, which):
        kb, q = n >> 1, n & 1
        b = KV + 16*(kb % D); s = S + 16*(n % 2)
        if which == 0: return f'{MF} {vr(s,16)}, {vr(b)}, {vr(Q+8*q)}, 0'
        return f'{MF} {vr(s,16)}, {vr(b+4)}, {vr(Q+8*q+4)}, {vr(s,16)}'
    def pmf(n, which):
        kb, q = n >> 1, n & 1
        b = KV + 16*(kb % D) + 8; p = P + 8*(n % 2); o = O + 16*q
        c = '0' if (n < 2 and which == 0) else vr(o, 16)
        return f'{MF} {vr(o,16)}, {vr(b+4*which)}, {vr(p+4*which)}, {c}'
    k.vm_wait('k0')
    stamp(k, 'a.k0')
    k.nop(2); k(smf(0, 0)); k(smf(0, 1)); k.nop(16)
    PRIO = os.environ.get('APRIO', '1') == '1'
    for n in range(NT + 1):
        if PRIO and n % 8 == 0 and n < NT: k(f's_setprio {3 - n//8}')
        valu = []
        if n < NT:
            s = S + 16*(n % 2); p = P + 8*(n % 2)
            valu = [f'v_exp_f32 v{s+r}, v{s+r}' for r in range(16)]
            valu += [f'v_cvt_pk_bf16_f32 v{p+i}, v{s+2*i}, v{s+2*i+1}' for i in range(8)]
        mf = []
        if n + 1 < NT:
            if (n + 1) % 2 == 0: k.vm_wait(f'k{(n+1)>>1}')
            mf += [smf(n+1, 0), smf(n+1, 1)]
        if n >= 1:
            k.vm_wait(f'v{(n-1)>>1}')
            mf += [pmf(n-1, 0), pmf(n-1, 1)]
        if n == NT: k.nop(2)
        pos = [0, 6, 12, 18] if len(mf) == 4 else ([0, 6] if n == 0 else [12, 18])
        mi = 0
        if not valu:
            for m in mf: k(m)
        else:
            for i, v in enumerate(valu):
                while mi < len(mf) and pos[mi] == i:
                    k(mf[mi]); mi += 1
                k(v)
        if n >= 1 and (n - 1) % 2 == 1:
            kbn = ((n - 1) >> 1) + D
            if kbn < 16: kvload(kbn)
        if 2 <= n < 22: w1pf(k, n - 2)
    for ks in range(20, 28): w1pf(k, ks)
    k.nop(8)
    stamp(k, 'a.main')
    k('s_lshl_b32 s33, s3, 13'); k('v_add_u32 v8, s33, v5')
    for q in range(2):
        for i in range(4): k(f'ds_write_b128 v8, {vr(O+16*q+4*i)} offset:{q*4096+i*1024}')
    k('s_waitcnt lgkmcnt(0)'); k('s_barrier')
    k('s_lshr_b32 s34, s24, 1'); k('s_and_b32 s35, s24, 1')
    k('s_lshl_b32 s36, s23, 13'); k('s_lshl_b32 s37, s34, 12'); k('s_add_u32 s36, s36, s37')
    k('s_lshl_b32 s37, s35, 11'); k('s_add_u32 s37, s37, s36')
    k('v_add_u32 v8, s37, v5')
    k('v_lshlrev_b32 v9, 4, v4'); k(f'v_add_u32 v9, {3*1024 + 32*16}, v9'); k('v_add_u32 v9, s36, v9')
    for j in range(4):
        k(f'ds_read_b128 {vr(32+8*j)}, v8 offset:{j*16384}')
        k(f'ds_read_b128 {vr(36+8*j)}, v8 offset:{j*16384+1024}')
        k(f'ds_read_b32 v{64+j}, v9 offset:{j*16384}')
    k('s_waitcnt lgkmcnt(0)')
    for j in range(1, 4):
        for r in range(8): k(f'v_add_f32 v{32+r}, v{32+r}, v{32+8*j+r}')
        k(f'v_add_f32 v64, v64, v{64+j}')
    k('v_rcp_f32 v65, v64')
    k(f'v_mov_b32 v66, {fl(2.0**-80)}'); k('v_cmp_nge_f32 vcc, v64, v66')
    k(f'v_mov_b32 v66, {fl(2.0**100)}'); k('v_cmp_nle_f32 s[38:39], v64, v66')
    for r in range(8): k(f'v_mul_f32 v{32+r}, v{32+r}, v65')
    for i in range(4): k(f'v_cvt_pk_bf16_f32 v{40+i}, v{32+2*i}, v{32+2*i+1}')
    k('s_add_u32 s41, s25, s34'); k('s_lshl_b32 s41, s41, 5'); k('s_lshl_b32 s42, s22, 1')
    k('s_add_u32 s41, s41, s42'); k('s_add_u32 s41, s41, s35'); k('s_lshl_b32 s41, s41, 10')
    k('s_add_u32 s41, s41, s14'); k(f's_add_u32 s41, s41, 0x{OF:x}')
    k('buffer_store_dwordx4 v[40:43], v5, s[4:7], s41 offen sc1')
    k('s_or_b64 vcc, vcc, s[38:39]')
    Lok = k.new_label('ok')
    k(f's_cbranch_vccz {Lok}')
    k('v_mov_b32 v8, 1'); k(f'v_mov_b32 v9, {LFLAG}'); k('ds_write_b32 v9, v8')
    k.label(Lok)
    stamp(k, 'a.st')
    k('s_waitcnt vmcnt(0) lgkmcnt(0)'); k.vm = []
    stamp(k, 'a.drain')
    k('s_barrier')
    k(f'v_mov_b32 v9, {LFLAG}'); k('ds_read_b32 v8, v9'); k('s_waitcnt lgkmcnt(0)'); k('s_nop 0')
    k('v_readfirstlane_b32 s43, v8')
    k('s_cmp_eq_u32 s43, 0'); k(f's_cbranch_scc1 {FIN}')
    k('s_cmp_lg_u32 s40, 0'); k(f's_cbranch_scc1 {FIN}')
    k('s_mov_b32 s40, 1')
    k(f'v_mov_b32 v66, 0xff800000'); k(f'v_mov_b32 v67, 0xff800000')
    k('s_mov_b32 s44, 0')
    LP = k.new_label('mx'); k.label(LP)
    k('s_lshl_b32 s45, s44, 12'); k('s_add_u32 s45, s45, s29')
    k(f'buffer_load_dwordx4 {vr(KV)}, v5, s[4:7], s45 offen')
    k(f'buffer_load_dwordx4 {vr(KV+4)}, v5, s[4:7], s45 offen offset:1024')
    k('s_waitcnt vmcnt(0)')
    for q in range(2):
        s = 64 + 0 if False else 48 + 0
    for q in range(2):
        s = 128 + 16*q
        k(f'{MF} {vr(s,16)}, {vr(KV)}, {vr(Q+8*q)}, 0'); k(f'{MF} {vr(s,16)}, {vr(KV+4)}, {vr(Q+8*q+4)}, {vr(s,16)}')
    k.nop(20)
    for q in range(2):
        s = 128 + 16*q
        for r in range(0, 16, 2): k(f'v_max3_f32 v{66+q}, v{66+q}, v{s+r}, v{s+r+1}')
    k('s_add_u32 s44, s44, 1'); k('s_cmp_lt_u32 s44, 16'); k(f's_cbranch_scc1 {LP}')
    for q in range(2):
        k(f'v_mov_b32 v68, v{66+q}'); k.nop(2)
        k(f'v_permlane32_swap_b32 v{66+q}, v68'); k.nop(1)
        k(f'v_max_f32 v{66+q}, v{66+q}, v68')
    k('s_lshl_b32 s45, s3, 8'); k(f's_add_u32 s45, s45, {LM}')
    k('v_lshlrev_b32 v8, 2, v4'); k('v_add_u32 v9, s45, v8')
    k('ds_write_b32 v9, v66'); k('ds_write_b32 v9, v67 offset:128')
    k('s_waitcnt lgkmcnt(0)'); k('s_barrier')
    k('s_lshl_b32 s45, s23, 8'); k(f's_add_u32 s45, s45, {LM}'); k('v_add_u32 v9, s45, v8')
    for j in range(4):
        k(f'ds_read_b32 v{32+2*j}, v9 offset:{j*512}'); k(f'ds_read_b32 v{33+2*j}, v9 offset:{j*512+128}')
    k(f'v_mov_b32 v8, 0'); k(f'v_mov_b32 v10, {LFLAG}'); k('ds_write_b32 v10, v8')
    k('s_waitcnt lgkmcnt(0)')
    for q in range(2):
        k(f'v_max3_f32 v{32+q}, v{32+q}, v{34+q}, v{36+q}'); k(f'v_max_f32 v{32+q}, v{32+q}, v{38+q}')
        k(f'v_add_f32 v{C+q}, v{C+q}, v{32+q}')
        set_shift(q, C+q)
    k('s_barrier')
    k.vm = []
    for kb in range(D): kvload(kb)
    k(f's_branch {MAIN}')
    k.label(FIN)
    k.vm = []; k.lg = []
    k('s_setprio 0')
    k('s_lshl_b32 s24, s21, 7'); k('s_lshl_b32 s25, s22, 2'); k('s_add_u32 s24, s24, s25'); k('s_add_u32 s24, s24, s16')
    k(f's_add_u32 s24, s24, {FA}')
    Ld = k.new_label('pb')
    k('s_cmp_lg_u32 s3, 0'); k(f's_cbranch_scc1 {Ld}')
    k('s_mov_b32 exec_lo, 1'); k('s_mov_b32 exec_hi, 0'); k('v_mov_b32 v9, 1')
    k(f'buffer_store_dword v9, off, s[4:7], s24 sc1')
    k('s_mov_b32 exec_lo, -1'); k('s_mov_b32 exec_hi, -1')
    k.label(Ld)
    stamp(k, 'a.end')
```

```python
from g2b import *

def wave_roles(k):
    k('s_and_b32 s56, s3, 3'); k('s_lshr_b32 s57, s3, 2')
    k('s_lshl_b32 s58, s50, 1'); k('s_add_u32 s58, s58, s57')
    k('s_lshl_b32 s59, s51, 2'); k('s_add_u32 s59, s59, s56')

def reduce_fin(k, acc, tmp, res, xdst, stdst, final_ok, pre=None):
    k.nop(16)
    k('s_barrier')
    if pre: pre()
    k('s_lshl_b32 s60, s57, 15'); k('s_lshl_b32 s61, s56, 11'); k('s_add_u32 s61, s61, s60'); k('v_add_u32 v8, s61, v5')
    for j in range(4):
        k(f'ds_write_b128 v8, {vr(acc+8*j)} offset:{j*8192}')
        k(f'ds_write_b128 v8, {vr(acc+8*j+4)} offset:{j*8192+1024}')
    k('s_lshl_b32 s61, s56, 13'); k('s_add_u32 s61, s61, s60'); k('v_add_u32 v9, s61, v5')
    k('s_mul_i32 s62, s58, 28'); k('s_add_u32 s62, s62, s59'); k('s_lshl_b32 s62, s62, 10'); k('s_add_u32 s62, s62, s14')
    k(f's_add_u32 s62, s62, 0x{xdst:x}')
    k('s_lshr_b32 s63, s59, 1'); k('s_mul_i32 s60, s58, 14'); k('s_add_u32 s63, s63, s60'); k('s_lshl_b32 s63, s63, 9')
    k('s_and_b32 s60, s59, 1'); k('s_lshl_b32 s60, s60, 3'); k('s_add_u32 s63, s63, s60'); k('s_add_u32 s63, s63, s14')
    k(f's_add_u32 s63, s63, 0x{stdst:x}')
    k('s_waitcnt lgkmcnt(0)'); k('s_barrier')
    stamp(k, 'red.w')
    for s in range(4):
        k(f'ds_read_b128 {vr(tmp+8*s)}, v9 offset:{s*2048}'); k(f'ds_read_b128 {vr(tmp+8*s+4)}, v9 offset:{s*2048+1024}')
    for i in range(4):
        k(f'v_lshlrev_b32 v{acc+2*i}, 16, v{res+i}'); k(f'v_and_b32 v{acc+2*i+1}, 0xffff0000, v{res+i}')
    for s in range(4):
        k(f's_waitcnt lgkmcnt({6-2*s})')
        for r in range(8): k(f'v_add_f32 v{acc+r}, v{acc+r}, v{tmp+8*s+r}')
    k.lg = []
    for i in range(4): k(f'v_cvt_pk_bf16_f32 v{tmp+i}, v{acc+2*i}, v{acc+2*i+1}')
    Lf, Le = k.new_label('rf'), k.new_label('re')
    if final_ok:
        k('s_cmp_lg_u32 s15, 0'); k(f's_cbranch_scc1 {Lf}')
    hstore(k, [f'buffer_store_dwordx4 {vr(tmp)}, v5, s[4:7], s62 offen'])
    k(f'v_add_f32 v8, v{acc}, v{acc+1}'); k(f'v_mul_f32 v9, v{acc}, v{acc}'); k(f'v_fmac_f32 v9, v{acc+1}, v{acc+1}')
    k(f'v_add_f32 v10, v{acc+2}, v{acc+3}'); k(f'v_mul_f32 v11, v{acc+2}, v{acc+2}'); k(f'v_fmac_f32 v11, v{acc+3}, v{acc+3}')
    for r in range(4, 8, 2):
        k(f'v_add_f32 v8, v8, v{acc+r}'); k(f'v_fmac_f32 v9, v{acc+r}, v{acc+r}')
        k(f'v_add_f32 v10, v10, v{acc+r+1}'); k(f'v_fmac_f32 v11, v{acc+r+1}, v{acc+r+1}')
    k('v_add_f32 v8, v8, v10'); k('v_add_f32 v9, v9, v11')
    half_sum(k, 8, 10); half_sum(k, 9, 10)
    k('v_lshlrev_b32 v10, 4, v4')
    k('s_mov_b32 exec_hi, 0')
    hstore(k, ['buffer_store_dwordx2 v[8:9], v10, s[4:7], s63 offen'])
    k('s_mov_b32 exec_hi, -1')
    if final_ok:
        k(f's_branch {Le}')
        k.label(Lf)
        k.nop(2)
        k(f'v_permlane32_swap_b32 v{tmp}, v{tmp+2}'); k(f'v_permlane32_swap_b32 v{tmp+1}, v{tmp+3}')
        k('v_mul_u32_u24 v10, 896, v4'); k('v_lshl_add_u32 v10, v3, 4, v10')
        k(f's_mul_i32 s62, s58, {32*896}'); k('s_lshl_b32 s63, s59, 5'); k('s_add_u32 s62, s62, s63')
        k(f'buffer_store_dwordx4 {vr(tmp)}, v10, s[8:11], s62 offen')
        k.label(Le)

def res_load(k, res, xsrc):
    k('s_mul_i32 s60, s58, 28'); k('s_add_u32 s60, s60, s59'); k('s_lshl_b32 s60, s60, 10'); k('s_add_u32 s60, s60, s14')
    k(f's_add_u32 s60, s60, 0x{xsrc:x}')
    k.vmem(f'buffer_load_dwordx4 {vr(res)}, v5, s[4:7], s60 offen sc1', 'res')

def wo(k):
    OFR, WB, ACC, RES = 16, 48, 128, 80
    wave_roles(k)
    k('s_lshr_b32 s24, s50, 1'); k('s_lshl_b32 s24, s24, 7'); k('s_add_u32 s24, s24, s16'); k(f's_add_u32 s24, s24, {FA}')
    k('s_lshl_b32 s25, s56, 13'); k(f's_add_u32 s25, s25, {LWO}'); k('v_add_u32 v12, s25, v5')
    def wread(i):
        for n in range(2): k.ds(f'ds_read_b128 {vr(WB+8*(i%4)+4*n)}, v12 offset:{n*32768+i*1024}', f'w{i}')
    for i in range(4): wread(i)
    k('s_lshl_b32 s26, s58, 5'); k('s_lshl_b32 s27, s56, 3'); k('s_add_u32 s26, s26, s27'); k('s_lshl_b32 s26, s26, 10')
    k('s_add_u32 s26, s26, s14'); k(f's_add_u32 s26, s26, 0x{OF:x}'); k('s_add_u32 s27, s26, 4096')
    poll(k, 24, 16)
    stamp(k, 'w.sync')
    for i in range(8):
        k.vmem(f'buffer_load_dwordx4 {vr(OFR+4*i)}, v5, s[4:7], s{26+i//4} offen offset:{(i%4)*1024} sc1', f'o{i}')
    res_load(k, RES, XIN)
    for i in range(8):
        k.vm_wait(f'o{i}'); k.lg_wait(f'w{i}')
        for n in range(2):
            c = '0' if i == 0 else vr(ACC+16*n, 16)
            k(f'{MF} {vr(ACC+16*n,16)}, {vr(WB+8*(i%4)+4*n)}, {vr(OFR+4*i)}, {c}')
        if i + 4 < 8: wread(i + 4)
    k.vm_wait('res')
    stamp(k, 'w.mfma')
    reduce_fin(k, ACC, 16, RES, XMID, STM, False)
    k('s_lshl_b32 s24, s50, 7'); k('s_lshl_b32 s25, s51, 2'); k('s_add_u32 s24, s24, s25'); k('s_add_u32 s24, s24, s16')
    k(f's_add_u32 s24, s24, {FW}')
    stamp(k, 'w.st')
    publish(k, 24, local=True)

def w2src(k, sdst):
    k(f's_mul_i32 s{sdst}, s51, 224'); k(f's_mul_i32 s60, s56, 28'); k(f's_add_u32 s{sdst}, s{sdst}, s60')
    k(f's_lshl_b32 s{sdst}, s{sdst}, 10'); k(f's_add_u32 s{sdst}, s{sdst}, 0x{W2:x}')
def w2reg(i, n):
    if i < 6: return 128 + 8*i + 4*n
    assert 18 <= i < 22
    return 96 + 8*(i-18) + 4*n

def ffn1(k):
    A0, A1, T, U, XB = 16, 32, 48, 64, 80
    k('s_lshl_b32 s24, s50, 7'); k('s_add_u32 s24, s24, s16'); k(f's_add_u32 s24, s24, {FW}')
    k('s_lshl_b32 s25, s51, 3'); k('s_add_u32 s25, s25, s3')
    k('s_lshl_b32 s26, s25, 8'); k(f's_add_u32 s26, s26, 0x{C1:x}')
    k('s_lshl_b32 s27, s3, 8'); k(f's_add_u32 m0, s27, {LC1}')
    k('s_mov_b32 exec_lo, 0xffff'); k('s_mov_b32 exec_hi, 0')
    k('buffer_load_dwordx4 v5, s[4:7], s26 offen lds')
    k('s_mov_b32 exec_lo, -1'); k('s_mov_b32 exec_hi, -1')
    k(f's_mul_i32 s28, s50, {56*1024}'); k('s_lshl_b32 s29, s3, 10'); k('s_add_u32 s28, s28, s29')
    k('s_add_u32 s28, s28, s14'); k(f's_add_u32 s28, s28, 0x{XMID:x}')
    w2src(k, 30); k(f's_add_u32 s31, s30, {112*1024}')
    k(f's_mul_i32 s32, s57, {112*1024}'); k('s_add_u32 s32, s32, s30')
    k('s_mul_i32 s33, s56, 24576'); k('s_lshl_b32 s34, s57, 10'); k('s_add_u32 s33, s33, s34'); k(f's_add_u32 s33, s33, {LE}')
    k('s_mul_i32 s35, s56, 12288'); k('s_add_u32 s35, s35, s34')
    poll(k, 24, 7)
    stamp(k, 'f1.sync')
    Ls = k.new_label('fs')
    k('s_cmp_ge_u32 s3, 2'); k(f's_cbranch_scc1 {Ls}')
    k('s_lshl_b32 s37, s50, 1'); k('s_add_u32 s37, s37, s3'); k(f's_mul_i32 s37, s37, {STB}'); k('s_add_u32 s37, s37, s14')
    k(f's_add_u32 s37, s37, 0x{STM:x}')
    sv = list(k.vm)
    stats_load(k, 37, 32, 0)
    k.label(Ls)
    k.vm = sv
    XS = [60, 64, 68, 72, 76, 128, 132]
    for i in range(7):
        k(f's_add_u32 s36, s28, {8192*i}')
        k.vmem(f'buffer_load_dwordx4 {vr(XS[i])}, v5, s[4:7], s36 offen sc1', f'xt{i}')
    k('v_add_u32 v15, s29, v5')
    def xt_write(lo, hi):
        for i in range(lo, hi):
            k.vm_wait(f'xt{i}')
            k.ds(f'ds_write_b128 v15, {vr(XS[i])} offset:{8192*i}', 'xw')
    def stats_fin():
        L = k.new_label('fs')
        k('s_cmp_ge_u32 s3, 2'); k(f's_cbranch_scc1 {L}')
        stats_finish(k, 32, 8, 9, 10)
        k(f'v_mul_f32 v8, {fl(LOG2E)}, v8')
        k('s_lshl_b32 s37, s3, 8'); k(f's_add_u32 s37, s37, {LST}'); k('v_lshlrev_b32 v10, 3, v4'); k('v_add_u32 v10, s37, v10')
        k('ds_write_b64 v10, v[8:9]')
        k.label(L)
    def pfe(j):
        if j < 12:
            i = 6 + j
            k(f's_add_u32 m0, s33, {2048*j}'); k(f's_add_u32 s36, s32, {1024*i}')
            k.vmem('buffer_load_dwordx4 v5, s[4:7], s36 offen lds', 'pf')
        elif j < 24:
            i, n = (j - 12) >> 1, (j - 12) & 1
            k(f's_add_u32 s36, s{30+n}, {(i//4)*4096}')
            k.vmem(f'buffer_load_dwordx4 {vr(w2reg(i,n))}, v5, s[4:7], s36 offen offset:{(i%4)*1024}', 'pf')
    def pfl(j):
        if j < 6:
            i = 22 + j
            k(f's_add_u32 m0, s35, {2048*j}'); k(f's_add_u32 s36, s32, {1024*i}')
            k.vmem('buffer_load_dwordx4 v5, s[4:7], s36 offen lds', 'pf')
        else:
            i, n = 18 + ((j - 6) >> 1), (j - 6) & 1
            k(f's_add_u32 s36, s{30+n}, {(i//4)*4096}')
            k.vmem(f'buffer_load_dwordx4 {vr(w2reg(i,n))}, v5, s[4:7], s36 offen offset:{(i%4)*1024}', 'pf')
    def xread(tb, ks): k.ds(ldsr(XB + 4*((tb*28+ks) % 4), (tb*28+ks)*1024), f'x{tb}_{ks}')
    def mish(A, tbl):
        rs, mr = 8 + 2*tbl, 9 + 2*tbl
        L = []
        for i in range(4): L.append(('ds', f'ds_read_b128 {vr(T+4*i)}, v14 offset:{16*i}', 'cs'))
        for i in range(4): L.append(('ds', f'ds_read_b128 {vr(U+4*i)}, v14 offset:{128+16*i}', 'cs'))
        L.append(('lw', 'cs'))
        V = lambda s: L.append(('v', s))
        for r in range(16): V(f'v_fma_f32 v{T+r}, v{mr}, v{T+r}, v{U+r}')
        for r in range(16): V(f'v_fma_f32 v{A+r}, v{rs}, v{A+r}, v{T+r}')
        for r in range(16): V(f'v_exp_f32 v{T+r}, v{A+r}')
        for r in range(16): V(f'v_add_f32 v{T+r}, 1.0, v{T+r}')
        for r in range(16): V(f'v_fma_f32 v{T+r}, v{T+r}, v{T+r}, 1.0')
        for r in range(16): V(f'v_rcp_f32 v{T+r}, v{T+r}')
        for r in range(16): V(f'v_fma_f32 v{T+r}, v{T+r}, v12, v13')
        for r in range(16): V(f'v_mul_f32 v{A+r}, v{A+r}, v{T+r}')
        for i in range(8): V(f'v_cvt_pk_bf16_f32 v{U+i}, v{A+2*i}, v{A+2*i+1}')
        L.append(('st', [f'buffer_store_dwordx4 {vr(U)}, v5, s[4:7], s{38+tbl} offen',
                         f'buffer_store_dwordx4 {vr(U+4)}, v5, s[4:7], s{38+tbl} offen offset:1024']))
        return L
    def emit(it):
        if it[0] == 'ds': k.ds(it[1], it[2])
        elif it[0] == 'lw': k.lg_wait(it[1])
        elif it[0] == 'st': hstore(k, it[1], 'st')
        else: k(it[1])
    k('s_mul_i32 s38, s50, 224'); k('s_lshl_b32 s39, s25, 1'); k('s_add_u32 s38, s38, s39'); k('s_lshl_b32 s38, s38, 10')
    k('s_add_u32 s38, s38, s14'); k(f's_add_u32 s38, s38, 0x{ACT:x}'); k(f's_add_u32 s39, s38, {112*1024}')
    k(f'v_mov_b32 v12, {fl(-2*LN2)}'); k(f'v_mov_b32 v13, {fl(LN2)}')
    k('v_lshlrev_b32 v14, 6, v3'); k(f'v_add_u32 v14, {LC1}, v14'); k('v_add_u32 v14, s27, v14')
    xt_write(0, 4); k.lg_wait(); k('s_barrier')
    stamp(k, 'f1.x')
    for ks in range(3): xread(0, ks)
    for ks in range(28):
        if ks + 3 < 28: xread(0, ks + 3)
        k.lg_wait(f'x0_{ks}')
        k(f'{MF} {vr(A0,16)}, {vr(w1reg(ks))}, {vr(XB+4*(ks%4))}, {"0" if ks == 0 else vr(A0,16)}')
        if ks % 2 == 1: pfe(ks // 2)
        if ks == 4: xt_write(4, 7)
        if ks == 12: stats_fin()
    k.lg_wait(); k('s_barrier')
    k('v_lshlrev_b32 v15, 3, v4'); k(f'v_add_u32 v15, {LST}, v15')
    k.ds('ds_read_b64 v[8:9], v15', 's'); k.ds('ds_read_b64 v[10:11], v15 offset:256', 's')
    for ks in range(3): xread(1, ks)
    M = mish(A0, 0); mi = 0
    per = (len(M) + 27) // 28
    for ks in range(28):
        if ks + 3 < 28: xread(1, ks + 3)
        k.lg_wait(f'x1_{ks}')
        k(f'{MF} {vr(A1,16)}, {vr(w1reg(ks))}, {vr(XB+4*((28+ks)%4))}, {"0" if ks == 0 else vr(A1,16)}')
        if ks % 2 == 1 and 14 + ks // 2 < 24: pfe(14 + ks // 2)
        for _ in range(per):
            if mi < len(M): emit(M[mi]); mi += 1
    while mi < len(M): emit(M[mi]); mi += 1
    stamp(k, 'f1.mf')
    k('s_barrier')
    for j in range(14): pfl(j)
    for it in mish(A1, 1): emit(it)
    stamp(k, 'f1.mish')
    k('s_lshl_b32 s24, s50, 7'); k('s_lshl_b32 s25, s51, 2'); k('s_add_u32 s24, s24, s25'); k('s_add_u32 s24, s24, s16')
    k(f's_add_u32 s24, s24, {F1}')
    publish(k, 24, local=True)

def ffn2(k):
    ACC, WB, RES, RING, RD = 16, 48, 80, 176, 20
    k('s_lshl_b32 s24, s50, 7'); k('s_add_u32 s24, s24, s16'); k(f's_add_u32 s24, s24, {F1}')
    k('s_mul_i32 s25, s58, 112'); k('s_mul_i32 s26, s56, 28'); k('s_add_u32 s25, s25, s26'); k('s_lshl_b32 s25, s25, 10')
    k('s_add_u32 s25, s25, s14'); k(f's_add_u32 s25, s25, 0x{ACT:x}')
    k('s_mul_i32 s26, s56, 24576'); k(f's_add_u32 s26, s26, {LE}'); k('v_add_u32 v12, s26, v5')
    k('s_mul_i32 s26, s56, 12288'); k('v_add_u32 v13, s26, v5')
    res_load(k, RES, XMID)
    order = list(range(28))
    ldsi = [i for i in order if 6 <= i < 18 or i >= 22]
    slot = {i: j % 4 for j, i in enumerate(ldsi)}
    def wread(i):
        for n in range(2):
            if i < 18: k.ds(f'ds_read_b128 {vr(WB+8*slot[i]+4*n)}, v12 offset:{(i-6)*2048+n*1024}', f'w{i}')
            else: k.ds(f'ds_read_b128 {vr(WB+8*slot[i]+4*n)}, v13 offset:{(i-22)*2048+n*1024}', f'w{i}')
    for i in ldsi[:4]: wread(i)
    poll(k, 24, 7)
    stamp(k, 'f2.sync')
    PD = 14
    def aload(i):
        if i % 4 == 0: k(f's_add_u32 s27, s25, {i*1024}')
        k.vmem(f'buffer_load_dwordx4 {vr(RING+4*(i%RD))}, v5, s[4:7], s27 offen offset:{(i%4)*1024} sc1', f'a{i}')
    for i in range(PD): aload(i)
    nl = 4
    for i in order:
        k.vm_wait(f'a{i}')
        if i in slot: k.lg_wait(f'w{i}')
        for n in range(2):
            a = WB + 8*slot[i] + 4*n if i in slot else w2reg(i, n)
            k(f'{MF} {vr(ACC+16*n,16)}, {vr(a)}, {vr(RING+4*(i%RD))}, {"0" if i == 0 else vr(ACC+16*n,16)}')
        if i in slot and nl < len(ldsi): wread(ldsi[nl]); nl += 1
        if i + PD < 28: aload(i + PD)
    stamp(k, 'f2.mf')
    def pre():
        L = k.new_label('np')
        k('s_cmp_lg_u32 s15, 0'); k(f's_cbranch_scc1 {L}')
        wq_prefetch(k)
        k.label(L)
    reduce_fin(k, ACC, 48, RES, XIN + LS, STI + LS, True, pre)
    k('s_lshr_b32 s24, s50, 1'); k('s_lshl_b32 s24, s24, 7'); k('s_and_b32 s25, s50, 1'); k('s_mul_i32 s25, s25, 7')
    k('s_add_u32 s25, s25, s51'); k('s_lshl_b32 s25, s25, 2'); k('s_add_u32 s24, s24, s25'); k('s_add_u32 s24, s24, s16')
    k(f's_add_u32 s24, s24, {F2}')
    stamp(k, 'f2.st')
    publish(k, 24, local=True)

def xcc_check(k):
    L = k.new_label('xk')
    k('s_cmp_lg_u32 s15, 0'); k(f's_cbranch_scc1 {L}')
    k('s_lshl_b32 s18, s12, 7'); k(f's_add_u32 s18, s18, {FL + XT}')
    k('v_lshlrev_b32 v8, 2, v4')
    k('buffer_load_dword v9, v8, s[4:7], s18 offen sc1')
    k('s_waitcnt vmcnt(0)')
    k('v_cmp_ne_u32 vcc, s46, v9')
    k('s_nop 1')
    k('s_or_b32 s18, vcc_lo, vcc_hi')
    k('s_cmp_eq_u32 s18, 0'); k('s_cselect_b32 s17, 1, 0')
    if os.environ.get('DELAYTEST'):
        L2 = k.new_label('dl'); L3 = k.new_label('dl')
        k('s_cmp_lg_u32 s17, 0'); k(f's_cbranch_scc1 {L3}')
        k('s_mov_b32 s18, 0')
        k.label(L2)
        k('s_sleep 8'); k('s_add_u32 s18, s18, 1'); k('s_cmp_lt_u32 s18, 80'); k(f's_cbranch_scc1 {L2}')
        k.label(L3)
    k.label(L)

def gen_main():
    k = K('main_kernel', 512, 256, 163840, 256)
    prologue(k, [(72, 4, WS_BYTES), (56, 8, 2048*448*2)])
    k('v_lshrrev_b32 v3, 5, v1'); k('v_and_b32 v4, 31, v1'); k('v_lshlrev_b32 v5, 4, v1')
    k('v_add_u32 v6, 0x10000, v5'); k('v_add_u32 v7, 0x20000, v5')
    k('s_and_b32 s12, s2, 7'); k('s_lshr_b32 s13, s2, 3')
    k('s_mov_b32 s14, 0'); k('s_mov_b32 s15, 0'); k(f's_mov_b32 s16, {FL}')
    if DBG:
        DW = int(os.environ.get('DBGWG', '0'))
        k('s_load_dwordx2 s[84:85], s[0:1], 64'); k('s_mov_b32 s86, 256'); k('s_mov_b32 s87, 0x00020000')
        k('s_mov_b32 s88, 0'); k('s_mov_b32 s89, 1')
        L = k.new_label('d')
        k(f's_cmp_lg_u32 s2, {DW}'); k(f's_cbranch_scc1 {L}'); k('s_mov_b32 s89, s3'); k.label(L)
        k('s_waitcnt lgkmcnt(0)')
        k('v_mov_b32 v2, 0')
    stamp(k, 'start')
    tl_roles(k)
    k('s_mov_b32 s17, 0')
    if FAST:
        L = k.new_label('xc')
        k('s_getreg_b32 s46, hwreg(HW_REG_XCC_ID, 0, 4)'); k('s_add_u32 s46, s46, 1')
        k('s_cmp_lg_u32 s3, 0'); k(f's_cbranch_scc1 {L}')
        k('s_lshl_b32 s18, s12, 7'); k('s_lshl_b32 s19, s13, 2'); k('s_add_u32 s18, s18, s19'); k(f's_add_u32 s18, s18, {FL + XT}')
        k('v_mov_b32 v9, s46')
        k('s_mov_b32 exec_lo, 1'); k('s_mov_b32 exec_hi, 0')
        k('buffer_store_dword v9, off, s[4:7], s18 sc1')
        k('s_mov_b32 exec_lo, -1'); k('s_mov_b32 exec_hi, -1')
        k.label(L)
    wq_prefetch(k)
    TOP = k.new_label('top'); IDLE = k.new_label('idle'); NEXT = k.new_label('next'); END = k.name + '_end'
    k.label(TOP)
    def stopchk(ph):
        if STOP < 5 and ph == STOP: k(f's_branch {END}')
        elif STOP >= 5 and STOP < 10 and ph == STOP - 5:
            k('s_cmp_eq_u32 s15, 1'); k(f's_cbranch_scc1 {END}')
    qkv(k); stopchk(0)
    attn(k); stopchk(1)
    k('s_cmp_ge_u32 s13, 28'); k(f's_cbranch_scc1 {IDLE}')
    wo(k); stopchk(2)
    ffn1(k); stopchk(3)
    ffn2(k); stopchk(4)
    k(f's_branch {NEXT}')
    k.label(IDLE)
    if STOP < 5: k(f's_branch {END}')
    k('s_cmp_lg_u32 s15, 0'); k(f's_cbranch_scc1 {END}')
    wq_prefetch(k)
    k.label(NEXT)
    stamp(k, 'end')
    k('s_cmp_lg_u32 s15, 0'); k(f's_cbranch_scc1 {END}')
    k('s_mov_b32 s15, 1'); k(f's_mov_b32 s14, 0x{LS:x}'); k(f's_mov_b32 s16, {FL + FLS}')
    if DBG: k('s_mov_b32 s88, 32')
    k(f's_branch {TOP}')
    k.label(END)
    if DBG:
        L = k.new_label('d')
        k('s_cmp_lg_u32 s89, 0'); k(f's_cbranch_scc1 {L}')
        k('v_lshlrev_b32 v8, 2, v1')
        k('buffer_store_dword v2, v8, s[84:87], 0 offen')
        k.label(L)
        k(f's_branch {k.name}_fin')
    k.label(k.name + '_fin') if False else None
    k.label(k.name + '_fin')
    k('s_endpgm')
    return k

def build(path):
    p = gen_prep(); m = gen_main()
    open(path + '.names', 'w').write(' '.join(STN))
    return emit_file([p, m], [NAME + '_kernel', 'main_kernel'], path)
if __name__ == '__main__':
    build(sys.argv[1] if len(sys.argv) > 1 else 'p1.s')
```

```python
from g2a import *
DBG = os.environ.get('K2DEBUG', '0') == '1'
STOP = int(os.environ.get('STOP', '99'))
LWQ = 65536; LCS = LWQ + 86016; LSC = LCS + 512
LWO = 69632; LFLAG = 159744; LM = LFLAG + 64
LC1 = 57344; LST = LC1 + 2048; LE = 65536
POLLMAX = 1 << 15
STN = []
SKIP = set(os.environ.get('STSKIP', '').split(','))
def stamp(k, name):
    if not DBG or name in SKIP: return
    i = len(STN); STN.append(name)
    assert i < 32
    La, Lb = k.new_label('st'), k.new_label('st')
    k('s_memtime s[90:91]'); k('s_cmp_eq_u32 s88, 0'); k('s_waitcnt lgkmcnt(0)'); k.lg = []
    k(f's_cbranch_scc1 {La}')
    k(f'v_writelane_b32 v2, s90, {32+i}'); k(f's_branch {Lb}')
    k.label(La); k(f'v_writelane_b32 v2, s90, {i}'); k.label(Lb)
def poll(k, s_addr, n):
    L, Ld, Lt = k.new_label('pl'), k.new_label('pl'), k.new_label('pl')
    k('s_cmp_lg_u32 s3, 0'); k(f's_cbranch_scc1 {Ld}')
    k(f's_mov_b32 exec_lo, 0x{(1 << n) - 1:x}'); k('s_mov_b32 exec_hi, 0')
    k('v_lshlrev_b32 v8, 2, v1'); k('s_mov_b32 s18, 0')
    k.label(L)
    k(f'buffer_load_dword v9, v8, s[4:7], s{s_addr} offen sc1')
    k('s_waitcnt vmcnt(0)')
    k('v_cmp_eq_u32 vcc, 0, v9')
    k('s_add_u32 s18, s18, 1')
    k('s_nop 0')
    k('s_cmp_eq_u32 vcc_lo, 0'); k(f's_cbranch_scc1 {Lt}')
    k(f's_cmp_ge_u32 s18, {POLLMAX}'); k(f's_cbranch_scc1 {Lt}')
    k('s_sleep 1'); k(f's_branch {L}')
    k.label(Lt)
    k('s_mov_b32 exec_lo, -1'); k('s_mov_b32 exec_hi, -1')
    k.label(Ld)
    k('s_barrier')
FAST = os.environ.get('FAST', '1') == '1'
XT = 0x3800
def hstore(k, txts, tag=None, cold0=False):
    if not FAST:
        for t in txts: k.vmem(t + ' sc1', tag)
        return
    Ls, Lj = k.new_label('hs'), k.new_label('hs')
    k(f's_cmp_eq_u32 s{48 if (cold0 and HYB) else 17}, 0'); k(f's_cbranch_scc1 {Ls}')
    for t in txts: k(t)
    k(f's_branch {Lj}')
    k.label(Ls)
    for t in txts: k.vmem(t + ' sc1', tag)
    k.label(Lj)
HYB = os.environ.get('HYB', '1') == '1'
def publish(k, s_addr, local=False, skip_hi=False):
    if skip_hi:
        Lh = k.new_label('ph'); k('s_cmp_ge_u32 s3, 4'); k(f's_cbranch_scc1 {Lh}')
    k('s_waitcnt vmcnt(0)'); k.vm = []
    if skip_hi: k.label(Lh)
    stamp(k, 'drain')
    k('s_barrier')
    Ld = k.new_label('pb')
    k('s_cmp_lg_u32 s3, 0'); k(f's_cbranch_scc1 {Ld}')
    k('s_mov_b32 exec_lo, 1'); k('s_mov_b32 exec_hi, 0')
    k('v_mov_b32 v9, 1')
    if local: hstore(k, [f'buffer_store_dword v9, off, s[4:7], s{s_addr}'])
    else: k(f'buffer_store_dword v9, off, s[4:7], s{s_addr} sc1')
    k.vm = []
    k('s_mov_b32 exec_lo, -1'); k('s_mov_b32 exec_hi, -1')
    k.label(Ld)
    stamp(k, 'flag')
def stats_load(k, s_off, vb, vaddr):
    k(f'v_mul_u32_u24 v{vaddr}, {7*512}, v3'); k(f'v_lshl_add_u32 v{vaddr}, v4, 4, v{vaddr}')
    for i in range(7):
        k.vmem(f'buffer_load_dwordx4 {vr(vb+4*i)}, v{vaddr}, s[4:7], s{s_off} offen offset:{i*512} sc1', 'st')
def stats_finish(k, vb, rs, mr, tmp):
    for i in range(1, 7):
        for j in range(4): k(f'v_add_f32 v{vb+j}, v{vb+j}, v{vb+4*i+j}')
    k(f'v_add_f32 v{vb}, v{vb}, v{vb+2}'); k(f'v_add_f32 v{vb+1}, v{vb+1}, v{vb+3}')
    half_sum(k, vb, tmp); half_sum(k, vb+1, tmp)
    k(f'v_mul_f32 v{vb}, {fl(1/448)}, v{vb}'); k(f'v_mul_f32 v{vb+1}, {fl(1/448)}, v{vb+1}')
    k(f'v_fma_f32 v{vb+1}, -v{vb}, v{vb}, v{vb+1}')
    k(f'v_max_f32 v{vb+1}, 0, v{vb+1}'); k(f'v_add_f32 v{vb+1}, {fl(1e-5)}, v{vb+1}')
    k(f'v_rsq_f32 v{rs}, v{vb+1}'); k.nop(1)
    k(f'v_mul_f32 v{mr}, v{vb}, v{rs}'); k(f'v_sub_f32 v{mr}, 0, v{mr}')
def ldsr(dst, off):
    b = off >> 16
    return f'ds_read_b128 {vr(dst)}, v{5+b} offset:{off & 0xffff}'
MF = 'v_mfma_f32_32x32x16_bf16'

def wq_prefetch(k):
    k('s_lshr_b32 s18, s13, 1')
    k(f's_mul_i32 s19, s18, 86016'); k(f's_add_u32 s19, s19, 0x{WQ:x}')
    k('s_lshl_b32 s20, s3, 10'); k('s_add_u32 s19, s19, s20'); k(f's_add_u32 s20, s20, {LWQ}')
    for i in range(11):
        L = None
        if i == 10:
            L = k.new_label('wq'); k('s_cmp_ge_u32 s3, 4'); k(f's_cbranch_scc1 {L}')
        k(f's_add_u32 m0, s20, {8192*i}'); k(f's_add_u32 s21, s19, {8192*i}')
        k('buffer_load_dwordx4 v5, s[4:7], s21 offen lds')
    L2 = k.new_label('wq'); k(f's_branch {L2}')
    k.label(L)
    k('s_cmp_lg_u32 s3, 4'); k(f's_cbranch_scc1 {L2}')
    k('s_lshl_b32 s21, s18, 9'); k(f's_add_u32 s21, s21, 0x{CSQ:x}')
    k(f's_mov_b32 m0, {LCS}'); k('s_mov_b32 exec_hi, 0')
    k('buffer_load_dwordx4 v5, s[4:7], s21 offen lds')
    k('s_mov_b32 exec_hi, -1')
    k.label(L2)

def w1reg(ks): return 176 + 4*ks if ks < 20 else 96 + 4*(ks - 20)
def w1pf(k, ks):
    k(f's_add_u32 s55, s54, {(ks//4)*4096}')
    k.vmem(f'buffer_load_dwordx4 {vr(w1reg(ks))}, v5, s[4:7], s55 offen offset:{(ks%4)*1024}', 'pf')
def tl_roles(k):
    k('s_and_b32 s50, s13, 3'); k('s_lshl_b32 s51, s12, 2'); k('s_add_u32 s50, s50, s51'); k('s_lshr_b32 s51, s13, 2')
    k('s_lshl_b32 s54, s51, 3'); k('s_add_u32 s54, s54, s3'); k(f's_mul_i32 s54, s54, {28*1024}'); k(f's_add_u32 s54, s54, 0x{W1:x}')

HOOKS = {}
def qkv(k):
    XF, WB, AQ, AK, AV, SB = 16, 72, 96, 112, 128, 144
    Lhi = k.new_label('qh')
    Lend = k.new_label('qe')
    k('s_and_b32 s22, s13, 1'); k('s_lshl_b32 s23, s12, 1'); k('s_add_u32 s22, s22, s23'); k('s_lshr_b32 s23, s13, 1')
    Ln = k.new_label('q0')
    k('s_cmp_eq_u32 s15, 0'); k(f's_cbranch_scc1 {Ln}')
    k('s_lshl_b32 s24, s22, 7'); k(f's_add_u32 s24, s24, {FL + F2}')
    k('s_waitcnt vmcnt(0)')
    poll(k, 24, 14)
    Lg = k.new_label('q1'); k(f's_branch {Lg}')
    k.label(Ln); k('s_waitcnt vmcnt(0)'); k('s_barrier'); k.label(Lg)
    stamp(k, 'q.sync')
    k('s_cmp_ge_u32 s3, 4'); k(f's_cbranch_scc1 {Lhi}')
    k('s_lshl_b32 s25, s22, 2'); k('s_add_u32 s25, s25, s3')
    k(f's_mul_i32 s26, s25, {28*1024}'); k('s_add_u32 s26, s26, s14'); k(f's_add_u32 s26, s26, 0x{XIN:x}')
    k(f's_mul_i32 s27, s25, {STB}'); k('s_add_u32 s27, s27, s14'); k(f's_add_u32 s27, s27, 0x{STI:x}')
    DEPTH = 14
    def xload(ks):
        if ks % 4 == 0: k(f's_add_u32 s21, s26, {ks*1024}')
        k.vmem(f'buffer_load_dwordx4 {vr(XF+4*(ks%DEPTH))}, v5, s[4:7], s21 offen offset:{(ks%4)*1024} sc1', f'x{ks}')
    def wread(ks):
        b = WB + 12 * (ks % 2)
        for i in range(3): k.ds(ldsr(b+4*i, LWQ + (ks*3+i)*1024), f'w{ks}')
    for ks in range(DEPTH): xload(ks)
    stats_load(k, 27, SB, 0)
    wread(0)
    nxt = DEPTH; npf = 0
    for ks in range(28):
        if ks + 1 < 28: wread(ks + 1)
        k.vm_wait(f'x{ks}'); k.lg_wait(f'w{ks}')
        b = WB + 12 * (ks % 2); x = vr(XF + 4*(ks%DEPTH))
        c = lambda A: '0' if ks == 0 else vr(A, 16)
        k(f'{MF} {vr(AQ,16)}, {vr(b)}, {x}, {c(AQ)}')
        k(f'{MF} {vr(AK,16)}, {vr(b+4)}, {x}, {c(AK)}')
        k(f'{MF} {vr(AV,16)}, {x}, {vr(b+8)}, {c(AV)}')
        if nxt < 28:
            if nxt % 4 and ks == 0: k(f's_add_u32 s21, s26, {(nxt//4)*4096}')
            xload(nxt); nxt += 1
    k('s_barrier')
    stamp(k, 'q.mfma')
    k.vm_wait()
    RS, MR = 8, 9
    stats_finish(k, SB, RS, MR, 10)
    k('s_lshl_b32 s28, s3, 8'); k(f's_add_u32 s28, s28, {LSC}')
    k('v_lshlrev_b32 v10, 3, v4'); k('v_add_u32 v10, s28, v10')
    k(f'ds_write_b64 v10, v[{RS}:{MR}]')
    k('v_lshlrev_b32 v11, 6, v3'); k(f'v_add_u32 v11, {LCS}, v11')
    for i in range(4): k(f'ds_read_b128 {vr(16+4*i)}, v11 offset:{16*i}')
    for i in range(4): k(f'ds_read_b128 {vr(32+4*i)}, v11 offset:{128+16*i}')
    k('v_lshlrev_b32 v11, 2, v4'); k(f'v_add_u32 v11, {LCS+256}, v11')
    k('ds_read_b32 v48, v11')
    k('s_waitcnt lgkmcnt(0)')
    k('v_lshlrev_b32 v11, 5, v3'); k('v_add_u32 v11, s28, v11')
    for g in range(4):
        k(f'ds_read_b128 {vr(64+8*g)}, v11 offset:{64*g}')
        k(f'ds_read_b128 {vr(64+8*g+4)}, v11 offset:{64*g+16}')
    SC = (28 ** -0.5) * LOG2E
    k(f'v_mul_f32 v14, {fl(SC)}, v{RS}'); k(f'v_mul_f32 v15, {fl(SC)}, v{MR}')
    k('v_mov_b32 v12, 0'); k('v_mov_b32 v13, 0')
    for r in range(16): k(f'v_mul_f32 v{16+r}, v15, v{16+r}')
    for r in range(16): k(f'v_fma_f32 v{AQ+r}, v14, v{AQ+r}, v{16+r}')
    for r in range(16): k(f'v_mul_f32 v{32+r}, v{MR}, v{32+r}')
    for r in range(16): k(f'v_fma_f32 v{AK+r}, v{RS}, v{AK+r}, v{32+r}')
    k('v_mov_b32 v10, 0'); k('v_mov_b32 v11, 0')
    for r in range(0, 16, 2):
        k(f'v_fmac_f32 v12, v{AQ+r}, v{AQ+r}'); k(f'v_fmac_f32 v13, v{AK+r}, v{AK+r}')
        k(f'v_fmac_f32 v10, v{AQ+r+1}, v{AQ+r+1}'); k(f'v_fmac_f32 v11, v{AK+r+1}, v{AK+r+1}')
    k('v_add_f32 v12, v12, v10'); k('v_add_f32 v13, v13, v11')
    half_sum(k, 12, 10); half_sum(k, 13, 10)
    k('v_sqrt_f32 v12, v12'); k.nop(1)
    k('s_mov_b32 exec_lo, 0')
    k(f'v_mov_b32 v{AQ+14}, v12'); k(f'v_mov_b32 v{AK+12}, 1.0'); k(f'v_mov_b32 v{AK+13}, 1.0')
    k('s_mov_b32 exec_lo, -1')
    wave_max(k, 13)
    k('v_cmp_eq_u32 vcc, 28, v4'); k('v_mov_b32 v49, 0'); k('v_mov_b32 v50, 1.0'); k.nop(1)
    k('v_cndmask_b32 v49, v49, v50, vcc')
    k('s_waitcnt lgkmcnt(0)')
    for r in range(16):
        g, i = r >> 2, r & 3
        k(f'v_fma_f32 v{64+8*g+2*i+1}, v{64+8*g+2*i+1}, v48, v49')
    for r in range(16):
        g, i = r >> 2, r & 3
        k(f'v_fma_f32 v{AV+r}, v{64+8*g+2*i}, v{AV+r}, v{64+8*g+2*i+1}')
    for A, d in ((AQ, 16), (AK, 24), (AV, 32)):
        for i in range(8): k(f'v_cvt_pk_bf16_f32 v{d+i}, v{A+2*i}, v{A+2*i+1}')
    k('s_lshl_b32 s29, s23, 6'); k('s_add_u32 s29, s29, s25')
    k('s_lshl_b32 s30, s29, 11'); k('s_add_u32 s30, s30, s14'); k(f's_add_u32 s30, s30, 0x{QF:x}')
    k('s_lshl_b32 s31, s29, 12'); k('s_add_u32 s31, s31, s47'); k(f's_add_u32 s31, s31, 0x{KVF:x}')
    k('s_lshl_b32 s32, s29, 2'); k('s_lshr_b32 s33, s47, 10'); k('s_add_u32 s32, s32, s33'); k(f's_add_u32 s32, s32, 0x{KN:x}')
    for i in range(4): k(f'buffer_store_dwordx4 {vr(24+4*i)}, v5, s[4:7], s31 offen offset:{1024*i} sc1')
    k(f'buffer_store_dwordx4 v[16:19], v5, s[4:7], s30 offen sc1')
    k(f'buffer_store_dwordx4 v[20:23], v5, s[4:7], s30 offen offset:1024 sc1')
    k('s_mov_b32 exec_lo, 0'); k('s_mov_b32 exec_hi, 0x80000000')
    k('buffer_store_dword v13, off, s[4:7], s32 sc1')
    k('s_mov_b32 exec_lo, -1'); k('s_mov_b32 exec_hi, -1')
    k(f's_branch {Lend}')
    k.label(Lhi)
    sv = list(k.vm)
    k('s_barrier')
    k('s_lshl_b32 s52, s51, 16'); k('s_sub_u32 s53, s3, 4'); k('s_lshl_b32 s53, s53, 10'); k('s_add_u32 s52, s52, s53')
    k(f's_add_u32 s52, s52, 0x{WO:x}'); k(f's_add_u32 s53, s53, {LWO}')
    for n in range(16):
        k(f's_add_u32 m0, s53, {4096*n}'); k(f's_add_u32 s55, s52, {4096*n}')
        k('buffer_load_dwordx4 v5, s[4:7], s55 offen lds')
    if HOOKS.get('after_wo'): HOOKS['after_wo'](k)
    k.vm = sv
    k.label(Lend)
    k.lg = []
    k('s_lshl_b32 s24, s23, 7'); k('s_lshl_b32 s25, s22, 2'); k('s_add_u32 s24, s24, s25'); k('s_add_u32 s24, s24, s16')
    stamp(k, 'q.epi')
    publish(k, 24, skip_hi=True)

def attn(k):
    Q, KV, S, P, O, C = 16, 32, 96, 128, 144, 14
    D = 4
    k('s_and_b32 s20, s13, 1'); k('s_lshl_b32 s22, s12, 1'); k('s_add_u32 s22, s22, s20')
    k('s_lshr_b32 s21, s13, 1')
    k('s_lshl_b32 s24, s22, 7'); k('s_add_u32 s24, s24, s16')
    poll(k, 24, 16)
    stamp(k, 'a.sync')
    k('s_and_b32 s23, s3, 1'); k('s_lshr_b32 s24, s3, 1')
    k('s_lshl_b32 s25, s21, 2'); k('s_lshl_b32 s26, s23, 1'); k('s_add_u32 s25, s25, s26')
    k('s_lshl_b32 s27, s22, 6')
    k('s_add_u32 s28, s27, s25'); k('s_lshl_b32 s28, s28, 11'); k('s_add_u32 s28, s28, s14'); k(f's_add_u32 s28, s28, 0x{QF:x}')
    k('s_lshl_b32 s29, s24, 4'); k('s_add_u32 s29, s29, s27'); k('s_lshl_b32 s29, s29, 12')
    k('s_add_u32 s29, s29, s47'); k(f's_add_u32 s29, s29, 0x{KVF:x}')
    k('s_lshl_b32 s30, s27, 2'); k('s_lshr_b32 s33, s47, 10'); k('s_add_u32 s30, s30, s33'); k(f's_add_u32 s30, s30, 0x{KN:x}')
    k('v_lshlrev_b32 v0, 2, v1')
    if FAST:
        k('s_lshl_b32 s18, s12, 7'); k(f's_add_u32 s18, s18, {FL + XT}'); k('v_lshlrev_b32 v8, 2, v4')
        k.vmem('buffer_load_dword v12, v8, s[4:7], s18 offen sc1', 'kn')
    k.vmem('buffer_load_dword v11, v0, s[4:7], s30 offen sc1', 'kn')
    for i in range(4): k.vmem(f'buffer_load_dwordx4 {vr(Q+4*i)}, v5, s[4:7], s28 offen offset:{1024*i} sc1', 'q')
    k('v_mov_b32 v8, 0'); k(f'v_mov_b32 v9, {LFLAG}'); k('ds_write_b32 v9, v8')
    k('s_mov_b32 s40, 0')
    def kvload(kb):
        b = KV + 16 * (kb % D)
        k(f's_add_u32 s31, s29, {kb*4096}')
        for i in range(4):
            k.vmem(f'buffer_load_dwordx4 {vr(b+4*i)}, v5, s[4:7], s31 offen offset:{1024*i}', f'k{kb}' if i < 2 else f'v{kb}')
    for kb in range(D): kvload(kb)
    k.vm_wait('kn')
    if FAST:
        k('v_cmp_ne_u32 vcc, s46, v12'); k('s_nop 1')
        k('s_or_b32 s18, vcc_lo, vcc_hi'); k('s_cmp_eq_u32 s18, 0'); k('s_cselect_b32 s17, 1, 0')
        k('s_and_b32 s48, s17, s15')
        if os.environ.get('DELAYTEST'):
            L2 = k.new_label('dl'); L3 = k.new_label('dl')
            k('s_cmp_lg_u32 s17, 0'); k(f's_cbranch_scc1 {L3}')
            k('s_mov_b32 s18, 0')
            k.label(L2)
            k('s_sleep 8'); k('s_add_u32 s18, s18, 1'); k('s_cmp_lt_u32 s18, 40'); k(f's_cbranch_scc1 {L2}')
            k.label(L3)
    wave_max(k, 11); k.nop(1)
    k('v_readlane_b32 s32, v11, 63'); k.nop(2)
    k('v_sqrt_f32 v11, s32'); k.nop(1)
    k(f'v_mul_f32 v11, {fl(1.0+1/64)}, v11')
    k.vm_wait('q')
    def set_shift(q, cv):
        d = Q + 8*q + 4 + 2
        k(f'v_cvt_pk_bf16_f32 v8, v{cv}, v{cv}'); k('v_and_b32 v8, 0xffff0000, v8')
        k(f'v_sub_f32 v9, v{cv}, v8'); k(f'v_cvt_pk_bf16_f32 v10, v9, v9'); k('v_and_b32 v10, 0xffff0000, v10')
        k(f'v_add_f32 v{cv}, v8, v10'); k('v_cvt_pk_bf16_f32 v9, -v8, -v10')
        k('s_mov_b32 exec_lo, 0'); k(f'v_mov_b32 v{d}, v9'); k('s_mov_b32 exec_lo, -1')
    for q in range(2):
        k(f'v_lshlrev_b32 v{C+q}, 16, v{Q+8*q+4+3}'); k(f'v_mul_f32 v{C+q}, v{C+q}, v11')
        set_shift(q, C+q)
    MAIN = k.new_label('main'); FIN = k.new_label('fin')
    k.label(MAIN)
    NT = 32
    def smf(n, which):
        kb, q = n >> 1, n & 1
        b = KV + 16*(kb % D); s = S + 16*(n % 2)
        if which == 0: return f'{MF} {vr(s,16)}, {vr(b)}, {vr(Q+8*q)}, 0'
        return f'{MF} {vr(s,16)}, {vr(b+4)}, {vr(Q+8*q+4)}, {vr(s,16)}'
    def pmf(n, which):
        kb, q = n >> 1, n & 1
        b = KV + 16*(kb % D) + 8; p = P + 8*(n % 2); o = O + 16*q
        c = '0' if (n < 2 and which == 0) else vr(o, 16)
        return f'{MF} {vr(o,16)}, {vr(b+4*which)}, {vr(p+4*which)}, {c}'
    k.vm_wait('k0')
    stamp(k, 'a.k0')
    k.nop(2); k(smf(0, 0)); k(smf(0, 1)); k.nop(16)
    PRIO = os.environ.get('APRIO', '1') == '1'
    for n in range(NT + 1):
        if PRIO and n % 8 == 0 and n < NT: k(f's_setprio {3 - n//8}')
        valu = []
        if n < NT:
            s = S + 16*(n % 2); p = P + 8*(n % 2)
            valu = [f'v_exp_f32 v{s+r}, v{s+r}' for r in range(16)]
            valu += [f'v_cvt_pk_bf16_f32 v{p+i}, v{s+2*i}, v{s+2*i+1}' for i in range(8)]
        mf = []
        if n + 1 < NT:
            if (n + 1) % 2 == 0: k.vm_wait(f'k{(n+1)>>1}')
            mf += [smf(n+1, 0), smf(n+1, 1)]
        if n >= 1:
            k.vm_wait(f'v{(n-1)>>1}')
            mf += [pmf(n-1, 0), pmf(n-1, 1)]
        if n == NT: k.nop(2)
        pos = [0, 6, 12, 18] if len(mf) == 4 else ([0, 6] if n == 0 else [12, 18])
        mi = 0
        if not valu:
            for m in mf: k(m)
        else:
            for i, v in enumerate(valu):
                while mi < len(mf) and pos[mi] == i:
                    k(mf[mi]); mi += 1
                k(v)
        if n >= 1 and (n - 1) % 2 == 1:
            kbn = ((n - 1) >> 1) + D
            if kbn < 16: kvload(kbn)
        if 2 <= n < 22: w1pf(k, n - 2)
    for ks in range(20, 28): w1pf(k, ks)
    k.nop(8)
    stamp(k, 'a.main')
    k('s_lshl_b32 s33, s3, 13'); k('v_add_u32 v8, s33, v5')
    for q in range(2):
        for i in range(4): k(f'ds_write_b128 v8, {vr(O+16*q+4*i)} offset:{q*4096+i*1024}')
    k('s_waitcnt lgkmcnt(0)'); k('s_barrier')
    k('s_lshr_b32 s34, s24, 1'); k('s_and_b32 s35, s24, 1')
    k('s_lshl_b32 s36, s23, 13'); k('s_lshl_b32 s37, s34, 12'); k('s_add_u32 s36, s36, s37')
    k('s_lshl_b32 s37, s35, 11'); k('s_add_u32 s37, s37, s36')
    k('v_add_u32 v8, s37, v5')
    k('v_lshlrev_b32 v9, 4, v4'); k(f'v_add_u32 v9, {3*1024 + 32*16}, v9'); k('v_add_u32 v9, s36, v9')
    for j in range(4):
        k(f'ds_read_b128 {vr(32+8*j)}, v8 offset:{j*16384}')
        k(f'ds_read_b128 {vr(36+8*j)}, v8 offset:{j*16384+1024}')
        k(f'ds_read_b32 v{64+j}, v9 offset:{j*16384}')
    k('s_waitcnt lgkmcnt(0)')
    for j in range(1, 4):
        for r in range(8): k(f'v_add_f32 v{32+r}, v{32+r}, v{32+8*j+r}')
        k(f'v_add_f32 v64, v64, v{64+j}')
    k('v_rcp_f32 v65, v64')
    k(f'v_mov_b32 v66, {fl(2.0**-80)}'); k('v_cmp_nge_f32 vcc, v64, v66')
    k(f'v_mov_b32 v66, {fl(2.0**100)}'); k('v_cmp_nle_f32 s[38:39], v64, v66')
    for r in range(8): k(f'v_mul_f32 v{32+r}, v{32+r}, v65')
    for i in range(4): k(f'v_cvt_pk_bf16_f32 v{40+i}, v{32+2*i}, v{32+2*i+1}')
    k('s_add_u32 s41, s25, s34'); k('s_lshl_b32 s41, s41, 5'); k('s_lshl_b32 s42, s22, 1')
    k('s_add_u32 s41, s41, s42'); k('s_add_u32 s41, s41, s35'); k('s_lshl_b32 s41, s41, 10')
    k('s_add_u32 s41, s41, s14'); k(f's_add_u32 s41, s41, 0x{OF:x}')
    k('buffer_store_dwordx4 v[40:43], v5, s[4:7], s41 offen sc1')
    k('s_or_b64 vcc, vcc, s[38:39]')
    Lok = k.new_label('ok')
    k(f's_cbranch_vccz {Lok}')
    k('v_mov_b32 v8, 1'); k(f'v_mov_b32 v9, {LFLAG}'); k('ds_write_b32 v9, v8')
    k.label(Lok)
    stamp(k, 'a.st')
    k('s_waitcnt vmcnt(0) lgkmcnt(0)'); k.vm = []
    stamp(k, 'a.drain')
    k('s_barrier')
    k(f'v_mov_b32 v9, {LFLAG}'); k('ds_read_b32 v8, v9'); k('s_waitcnt lgkmcnt(0)'); k('s_nop 0')
    k('v_readfirstlane_b32 s43, v8')
    k('s_cmp_eq_u32 s43, 0'); k(f's_cbranch_scc1 {FIN}')
    k('s_cmp_lg_u32 s40, 0'); k(f's_cbranch_scc1 {FIN}')
    k('s_mov_b32 s40, 1')
    k(f'v_mov_b32 v66, 0xff800000'); k(f'v_mov_b32 v67, 0xff800000')
    k('s_mov_b32 s44, 0')
    LP = k.new_label('mx'); k.label(LP)
    k('s_lshl_b32 s45, s44, 12'); k('s_add_u32 s45, s45, s29')
    k(f'buffer_load_dwordx4 {vr(KV)}, v5, s[4:7], s45 offen')
    k(f'buffer_load_dwordx4 {vr(KV+4)}, v5, s[4:7], s45 offen offset:1024')
    k('s_waitcnt vmcnt(0)')
    for q in range(2):
        s = 64 + 0 if False else 48 + 0
    for q in range(2):
        s = 128 + 16*q
        k(f'{MF} {vr(s,16)}, {vr(KV)}, {vr(Q+8*q)}, 0'); k(f'{MF} {vr(s,16)}, {vr(KV+4)}, {vr(Q+8*q+4)}, {vr(s,16)}')
    k.nop(20)
    for q in range(2):
        s = 128 + 16*q
        for r in range(0, 16, 2): k(f'v_max3_f32 v{66+q}, v{66+q}, v{s+r}, v{s+r+1}')
    k('s_add_u32 s44, s44, 1'); k('s_cmp_lt_u32 s44, 16'); k(f's_cbranch_scc1 {LP}')
    for q in range(2):
        k(f'v_mov_b32 v68, v{66+q}'); k.nop(2)
        k(f'v_permlane32_swap_b32 v{66+q}, v68'); k.nop(1)
        k(f'v_max_f32 v{66+q}, v{66+q}, v68')
    k('s_lshl_b32 s45, s3, 8'); k(f's_add_u32 s45, s45, {LM}')
    k('v_lshlrev_b32 v8, 2, v4'); k('v_add_u32 v9, s45, v8')
    k('ds_write_b32 v9, v66'); k('ds_write_b32 v9, v67 offset:128')
    k('s_waitcnt lgkmcnt(0)'); k('s_barrier')
    k('s_lshl_b32 s45, s23, 8'); k(f's_add_u32 s45, s45, {LM}'); k('v_add_u32 v9, s45, v8')
    for j in range(4):
        k(f'ds_read_b32 v{32+2*j}, v9 offset:{j*512}'); k(f'ds_read_b32 v{33+2*j}, v9 offset:{j*512+128}')
    k(f'v_mov_b32 v8, 0'); k(f'v_mov_b32 v10, {LFLAG}'); k('ds_write_b32 v10, v8')
    k('s_waitcnt lgkmcnt(0)')
    for q in range(2):
        k(f'v_max3_f32 v{32+q}, v{32+q}, v{34+q}, v{36+q}'); k(f'v_max_f32 v{32+q}, v{32+q}, v{38+q}')
        k(f'v_add_f32 v{C+q}, v{C+q}, v{32+q}')
        set_shift(q, C+q)
    k('s_barrier')
    k.vm = []
    for kb in range(D): kvload(kb)
    k(f's_branch {MAIN}')
    k.label(FIN)
    k.vm = []; k.lg = []
    k('s_setprio 0')
    k('s_lshl_b32 s24, s21, 7'); k('s_lshl_b32 s25, s22, 2'); k('s_add_u32 s24, s24, s25'); k('s_add_u32 s24, s24, s16')
    k(f's_add_u32 s24, s24, {FA}')
    Ld = k.new_label('pb')
    k('s_cmp_lg_u32 s3, 0'); k(f's_cbranch_scc1 {Ld}')
    k('s_mov_b32 exec_lo, 1'); k('s_mov_b32 exec_hi, 0'); k('v_mov_b32 v9, 1')
    k(f'buffer_store_dword v9, off, s[4:7], s24 sc1')
    k('s_mov_b32 exec_lo, -1'); k('s_mov_b32 exec_hi, -1')
    k.label(Ld)
    stamp(k, 'a.end')
```

```python
from g2b import *

def wave_roles(k):
    k('s_and_b32 s56, s3, 3'); k('s_lshr_b32 s57, s3, 2')
    k('s_lshl_b32 s58, s50, 1'); k('s_add_u32 s58, s58, s57')
    k('s_lshl_b32 s59, s51, 2'); k('s_add_u32 s59, s59, s56')

def reduce_fin(k, acc, tmp, res, xdst, stdst, final_ok, pre=None, cold0=False):
    k.nop(16)
    k('s_barrier')
    if pre: pre()
    k('s_lshl_b32 s60, s57, 15'); k('s_lshl_b32 s61, s56, 11'); k('s_add_u32 s61, s61, s60'); k('v_add_u32 v8, s61, v5')
    for j in range(4):
        k(f'ds_write_b128 v8, {vr(acc+8*j)} offset:{j*8192}')
        k(f'ds_write_b128 v8, {vr(acc+8*j+4)} offset:{j*8192+1024}')
    k('s_lshl_b32 s61, s56, 13'); k('s_add_u32 s61, s61, s60'); k('v_add_u32 v9, s61, v5')
    k('s_mul_i32 s62, s58, 28'); k('s_add_u32 s62, s62, s59'); k('s_lshl_b32 s62, s62, 10'); k('s_add_u32 s62, s62, s14')
    k(f's_add_u32 s62, s62, 0x{xdst:x}')
    k('s_lshr_b32 s63, s59, 1'); k('s_mul_i32 s60, s58, 14'); k('s_add_u32 s63, s63, s60'); k('s_lshl_b32 s63, s63, 9')
    k('s_and_b32 s60, s59, 1'); k('s_lshl_b32 s60, s60, 3'); k('s_add_u32 s63, s63, s60'); k('s_add_u32 s63, s63, s14')
    k(f's_add_u32 s63, s63, 0x{stdst:x}')
    k('s_waitcnt lgkmcnt(0)'); k('s_barrier')
    stamp(k, 'red.w')
    for s in range(4):
        k(f'ds_read_b128 {vr(tmp+8*s)}, v9 offset:{s*2048}'); k(f'ds_read_b128 {vr(tmp+8*s+4)}, v9 offset:{s*2048+1024}')
    for i in range(4):
        k(f'v_lshlrev_b32 v{acc+2*i}, 16, v{res+i}'); k(f'v_and_b32 v{acc+2*i+1}, 0xffff0000, v{res+i}')
    for s in range(4):
        k(f's_waitcnt lgkmcnt({6-2*s})')
        for r in range(8): k(f'v_add_f32 v{acc+r}, v{acc+r}, v{tmp+8*s+r}')
    k.lg = []
    for i in range(4): k(f'v_cvt_pk_bf16_f32 v{tmp+i}, v{acc+2*i}, v{acc+2*i+1}')
    Lf, Le = k.new_label('rf'), k.new_label('re')
    if final_ok:
        k('s_cmp_lg_u32 s15, 0'); k(f's_cbranch_scc1 {Lf}')
    hstore(k, [f'buffer_store_dwordx4 {vr(tmp)}, v5, s[4:7], s62 offen'], cold0=cold0)
    k(f'v_add_f32 v8, v{acc}, v{acc+1}'); k(f'v_mul_f32 v9, v{acc}, v{acc}'); k(f'v_fmac_f32 v9, v{acc+1}, v{acc+1}')
    k(f'v_add_f32 v10, v{acc+2}, v{acc+3}'); k(f'v_mul_f32 v11, v{acc+2}, v{acc+2}'); k(f'v_fmac_f32 v11, v{acc+3}, v{acc+3}')
    for r in range(4, 8, 2):
        k(f'v_add_f32 v8, v8, v{acc+r}'); k(f'v_fmac_f32 v9, v{acc+r}, v{acc+r}')
        k(f'v_add_f32 v10, v10, v{acc+r+1}'); k(f'v_fmac_f32 v11, v{acc+r+1}, v{acc+r+1}')
    k('v_add_f32 v8, v8, v10'); k('v_add_f32 v9, v9, v11')
    half_sum(k, 8, 10); half_sum(k, 9, 10)
    k('v_lshlrev_b32 v10, 4, v4')
    k('s_mov_b32 exec_hi, 0')
    hstore(k, ['buffer_store_dwordx2 v[8:9], v10, s[4:7], s63 offen'], cold0=cold0)
    k('s_mov_b32 exec_hi, -1')
    if final_ok:
        k(f's_branch {Le}')
        k.label(Lf)
        k.nop(2)
        k(f'v_permlane32_swap_b32 v{tmp}, v{tmp+2}'); k(f'v_permlane32_swap_b32 v{tmp+1}, v{tmp+3}')
        k('v_mul_u32_u24 v10, 896, v4'); k('v_lshl_add_u32 v10, v3, 4, v10')
        k(f's_mul_i32 s62, s58, {32*896}'); k('s_lshl_b32 s63, s59, 5'); k('s_add_u32 s62, s62, s63')
        k(f'buffer_store_dwordx4 {vr(tmp)}, v10, s[8:11], s62 offen')
        k.label(Le)

def res_load(k, res, xsrc):
    k('s_mul_i32 s60, s58, 28'); k('s_add_u32 s60, s60, s59'); k('s_lshl_b32 s60, s60, 10'); k('s_add_u32 s60, s60, s14')
    k(f's_add_u32 s60, s60, 0x{xsrc:x}')
    k.vmem(f'buffer_load_dwordx4 {vr(res)}, v5, s[4:7], s60 offen sc1', 'res')

def wo(k):
    OFR, WB, ACC, RES = 16, 48, 128, 80
    wave_roles(k)
    k('s_lshr_b32 s24, s50, 1'); k('s_lshl_b32 s24, s24, 7'); k('s_add_u32 s24, s24, s16'); k(f's_add_u32 s24, s24, {FA}')
    k('s_lshl_b32 s25, s56, 13'); k(f's_add_u32 s25, s25, {LWO}'); k('v_add_u32 v12, s25, v5')
    def wread(i):
        for n in range(2): k.ds(f'ds_read_b128 {vr(WB+8*(i%4)+4*n)}, v12 offset:{n*32768+i*1024}', f'w{i}')
    for i in range(4): wread(i)
    k('s_lshl_b32 s26, s58, 5'); k('s_lshl_b32 s27, s56, 3'); k('s_add_u32 s26, s26, s27'); k('s_lshl_b32 s26, s26, 10')
    k('s_add_u32 s26, s26, s14'); k(f's_add_u32 s26, s26, 0x{OF:x}'); k('s_add_u32 s27, s26, 4096')
    poll(k, 24, 16)
    stamp(k, 'w.sync')
    for i in range(8):
        k.vmem(f'buffer_load_dwordx4 {vr(OFR+4*i)}, v5, s[4:7], s{26+i//4} offen offset:{(i%4)*1024} sc1', f'o{i}')
    res_load(k, RES, XIN)
    for i in range(8):
        k.vm_wait(f'o{i}'); k.lg_wait(f'w{i}')
        for n in range(2):
            c = '0' if i == 0 else vr(ACC+16*n, 16)
            k(f'{MF} {vr(ACC+16*n,16)}, {vr(WB+8*(i%4)+4*n)}, {vr(OFR+4*i)}, {c}')
        if i + 4 < 8: wread(i + 4)
    k.vm_wait('res')
    stamp(k, 'w.mfma')
    reduce_fin(k, ACC, 16, RES, XMID, STM, False, cold0=True)
    k('s_lshl_b32 s24, s50, 7'); k('s_lshl_b32 s25, s51, 2'); k('s_add_u32 s24, s24, s25'); k('s_add_u32 s24, s24, s16')
    k(f's_add_u32 s24, s24, {FW}')
    stamp(k, 'w.st')
    publish(k, 24, local=True)

def w2src(k, sdst):
    k(f's_mul_i32 s{sdst}, s51, 224'); k(f's_mul_i32 s60, s56, 28'); k(f's_add_u32 s{sdst}, s{sdst}, s60')
    k(f's_lshl_b32 s{sdst}, s{sdst}, 10'); k(f's_add_u32 s{sdst}, s{sdst}, 0x{W2:x}')
def w2reg(i, n):
    if i < 6: return 128 + 8*i + 4*n
    assert 18 <= i < 22
    return 96 + 8*(i-18) + 4*n

def ffn1(k):
    A0, A1, T, U, XB = 16, 32, 48, 64, 80
    k('s_lshl_b32 s24, s50, 7'); k('s_add_u32 s24, s24, s16'); k(f's_add_u32 s24, s24, {FW}')
    k('s_lshl_b32 s25, s51, 3'); k('s_add_u32 s25, s25, s3')
    k('s_lshl_b32 s26, s25, 8'); k(f's_add_u32 s26, s26, 0x{C1:x}')
    k('s_lshl_b32 s27, s3, 8'); k(f's_add_u32 m0, s27, {LC1}')
    k('s_mov_b32 exec_lo, 0xffff'); k('s_mov_b32 exec_hi, 0')
    k('buffer_load_dwordx4 v5, s[4:7], s26 offen lds')
    k('s_mov_b32 exec_lo, -1'); k('s_mov_b32 exec_hi, -1')
    k(f's_mul_i32 s28, s50, {56*1024}'); k('s_lshl_b32 s29, s3, 10'); k('s_add_u32 s28, s28, s29')
    k('s_add_u32 s28, s28, s14'); k(f's_add_u32 s28, s28, 0x{XMID:x}')
    w2src(k, 30); k(f's_add_u32 s31, s30, {112*1024}')
    k(f's_mul_i32 s32, s57, {112*1024}'); k('s_add_u32 s32, s32, s30')
    k('s_mul_i32 s33, s56, 24576'); k('s_lshl_b32 s34, s57, 10'); k('s_add_u32 s33, s33, s34'); k(f's_add_u32 s33, s33, {LE}')
    k('s_mul_i32 s35, s56, 12288'); k('s_add_u32 s35, s35, s34')
    poll(k, 24, 7)
    stamp(k, 'f1.sync')
    Ls = k.new_label('fs')
    k('s_cmp_ge_u32 s3, 2'); k(f's_cbranch_scc1 {Ls}')
    k('s_lshl_b32 s37, s50, 1'); k('s_add_u32 s37, s37, s3'); k(f's_mul_i32 s37, s37, {STB}'); k('s_add_u32 s37, s37, s14')
    k(f's_add_u32 s37, s37, 0x{STM:x}')
    sv = list(k.vm)
    stats_load(k, 37, 32, 0)
    k.label(Ls)
    k.vm = sv
    XS = [60, 64, 68, 72, 76, 128, 132]
    for i in range(7):
        k(f's_add_u32 s36, s28, {8192*i}')
        k.vmem(f'buffer_load_dwordx4 {vr(XS[i])}, v5, s[4:7], s36 offen sc1', f'xt{i}')
    k('v_add_u32 v15, s29, v5')
    def xt_write(lo, hi):
        for i in range(lo, hi):
            k.vm_wait(f'xt{i}')
            k.ds(f'ds_write_b128 v15, {vr(XS[i])} offset:{8192*i}', 'xw')
    def stats_fin():
        L = k.new_label('fs')
        k('s_cmp_ge_u32 s3, 2'); k(f's_cbranch_scc1 {L}')
        stats_finish(k, 32, 8, 9, 10)
        k(f'v_mul_f32 v8, {fl(LOG2E)}, v8')
        k('s_lshl_b32 s37, s3, 8'); k(f's_add_u32 s37, s37, {LST}'); k('v_lshlrev_b32 v10, 3, v4'); k('v_add_u32 v10, s37, v10')
        k('ds_write_b64 v10, v[8:9]')
        k.label(L)
    def pfe(j):
        if j < 12:
            i = 6 + j
            k(f's_add_u32 m0, s33, {2048*j}'); k(f's_add_u32 s36, s32, {1024*i}')
            k.vmem('buffer_load_dwordx4 v5, s[4:7], s36 offen lds', 'pf')
        elif j < 24:
            i, n = (j - 12) >> 1, (j - 12) & 1
            k(f's_add_u32 s36, s{30+n}, {(i//4)*4096}')
            k.vmem(f'buffer_load_dwordx4 {vr(w2reg(i,n))}, v5, s[4:7], s36 offen offset:{(i%4)*1024}', 'pf')
    def pfl(j):
        if j < 6:
            i = 22 + j
            k(f's_add_u32 m0, s35, {2048*j}'); k(f's_add_u32 s36, s32, {1024*i}')
            k.vmem('buffer_load_dwordx4 v5, s[4:7], s36 offen lds', 'pf')
        else:
            i, n = 18 + ((j - 6) >> 1), (j - 6) & 1
            k(f's_add_u32 s36, s{30+n}, {(i//4)*4096}')
            k.vmem(f'buffer_load_dwordx4 {vr(w2reg(i,n))}, v5, s[4:7], s36 offen offset:{(i%4)*1024}', 'pf')
    def xread(tb, ks): k.ds(ldsr(XB + 4*((tb*28+ks) % 4), (tb*28+ks)*1024), f'x{tb}_{ks}')
    def mish(A, tbl):
        rs, mr = 8 + 2*tbl, 9 + 2*tbl
        L = []
        for i in range(4): L.append(('ds', f'ds_read_b128 {vr(T+4*i)}, v14 offset:{16*i}', 'cs'))
        for i in range(4): L.append(('ds', f'ds_read_b128 {vr(U+4*i)}, v14 offset:{128+16*i}', 'cs'))
        L.append(('lw', 'cs'))
        V = lambda s: L.append(('v', s))
        for r in range(16): V(f'v_fma_f32 v{T+r}, v{mr}, v{T+r}, v{U+r}')
        for r in range(16): V(f'v_fma_f32 v{A+r}, v{rs}, v{A+r}, v{T+r}')
        for r in range(16): V(f'v_exp_f32 v{T+r}, v{A+r}')
        for r in range(16): V(f'v_add_f32 v{T+r}, 1.0, v{T+r}')
        for r in range(16): V(f'v_fma_f32 v{T+r}, v{T+r}, v{T+r}, 1.0')
        for r in range(16): V(f'v_rcp_f32 v{T+r}, v{T+r}')
        for r in range(16): V(f'v_fma_f32 v{T+r}, v{T+r}, v12, v13')
        for r in range(16): V(f'v_mul_f32 v{A+r}, v{A+r}, v{T+r}')
        for i in range(8): V(f'v_cvt_pk_bf16_f32 v{U+i}, v{A+2*i}, v{A+2*i+1}')
        L.append(('st', [f'buffer_store_dwordx4 {vr(U)}, v5, s[4:7], s{38+tbl} offen',
                         f'buffer_store_dwordx4 {vr(U+4)}, v5, s[4:7], s{38+tbl} offen offset:1024']))
        return L
    def emit(it):
        if it[0] == 'ds': k.ds(it[1], it[2])
        elif it[0] == 'lw': k.lg_wait(it[1])
        elif it[0] == 'st': hstore(k, it[1], 'st', cold0=True)
        else: k(it[1])
    k('s_mul_i32 s38, s50, 224'); k('s_lshl_b32 s39, s25, 1'); k('s_add_u32 s38, s38, s39'); k('s_lshl_b32 s38, s38, 10')
    k('s_add_u32 s38, s38, s14'); k(f's_add_u32 s38, s38, 0x{ACT:x}'); k(f's_add_u32 s39, s38, {112*1024}')
    k(f'v_mov_b32 v12, {fl(-2*LN2)}'); k(f'v_mov_b32 v13, {fl(LN2)}')
    k('v_lshlrev_b32 v14, 6, v3'); k(f'v_add_u32 v14, {LC1}, v14'); k('v_add_u32 v14, s27, v14')
    xt_write(0, 4); k.lg_wait(); k('s_barrier')
    stamp(k, 'f1.x')
    for ks in range(3): xread(0, ks)
    for ks in range(28):
        if ks + 3 < 28: xread(0, ks + 3)
        k.lg_wait(f'x0_{ks}')
        k(f'{MF} {vr(A0,16)}, {vr(w1reg(ks))}, {vr(XB+4*(ks%4))}, {"0" if ks == 0 else vr(A0,16)}')
        if ks % 2 == 1: pfe(ks // 2)
        if ks == 4: xt_write(4, 7)
        if ks == 12: stats_fin()
    k.lg_wait(); k('s_barrier')
    k('v_lshlrev_b32 v15, 3, v4'); k(f'v_add_u32 v15, {LST}, v15')
    k.ds('ds_read_b64 v[8:9], v15', 's'); k.ds('ds_read_b64 v[10:11], v15 offset:256', 's')
    for ks in range(3): xread(1, ks)
    M = mish(A0, 0); mi = 0
    per = (len(M) + 27) // 28
    for ks in range(28):
        if ks + 3 < 28: xread(1, ks + 3)
        k.lg_wait(f'x1_{ks}')
        k(f'{MF} {vr(A1,16)}, {vr(w1reg(ks))}, {vr(XB+4*((28+ks)%4))}, {"0" if ks == 0 else vr(A1,16)}')
        if ks % 2 == 1 and 14 + ks // 2 < 24: pfe(14 + ks // 2)
        for _ in range(per):
            if mi < len(M): emit(M[mi]); mi += 1
    while mi < len(M): emit(M[mi]); mi += 1
    stamp(k, 'f1.mf')
    k('s_barrier')
    for j in range(14): pfl(j)
    for it in mish(A1, 1): emit(it)
    stamp(k, 'f1.mish')
    k('s_lshl_b32 s24, s50, 7'); k('s_lshl_b32 s25, s51, 2'); k('s_add_u32 s24, s24, s25'); k('s_add_u32 s24, s24, s16')
    k(f's_add_u32 s24, s24, {F1}')
    publish(k, 24, local=True)

def ffn2(k):
    ACC, WB, RES, RING, RD = 16, 48, 80, 176, 20
    k('s_lshl_b32 s24, s50, 7'); k('s_add_u32 s24, s24, s16'); k(f's_add_u32 s24, s24, {F1}')
    k('s_mul_i32 s25, s58, 112'); k('s_mul_i32 s26, s56, 28'); k('s_add_u32 s25, s25, s26'); k('s_lshl_b32 s25, s25, 10')
    k('s_add_u32 s25, s25, s14'); k(f's_add_u32 s25, s25, 0x{ACT:x}')
    k('s_mul_i32 s26, s56, 24576'); k(f's_add_u32 s26, s26, {LE}'); k('v_add_u32 v12, s26, v5')
    k('s_mul_i32 s26, s56, 12288'); k('v_add_u32 v13, s26, v5')
    res_load(k, RES, XMID)
    order = list(range(28))
    ldsi = [i for i in order if 6 <= i < 18 or i >= 22]
    slot = {i: j % 4 for j, i in enumerate(ldsi)}
    def wread(i):
        for n in range(2):
            if i < 18: k.ds(f'ds_read_b128 {vr(WB+8*slot[i]+4*n)}, v12 offset:{(i-6)*2048+n*1024}', f'w{i}')
            else: k.ds(f'ds_read_b128 {vr(WB+8*slot[i]+4*n)}, v13 offset:{(i-22)*2048+n*1024}', f'w{i}')
    for i in ldsi[:4]: wread(i)
    poll(k, 24, 7)
    stamp(k, 'f2.sync')
    PD = 14
    def aload(i):
        if i % 4 == 0: k(f's_add_u32 s27, s25, {i*1024}')
        k.vmem(f'buffer_load_dwordx4 {vr(RING+4*(i%RD))}, v5, s[4:7], s27 offen offset:{(i%4)*1024} sc1', f'a{i}')
    for i in range(PD): aload(i)
    nl = 4
    for i in order:
        k.vm_wait(f'a{i}')
        if i in slot: k.lg_wait(f'w{i}')
        for n in range(2):
            a = WB + 8*slot[i] + 4*n if i in slot else w2reg(i, n)
            k(f'{MF} {vr(ACC+16*n,16)}, {vr(a)}, {vr(RING+4*(i%RD))}, {"0" if i == 0 else vr(ACC+16*n,16)}')
        if i in slot and nl < len(ldsi): wread(ldsi[nl]); nl += 1
        if i + PD < 28: aload(i + PD)
    stamp(k, 'f2.mf')
    def pre():
        L = k.new_label('np')
        k('s_cmp_lg_u32 s15, 0'); k(f's_cbranch_scc1 {L}')
        wq_prefetch(k)
        k.label(L)
    reduce_fin(k, ACC, 48, RES, XIN + LS, STI + LS, True, pre)
    k('s_lshr_b32 s24, s50, 1'); k('s_lshl_b32 s24, s24, 7'); k('s_and_b32 s25, s50, 1'); k('s_mul_i32 s25, s25, 7')
    k('s_add_u32 s25, s25, s51'); k('s_lshl_b32 s25, s25, 2'); k('s_add_u32 s24, s24, s25'); k('s_add_u32 s24, s24, s16')
    k(f's_add_u32 s24, s24, {F2}')
    stamp(k, 'f2.st')
    publish(k, 24, local=True)

def xcc_check(k):
    L = k.new_label('xk')
    k('s_cmp_lg_u32 s15, 0'); k(f's_cbranch_scc1 {L}')
    k('s_lshl_b32 s18, s12, 7'); k(f's_add_u32 s18, s18, {FL + XT}')
    k('v_lshlrev_b32 v8, 2, v4')
    k('buffer_load_dword v9, v8, s[4:7], s18 offen sc1')
    k('s_waitcnt vmcnt(0)')
    k('v_cmp_ne_u32 vcc, s46, v9')
    k('s_nop 1')
    k('s_or_b32 s18, vcc_lo, vcc_hi')
    k('s_cmp_eq_u32 s18, 0'); k('s_cselect_b32 s17, 1, 0')
    if os.environ.get('DELAYTEST'):
        L2 = k.new_label('dl'); L3 = k.new_label('dl')
        k('s_cmp_lg_u32 s17, 0'); k(f's_cbranch_scc1 {L3}')
        k('s_mov_b32 s18, 0')
        k.label(L2)
        k('s_sleep 8'); k('s_add_u32 s18, s18, 1'); k('s_cmp_lt_u32 s18, 80'); k(f's_cbranch_scc1 {L2}')
        k.label(L3)
    k.label(L)

TOUCH = int(os.environ.get('TOUCH', '0'))
def touch_q(k):
    L = k.new_label('tq'); L5 = k.new_label('tq'); L6 = k.new_label('tq')
    k('s_cmp_lt_u32 s3, 4'); k(f's_cbranch_scc1 {L}')
    k('v_lshlrev_b32 v12, 7, v1')
    k('s_and_b32 s18, s13, 1'); k('s_lshl_b32 s19, s12, 1'); k('s_add_u32 s18, s18, s19'); k('s_lshl_b32 s18, s18, 2')
    k('s_lshr_b32 s19, s13, 1'); k('s_lshl_b32 s19, s19, 6'); k('s_add_u32 s18, s18, s19')
    k('s_lshl_b32 s19, s18, 12'); k('s_and_b32 s20, s3, 1'); k('s_lshl_b32 s20, s20, 13'); k('s_add_u32 s19, s19, s20')
    k('s_and_b32 s20, s3, 2'); k(f's_mul_i32 s20, s20, 0x{KVLS//2:x}'); k('s_add_u32 s19, s19, s20'); k(f's_add_u32 s19, s19, 0x{KVF:x}')
    k('buffer_load_dword v13, v12, s[4:7], s19 offen')
    k('s_cmp_lg_u32 s3, 4'); k(f's_cbranch_scc1 {L}')
    k('s_lshl_b32 s19, s18, 11'); k(f's_add_u32 s19, s19, 0x{QF:x}')
    k('buffer_load_dword v13, v12, s[4:7], s19 offen')
    k.label(L)
def touch_rest(k):
    L = k.new_label('tr'); L4 = k.new_label('tr'); L5 = k.new_label('tr')
    k('s_cmp_lt_u32 s3, 4'); k(f's_cbranch_scc1 {L}')
    k('s_cmp_lg_u32 s15, 0'); k(f's_cbranch_scc1 {L}')
    k('v_lshlrev_b32 v12, 7, v1')
    k('s_cmp_lg_u32 s3, 4'); k(f's_cbranch_scc1 {L4}')
    k('s_and_b32 s18, s13, 1'); k('s_lshl_b32 s19, s12, 1'); k('s_add_u32 s18, s18, s19'); k('s_lshl_b32 s18, s18, 11')
    k('s_lshr_b32 s19, s13, 1'); k('s_lshl_b32 s19, s19, 17'); k('s_add_u32 s18, s18, s19'); k(f's_add_u32 s18, s18, 0x{OF:x}')
    k('v_lshrrev_b32 v11, 4, v1'); k('v_lshlrev_b32 v11, 15, v11'); k('v_and_b32 v10, 15, v1'); k('v_lshl_add_u32 v11, v10, 7, v11')
    k('buffer_load_dword v13, v11, s[4:7], s18 offen')
    k.label(L4)
    k('s_cmp_ge_u32 s13, 28'); k(f's_cbranch_scc1 {L}')
    k('s_sub_u32 s18, s3, 4'); k('s_lshr_b32 s19, s18, 1'); k('s_and_b32 s18, s18, 1')
    k('s_lshl_b32 s20, s50, 1'); k('s_add_u32 s20, s20, s19'); k('s_mul_i32 s21, s20, 112'); k('s_lshl_b32 s19, s51, 4'); k('s_add_u32 s21, s21, s19')
    k('s_lshl_b32 s19, s18, 3'); k('s_add_u32 s21, s21, s19'); k('s_lshl_b32 s21, s21, 10'); k(f's_add_u32 s21, s21, 0x{ACT:x}')
    k('buffer_load_dword v13, v12, s[4:7], s21 offen')
    k('s_cmp_lg_u32 s18, 0'); k(f's_cbranch_scc1 {L5}')
    k('s_mul_i32 s21, s20, 28'); k('s_lshl_b32 s19, s51, 2'); k('s_add_u32 s21, s21, s19'); k('s_lshl_b32 s21, s21, 10'); k(f's_add_u32 s21, s21, 0x{XMID:x}')
    k('s_mov_b32 exec_hi, 0')
    k('buffer_load_dword v13, v12, s[4:7], s21 offen')
    k('s_mul_i32 s21, s20, 14'); k('s_lshl_b32 s19, s51, 1'); k('s_add_u32 s21, s21, s19'); k('s_lshl_b32 s21, s21, 9'); k(f's_add_u32 s21, s21, 0x{STM:x}')
    k('s_mov_b32 exec_lo, 0xff')
    k('buffer_load_dword v13, v12, s[4:7], s21 offen')
    k('s_mov_b32 exec_lo, -1'); k('s_mov_b32 exec_hi, -1')
    k(f's_branch {L}')
    k.label(L5)
    k('v_mul_u32_u24 v11, 896, v1')
    k(f's_mul_i32 s21, s20, {32*896}'); k('s_lshl_b32 s19, s51, 7'); k('s_add_u32 s21, s21, s19')
    k('s_mov_b32 exec_hi, 0')
    k('buffer_load_dword v13, v11, s[8:11], s21 offen')
    k('s_mov_b32 exec_hi, -1')
    k.label(L)

def gen_main():
    if TOUCH == 2: HOOKS['after_wo'] = touch_rest
    k = K('main_kernel', 512, 256, 163840, 256)
    prologue(k, [(72, 4, WS_BYTES), (56, 8, 2048*448*2)])
    k('v_lshrrev_b32 v3, 5, v1'); k('v_and_b32 v4, 31, v1'); k('v_lshlrev_b32 v5, 4, v1')
    k('v_add_u32 v6, 0x10000, v5'); k('v_add_u32 v7, 0x20000, v5')
    k('s_and_b32 s12, s2, 7'); k('s_lshr_b32 s13, s2, 3')
    k('s_mov_b32 s14, 0'); k('s_mov_b32 s47, 0'); k('s_mov_b32 s15, 0'); k(f's_mov_b32 s16, {FL}')
    if DBG:
        DW = int(os.environ.get('DBGWG', '0'))
        k('s_load_dwordx2 s[84:85], s[0:1], 64'); k('s_mov_b32 s86, 256'); k('s_mov_b32 s87, 0x00020000')
        k('s_mov_b32 s88, 0'); k('s_mov_b32 s89, 1')
        L = k.new_label('d')
        k(f's_cmp_lg_u32 s2, {DW}'); k(f's_cbranch_scc1 {L}'); k('s_mov_b32 s89, s3'); k.label(L)
        k('s_waitcnt lgkmcnt(0)')
        k('v_mov_b32 v2, 0')
    stamp(k, 'start')
    tl_roles(k)
    k('s_mov_b32 s17, 0'); k('s_mov_b32 s48, 0')
    if FAST:
        L = k.new_label('xc')
        k('s_getreg_b32 s46, hwreg(HW_REG_XCC_ID, 0, 4)'); k('s_add_u32 s46, s46, 1')
        k('s_cmp_lg_u32 s3, 0'); k(f's_cbranch_scc1 {L}')
        k('s_lshl_b32 s18, s12, 7'); k('s_lshl_b32 s19, s13, 2'); k('s_add_u32 s18, s18, s19'); k(f's_add_u32 s18, s18, {FL + XT}')
        k('v_mov_b32 v9, s46')
        k('s_mov_b32 exec_lo, 1'); k('s_mov_b32 exec_hi, 0')
        k('buffer_store_dword v9, off, s[4:7], s18 sc1')
        k('s_mov_b32 exec_lo, -1'); k('s_mov_b32 exec_hi, -1')
        k.label(L)
    wq_prefetch(k)
    if TOUCH >= 1: touch_q(k)
    if TOUCH == 1: touch_rest(k)
    TOP = k.new_label('top'); IDLE = k.new_label('idle'); NEXT = k.new_label('next'); END = k.new_label('fin')
    k.label(TOP)
    def stopchk(ph):
        if STOP < 5 and ph == STOP: k(f's_branch {END}')
        elif STOP >= 5 and STOP < 10 and ph == STOP - 5:
            k('s_cmp_eq_u32 s15, 1'); k(f's_cbranch_scc1 {END}')
    qkv(k); stopchk(0)
    attn(k); stopchk(1)
    k('s_cmp_ge_u32 s13, 28'); k(f's_cbranch_scc1 {IDLE}')
    wo(k); stopchk(2)
    ffn1(k); stopchk(3)
    ffn2(k); stopchk(4)
    k(f's_branch {NEXT}')
    k.label(IDLE)
    if STOP < 5: k(f's_branch {END}')
    k('s_cmp_lg_u32 s15, 0'); k(f's_cbranch_scc1 {END}')
    wq_prefetch(k)
    k.label(NEXT)
    stamp(k, 'end')
    k('s_cmp_lg_u32 s15, 0'); k(f's_cbranch_scc1 {END}')
    k('s_mov_b32 s15, 1'); k(f's_mov_b32 s14, 0x{LS:x}'); k(f's_mov_b32 s47, 0x{KVLS:x}'); k(f's_mov_b32 s16, {FL + FLS}')
    if DBG: k('s_mov_b32 s88, 32')
    k(f's_branch {TOP}')
    k.label(END)
    if DBG:
        L = k.new_label('d')
        k('s_cmp_lg_u32 s89, 0'); k(f's_cbranch_scc1 {L}')
        k('v_lshlrev_b32 v8, 2, v1')
        k('buffer_store_dword v2, v8, s[84:87], 0 offen')
        k.label(L)
    k.label(k.name + '_end')
    k('s_endpgm')
    return k

def build(path):
    p = gen_prep(); m = gen_main()
    open(path + '.names', 'w').write(' '.join(STN))
    return emit_file([p, m], [NAME + '_kernel', 'main_kernel'], path)
if __name__ == '__main__':
    build(sys.argv[1] if len(sys.argv) > 1 else 'p1.s')
```

```python
from g2a import *
DBG = os.environ.get('K2DEBUG', '0') == '1'
STOP = int(os.environ.get('STOP', '99'))
LWQ = 65536; LCS = LWQ + 86016; LSC = LCS + 512
LWO = 69632; LFLAG = 159744; LM = LFLAG + 64
LC1 = 57344; LST = LC1 + 2048; LE = 65536
POLLMAX = 1 << 15
STN = []
SKIP = set(os.environ.get('STSKIP', '').split(','))
def stamp(k, name):
    if not DBG or name in SKIP: return
    if name.startswith('*') and name in STN: i = STN.index(name)
    else: i = len(STN); STN.append(name)
    assert i < 32
    La, Lb = k.new_label('st'), k.new_label('st')
    k('s_memtime s[90:91]'); k('s_cmp_eq_u32 s88, 0'); k('s_waitcnt lgkmcnt(0)'); k.lg = []
    k(f's_cbranch_scc1 {La}')
    k(f'v_writelane_b32 v2, s90, {32+i}'); k(f's_branch {Lb}')
    k.label(La); k(f'v_writelane_b32 v2, s90, {i}'); k.label(Lb)
def poll(k, s_addr, n):
    L, Ld, Lt = k.new_label('pl'), k.new_label('pl'), k.new_label('pl')
    k('s_cmp_lg_u32 s3, 0'); k(f's_cbranch_scc1 {Ld}')
    k(f's_mov_b32 exec_lo, 0x{(1 << n) - 1:x}'); k('s_mov_b32 exec_hi, 0')
    k('v_lshlrev_b32 v8, 2, v1'); k('s_mov_b32 s18, 0')
    k.label(L)
    k(f'buffer_load_dword v9, v8, s[4:7], s{s_addr} offen sc1')
    k('s_waitcnt vmcnt(0)')
    k('v_cmp_eq_u32 vcc, 0, v9')
    k('s_add_u32 s18, s18, 1')
    k('s_nop 0')
    k('s_cmp_eq_u32 vcc_lo, 0'); k(f's_cbranch_scc1 {Lt}')
    k(f's_cmp_ge_u32 s18, {POLLMAX}'); k(f's_cbranch_scc1 {Lt}')
    k('s_sleep 1'); k(f's_branch {L}')
    k.label(Lt)
    k('s_mov_b32 exec_lo, -1'); k('s_mov_b32 exec_hi, -1')
    k.label(Ld)
    k('s_barrier')
FAST = os.environ.get('FAST', '1') == '1'
XT = 0x3800
def hstore(k, txts, tag=None, cold0=False):
    if not FAST:
        for t in txts: k.vmem(t + ' sc1', tag)
        return
    Ls, Lj = k.new_label('hs'), k.new_label('hs')
    k(f's_cmp_eq_u32 s{48 if (cold0 and HYB) else 17}, 0'); k(f's_cbranch_scc1 {Ls}')
    for t in txts: k(t)
    k(f's_branch {Lj}')
    k.label(Ls)
    for t in txts: k.vmem(t + ' sc1', tag)
    k.label(Lj)
HYB = os.environ.get('HYB', '1') == '1'
def publish(k, s_addr, local=False, skip_hi=False):
    if skip_hi:
        Lh = k.new_label('ph'); k('s_cmp_ge_u32 s3, 4'); k(f's_cbranch_scc1 {Lh}')
    k('s_waitcnt vmcnt(0)'); k.vm = []
    if skip_hi: k.label(Lh)
    stamp(k, 'drain')
    k('s_barrier')
    Ld = k.new_label('pb')
    k('s_cmp_lg_u32 s3, 0'); k(f's_cbranch_scc1 {Ld}')
    k('s_mov_b32 exec_lo, 1'); k('s_mov_b32 exec_hi, 0')
    k('v_mov_b32 v9, 1')
    if local: hstore(k, [f'buffer_store_dword v9, off, s[4:7], s{s_addr}'])
    else: k(f'buffer_store_dword v9, off, s[4:7], s{s_addr} sc1')
    k.vm = []
    k('s_mov_b32 exec_lo, -1'); k('s_mov_b32 exec_hi, -1')
    k.label(Ld)
    stamp(k, 'flag')
def stats_load(k, s_off, vb, vaddr):
    k(f'v_mul_u32_u24 v{vaddr}, {7*512}, v3'); k(f'v_lshl_add_u32 v{vaddr}, v4, 4, v{vaddr}')
    for i in range(7):
        k.vmem(f'buffer_load_dwordx4 {vr(vb+4*i)}, v{vaddr}, s[4:7], s{s_off} offen offset:{i*512} sc1', 'st')
def stats_finish(k, vb, rs, mr, tmp):
    for i in range(1, 7):
        for j in range(4): k(f'v_add_f32 v{vb+j}, v{vb+j}, v{vb+4*i+j}')
    k(f'v_add_f32 v{vb}, v{vb}, v{vb+2}'); k(f'v_add_f32 v{vb+1}, v{vb+1}, v{vb+3}')
    half_sum(k, vb, tmp); half_sum(k, vb+1, tmp)
    k(f'v_mul_f32 v{vb}, {fl(1/448)}, v{vb}'); k(f'v_mul_f32 v{vb+1}, {fl(1/448)}, v{vb+1}')
    k(f'v_fma_f32 v{vb+1}, -v{vb}, v{vb}, v{vb+1}')
    k(f'v_max_f32 v{vb+1}, 0, v{vb+1}'); k(f'v_add_f32 v{vb+1}, {fl(1e-5)}, v{vb+1}')
    k(f'v_rsq_f32 v{rs}, v{vb+1}'); k.nop(1)
    k(f'v_mul_f32 v{mr}, v{vb}, v{rs}'); k(f'v_sub_f32 v{mr}, 0, v{mr}')
def ldsr(dst, off):
    b = off >> 16
    return f'ds_read_b128 {vr(dst)}, v{5+b} offset:{off & 0xffff}'
MF = 'v_mfma_f32_32x32x16_bf16'

def wq_prefetch(k, track=False):
    k('s_lshr_b32 s18, s13, 1')
    k(f's_mul_i32 s19, s18, 86016'); k(f's_add_u32 s19, s19, 0x{WQ:x}')
    k('s_lshl_b32 s20, s3, 10'); k('s_add_u32 s19, s19, s20'); k(f's_add_u32 s20, s20, {LWQ}')
    for i in range(11):
        L = None
        if i == 10:
            L = k.new_label('wq'); k('s_cmp_ge_u32 s3, 4'); k(f's_cbranch_scc1 {L}')
        k(f's_add_u32 m0, s20, {8192*i}'); k(f's_add_u32 s21, s19, {8192*i}')
        k('buffer_load_dwordx4 v5, s[4:7], s21 offen lds')
        if track and i < 10: k.vm.append('wq')
    L2 = k.new_label('wq'); k(f's_branch {L2}')
    k.label(L)
    k('s_cmp_lg_u32 s3, 4'); k(f's_cbranch_scc1 {L2}')
    k('s_lshl_b32 s21, s18, 9'); k(f's_add_u32 s21, s21, 0x{CSQ:x}')
    k(f's_mov_b32 m0, {LCS}'); k('s_mov_b32 exec_hi, 0')
    k('buffer_load_dwordx4 v5, s[4:7], s21 offen lds')
    k('s_mov_b32 exec_hi, -1')
    k.label(L2)

def w1reg(ks): return 176 + 4*ks if ks < 20 else 96 + 4*(ks - 20)
def w1pf(k, ks):
    k(f's_add_u32 s55, s54, {(ks//4)*4096}')
    k.vmem(f'buffer_load_dwordx4 {vr(w1reg(ks))}, v5, s[4:7], s55 offen offset:{(ks%4)*1024}', 'pf')
def tl_roles(k):
    k('s_and_b32 s50, s13, 3'); k('s_lshl_b32 s51, s12, 2'); k('s_add_u32 s50, s50, s51'); k('s_lshr_b32 s51, s13, 2')
    k('s_lshl_b32 s54, s51, 3'); k('s_add_u32 s54, s54, s3'); k(f's_mul_i32 s54, s54, {28*1024}'); k(f's_add_u32 s54, s54, 0x{W1:x}')

HOOKS = {}
def qkv(k):
    XF, WB, AQ, AK, AV, SB = 16, 72, 96, 112, 128, 144
    Lhi = k.new_label('qh')
    Lend = k.new_label('qe')
    k('s_and_b32 s22, s13, 1'); k('s_lshl_b32 s23, s12, 1'); k('s_add_u32 s22, s22, s23'); k('s_lshr_b32 s23, s13, 1')
    Ln = k.new_label('q0')
    k('s_cmp_eq_u32 s15, 0'); k(f's_cbranch_scc1 {Ln}')
    k('s_lshl_b32 s24, s22, 7'); k(f's_add_u32 s24, s24, {FL + F2}')
    k('s_waitcnt vmcnt(0)')
    poll(k, 24, 14)
    Lg = k.new_label('q1'); k(f's_branch {Lg}')
    k.label(Ln); k('s_waitcnt vmcnt(0)'); k('s_barrier'); k.label(Lg)
    stamp(k, 'q.sync')
    k('s_cmp_ge_u32 s3, 4'); k(f's_cbranch_scc1 {Lhi}')
    k('s_lshl_b32 s25, s22, 2'); k('s_add_u32 s25, s25, s3')
    k(f's_mul_i32 s26, s25, {28*1024}'); k('s_add_u32 s26, s26, s14'); k(f's_add_u32 s26, s26, 0x{XIN:x}')
    k(f's_mul_i32 s27, s25, {STB}'); k('s_add_u32 s27, s27, s14'); k(f's_add_u32 s27, s27, 0x{STI:x}')
    DEPTH = 14
    def xload(ks):
        if ks % 4 == 0: k(f's_add_u32 s21, s26, {ks*1024}')
        k.vmem(f'buffer_load_dwordx4 {vr(XF+4*(ks%DEPTH))}, v5, s[4:7], s21 offen offset:{(ks%4)*1024} sc1', f'x{ks}')
    def wread(ks):
        b = WB + 12 * (ks % 2)
        for i in range(3): k.ds(ldsr(b+4*i, LWQ + (ks*3+i)*1024), f'w{ks}')
    for ks in range(DEPTH): xload(ks)
    stats_load(k, 27, SB, 0)
    wread(0)
    nxt = DEPTH; npf = 0
    for ks in range(28):
        if ks + 1 < 28: wread(ks + 1)
        k.vm_wait(f'x{ks}'); k.lg_wait(f'w{ks}')
        b = WB + 12 * (ks % 2); x = vr(XF + 4*(ks%DEPTH))
        c = lambda A: '0' if ks == 0 else vr(A, 16)
        k(f'{MF} {vr(AQ,16)}, {vr(b)}, {x}, {c(AQ)}')
        k(f'{MF} {vr(AK,16)}, {vr(b+4)}, {x}, {c(AK)}')
        k(f'{MF} {vr(AV,16)}, {x}, {vr(b+8)}, {c(AV)}')
        if nxt < 28:
            if nxt % 4 and ks == 0: k(f's_add_u32 s21, s26, {(nxt//4)*4096}')
            xload(nxt); nxt += 1
    k('s_barrier')
    stamp(k, 'q.mfma')
    k.vm_wait()
    RS, MR = 8, 9
    stats_finish(k, SB, RS, MR, 10)
    k('s_lshl_b32 s28, s3, 8'); k(f's_add_u32 s28, s28, {LSC}')
    k('v_lshlrev_b32 v10, 3, v4'); k('v_add_u32 v10, s28, v10')
    k(f'ds_write_b64 v10, v[{RS}:{MR}]')
    k('v_lshlrev_b32 v11, 6, v3'); k(f'v_add_u32 v11, {LCS}, v11')
    for i in range(4): k(f'ds_read_b128 {vr(16+4*i)}, v11 offset:{16*i}')
    for i in range(4): k(f'ds_read_b128 {vr(32+4*i)}, v11 offset:{128+16*i}')
    k('v_lshlrev_b32 v11, 2, v4'); k(f'v_add_u32 v11, {LCS+256}, v11')
    k('ds_read_b32 v48, v11')
    k('s_waitcnt lgkmcnt(0)')
    k('v_lshlrev_b32 v11, 5, v3'); k('v_add_u32 v11, s28, v11')
    for g in range(4):
        k(f'ds_read_b128 {vr(64+8*g)}, v11 offset:{64*g}')
        k(f'ds_read_b128 {vr(64+8*g+4)}, v11 offset:{64*g+16}')
    SC = (28 ** -0.5) * LOG2E
    k(f'v_mul_f32 v14, {fl(SC)}, v{RS}'); k(f'v_mul_f32 v15, {fl(SC)}, v{MR}')
    k('v_mov_b32 v12, 0'); k('v_mov_b32 v13, 0')
    for r in range(16): k(f'v_mul_f32 v{16+r}, v15, v{16+r}')
    for r in range(16): k(f'v_fma_f32 v{AQ+r}, v14, v{AQ+r}, v{16+r}')
    for r in range(16): k(f'v_mul_f32 v{32+r}, v{MR}, v{32+r}')
    for r in range(16): k(f'v_fma_f32 v{AK+r}, v{RS}, v{AK+r}, v{32+r}')
    k('v_mov_b32 v10, 0'); k('v_mov_b32 v11, 0')
    for r in range(0, 16, 2):
        k(f'v_fmac_f32 v12, v{AQ+r}, v{AQ+r}'); k(f'v_fmac_f32 v13, v{AK+r}, v{AK+r}')
        k(f'v_fmac_f32 v10, v{AQ+r+1}, v{AQ+r+1}'); k(f'v_fmac_f32 v11, v{AK+r+1}, v{AK+r+1}')
    k('v_add_f32 v12, v12, v10'); k('v_add_f32 v13, v13, v11')
    half_sum(k, 12, 10); half_sum(k, 13, 10)
    k('v_sqrt_f32 v12, v12'); k.nop(1)
    k('s_mov_b32 exec_lo, 0')
    k(f'v_mov_b32 v{AQ+14}, v12'); k(f'v_mov_b32 v{AK+12}, 1.0'); k(f'v_mov_b32 v{AK+13}, 1.0')
    k('s_mov_b32 exec_lo, -1')
    wave_max(k, 13)
    k('v_cmp_eq_u32 vcc, 28, v4'); k('v_mov_b32 v49, 0'); k('v_mov_b32 v50, 1.0'); k.nop(1)
    k('v_cndmask_b32 v49, v49, v50, vcc')
    k('s_waitcnt lgkmcnt(0)')
    for r in range(16):
        g, i = r >> 2, r & 3
        k(f'v_fma_f32 v{64+8*g+2*i+1}, v{64+8*g+2*i+1}, v48, v49')
    for r in range(16):
        g, i = r >> 2, r & 3
        k(f'v_fma_f32 v{AV+r}, v{64+8*g+2*i}, v{AV+r}, v{64+8*g+2*i+1}')
    for A, d in ((AQ, 16), (AK, 24), (AV, 32)):
        for i in range(8): k(f'v_cvt_pk_bf16_f32 v{d+i}, v{A+2*i}, v{A+2*i+1}')
    k('s_lshl_b32 s29, s23, 6'); k('s_add_u32 s29, s29, s25')
    k('s_lshl_b32 s30, s29, 11'); k('s_add_u32 s30, s30, s14'); k(f's_add_u32 s30, s30, 0x{QF:x}')
    k('s_lshl_b32 s31, s29, 12'); k('s_add_u32 s31, s31, s47'); k(f's_add_u32 s31, s31, 0x{KVF:x}')
    k('s_lshl_b32 s32, s29, 2'); k('s_lshr_b32 s33, s47, 10'); k('s_add_u32 s32, s32, s33'); k(f's_add_u32 s32, s32, 0x{KN:x}')
    for i in range(4): k(f'buffer_store_dwordx4 {vr(24+4*i)}, v5, s[4:7], s31 offen offset:{1024*i} sc1')
    k(f'buffer_store_dwordx4 v[16:19], v5, s[4:7], s30 offen sc1')
    k(f'buffer_store_dwordx4 v[20:23], v5, s[4:7], s30 offen offset:1024 sc1')
    k('s_mov_b32 exec_lo, 0'); k('s_mov_b32 exec_hi, 0x80000000')
    k('buffer_store_dword v13, off, s[4:7], s32 sc1')
    k('s_mov_b32 exec_lo, -1'); k('s_mov_b32 exec_hi, -1')
    k(f's_branch {Lend}')
    k.label(Lhi)
    sv = list(k.vm)
    k('s_barrier')
    k('s_lshl_b32 s52, s51, 16'); k('s_sub_u32 s53, s3, 4'); k('s_lshl_b32 s53, s53, 10'); k('s_add_u32 s52, s52, s53')
    k(f's_add_u32 s52, s52, 0x{WO:x}'); k(f's_add_u32 s53, s53, {LWO}')
    for n in range(16):
        k(f's_add_u32 m0, s53, {4096*n}'); k(f's_add_u32 s55, s52, {4096*n}')
        k('buffer_load_dwordx4 v5, s[4:7], s55 offen lds')
    if HOOKS.get('after_wo'): HOOKS['after_wo'](k)
    k.vm = sv
    k.label(Lend)
    k.lg = []
    k('s_lshl_b32 s24, s23, 7'); k('s_lshl_b32 s25, s22, 2'); k('s_add_u32 s24, s24, s25'); k('s_add_u32 s24, s24, s16')
    stamp(k, 'q.epi')
    publish(k, 24, skip_hi=True)

def attn(k):
    Q, KV, S, P, O, C = 16, 32, 96, 128, 144, 14
    D = 4
    k('s_and_b32 s20, s13, 1'); k('s_lshl_b32 s22, s12, 1'); k('s_add_u32 s22, s22, s20')
    k('s_lshr_b32 s21, s13, 1')
    k('s_lshl_b32 s24, s22, 7'); k('s_add_u32 s24, s24, s16')
    poll(k, 24, 16)
    stamp(k, 'a.sync')
    k('s_and_b32 s23, s3, 1'); k('s_lshr_b32 s24, s3, 1')
    k('s_lshl_b32 s25, s21, 2'); k('s_lshl_b32 s26, s23, 1'); k('s_add_u32 s25, s25, s26')
    k('s_lshl_b32 s27, s22, 6')
    k('s_add_u32 s28, s27, s25'); k('s_lshl_b32 s28, s28, 11'); k('s_add_u32 s28, s28, s14'); k(f's_add_u32 s28, s28, 0x{QF:x}')
    k('s_lshl_b32 s29, s24, 4'); k('s_add_u32 s29, s29, s27'); k('s_lshl_b32 s29, s29, 12')
    k('s_add_u32 s29, s29, s47'); k(f's_add_u32 s29, s29, 0x{KVF:x}')
    k('s_lshl_b32 s30, s27, 2'); k('s_lshr_b32 s33, s47, 10'); k('s_add_u32 s30, s30, s33'); k(f's_add_u32 s30, s30, 0x{KN:x}')
    k('v_lshlrev_b32 v0, 2, v1')
    if FAST:
        k('s_lshl_b32 s18, s12, 7'); k(f's_add_u32 s18, s18, {FL + XT}'); k('v_lshlrev_b32 v8, 2, v4')
        k.vmem('buffer_load_dword v12, v8, s[4:7], s18 offen sc1', 'kn')
    k.vmem('buffer_load_dword v11, v0, s[4:7], s30 offen sc1', 'kn')
    for i in range(4): k.vmem(f'buffer_load_dwordx4 {vr(Q+4*i)}, v5, s[4:7], s28 offen offset:{1024*i} sc1', 'q')
    k('v_mov_b32 v8, 0'); k(f'v_mov_b32 v9, {LFLAG}'); k('ds_write_b32 v9, v8')
    k('s_mov_b32 s40, 0')
    def kvload(kb):
        b = KV + 16 * (kb % D)
        k(f's_add_u32 s31, s29, {kb*4096}')
        for i in range(4):
            k.vmem(f'buffer_load_dwordx4 {vr(b+4*i)}, v5, s[4:7], s31 offen offset:{1024*i}', f'k{kb}' if i < 2 else f'v{kb}')
    for kb in range(D): kvload(kb)
    k.vm_wait('kn')
    if FAST:
        k('v_cmp_ne_u32 vcc, s46, v12'); k('s_nop 1')
        k('s_or_b32 s18, vcc_lo, vcc_hi'); k('s_cmp_eq_u32 s18, 0'); k('s_cselect_b32 s17, 1, 0')
        k('s_and_b32 s48, s17, s15')
        if os.environ.get('DELAYTEST'):
            L2 = k.new_label('dl'); L3 = k.new_label('dl')
            k('s_cmp_lg_u32 s17, 0'); k(f's_cbranch_scc1 {L3}')
            k('s_mov_b32 s18, 0')
            k.label(L2)
            k('s_sleep 8'); k('s_add_u32 s18, s18, 1'); k('s_cmp_lt_u32 s18, 40'); k(f's_cbranch_scc1 {L2}')
            k.label(L3)
    wave_max(k, 11); k.nop(1)
    k('v_readlane_b32 s32, v11, 63'); k.nop(2)
    k('v_sqrt_f32 v11, s32'); k.nop(1)
    k(f'v_mul_f32 v11, {fl(1.0+1/64)}, v11')
    k.vm_wait('q')
    def set_shift(q, cv):
        d = Q + 8*q + 4 + 2
        k(f'v_cvt_pk_bf16_f32 v8, v{cv}, v{cv}'); k('v_and_b32 v8, 0xffff0000, v8')
        k(f'v_sub_f32 v9, v{cv}, v8'); k(f'v_cvt_pk_bf16_f32 v10, v9, v9'); k('v_and_b32 v10, 0xffff0000, v10')
        k(f'v_add_f32 v{cv}, v8, v10'); k('v_cvt_pk_bf16_f32 v9, -v8, -v10')
        k('s_mov_b32 exec_lo, 0'); k(f'v_mov_b32 v{d}, v9'); k('s_mov_b32 exec_lo, -1')
    for q in range(2):
        k(f'v_lshlrev_b32 v{C+q}, 16, v{Q+8*q+4+3}'); k(f'v_mul_f32 v{C+q}, v{C+q}, v11')
        set_shift(q, C+q)
    MAIN = k.new_label('main'); FIN = k.new_label('fin')
    k.label(MAIN)
    NT = 32
    def smf(n, which):
        kb, q = n >> 1, n & 1
        b = KV + 16*(kb % D); s = S + 16*(n % 2)
        if which == 0: return f'{MF} {vr(s,16)}, {vr(b)}, {vr(Q+8*q)}, 0'
        return f'{MF} {vr(s,16)}, {vr(b+4)}, {vr(Q+8*q+4)}, {vr(s,16)}'
    def pmf(n, which):
        kb, q = n >> 1, n & 1
        b = KV + 16*(kb % D) + 8; p = P + 8*(n % 2); o = O + 16*q
        c = '0' if (n < 2 and which == 0) else vr(o, 16)
        return f'{MF} {vr(o,16)}, {vr(b+4*which)}, {vr(p+4*which)}, {c}'
    k.vm_wait('k0')
    stamp(k, 'a.k0')
    k.nop(2); k(smf(0, 0)); k(smf(0, 1)); k.nop(16)
    PRIO = os.environ.get('APRIO', '1') == '1'
    for n in range(NT + 1):
        if PRIO and n % 8 == 0 and n < NT: k(f's_setprio {3 - n//8}')
        valu = []
        if n < NT:
            s = S + 16*(n % 2); p = P + 8*(n % 2)
            valu = [f'v_exp_f32 v{s+r}, v{s+r}' for r in range(16)]
            valu += [f'v_cvt_pk_bf16_f32 v{p+i}, v{s+2*i}, v{s+2*i+1}' for i in range(8)]
        mf = []
        if n + 1 < NT:
            if (n + 1) % 2 == 0: k.vm_wait(f'k{(n+1)>>1}')
            mf += [smf(n+1, 0), smf(n+1, 1)]
        if n >= 1:
            k.vm_wait(f'v{(n-1)>>1}')
            mf += [pmf(n-1, 0), pmf(n-1, 1)]
        if n == NT: k.nop(2)
        pos = [0, 6, 12, 18] if len(mf) == 4 else ([0, 6] if n == 0 else [12, 18])
        mi = 0
        if not valu:
            for m in mf: k(m)
        else:
            for i, v in enumerate(valu):
                while mi < len(mf) and pos[mi] == i:
                    k(mf[mi]); mi += 1
                k(v)
        if n >= 1 and (n - 1) % 2 == 1:
            kbn = ((n - 1) >> 1) + D
            if kbn < 16: kvload(kbn)
        if 2 <= n < 22: w1pf(k, n - 2)
    for ks in range(20, 28): w1pf(k, ks)
    k.nop(8)
    stamp(k, 'a.main')
    k('s_lshl_b32 s33, s3, 13'); k('v_add_u32 v8, s33, v5')
    for q in range(2):
        for i in range(4): k(f'ds_write_b128 v8, {vr(O+16*q+4*i)} offset:{q*4096+i*1024}')
    k('s_waitcnt lgkmcnt(0)'); k('s_barrier')
    k('s_lshr_b32 s34, s24, 1'); k('s_and_b32 s35, s24, 1')
    k('s_lshl_b32 s36, s23, 13'); k('s_lshl_b32 s37, s34, 12'); k('s_add_u32 s36, s36, s37')
    k('s_lshl_b32 s37, s35, 11'); k('s_add_u32 s37, s37, s36')
    k('v_add_u32 v8, s37, v5')
    k('v_lshlrev_b32 v9, 4, v4'); k(f'v_add_u32 v9, {3*1024 + 32*16}, v9'); k('v_add_u32 v9, s36, v9')
    for j in range(4):
        k(f'ds_read_b128 {vr(32+8*j)}, v8 offset:{j*16384}')
        k(f'ds_read_b128 {vr(36+8*j)}, v8 offset:{j*16384+1024}')
        k(f'ds_read_b32 v{64+j}, v9 offset:{j*16384}')
    k('s_waitcnt lgkmcnt(0)')
    for j in range(1, 4):
        for r in range(8): k(f'v_add_f32 v{32+r}, v{32+r}, v{32+8*j+r}')
        k(f'v_add_f32 v64, v64, v{64+j}')
    k('v_rcp_f32 v65, v64')
    k(f'v_mov_b32 v66, {fl(2.0**-80)}'); k('v_cmp_nge_f32 vcc, v64, v66')
    k(f'v_mov_b32 v66, {fl(2.0**100)}'); k('v_cmp_nle_f32 s[38:39], v64, v66')
    for r in range(8): k(f'v_mul_f32 v{32+r}, v{32+r}, v65')
    for i in range(4): k(f'v_cvt_pk_bf16_f32 v{40+i}, v{32+2*i}, v{32+2*i+1}')
    k('s_add_u32 s41, s25, s34'); k('s_lshl_b32 s41, s41, 5'); k('s_lshl_b32 s42, s22, 1')
    k('s_add_u32 s41, s41, s42'); k('s_add_u32 s41, s41, s35'); k('s_lshl_b32 s41, s41, 10')
    k('s_add_u32 s41, s41, s14'); k(f's_add_u32 s41, s41, 0x{OF:x}')
    k('buffer_store_dwordx4 v[40:43], v5, s[4:7], s41 offen sc1')
    k('s_or_b64 vcc, vcc, s[38:39]')
    Lok = k.new_label('ok')
    k(f's_cbranch_vccz {Lok}')
    k('v_mov_b32 v8, 1'); k(f'v_mov_b32 v9, {LFLAG}'); k('ds_write_b32 v9, v8')
    k.label(Lok)
    stamp(k, 'a.st')
    k('s_waitcnt vmcnt(0) lgkmcnt(0)'); k.vm = []
    stamp(k, 'a.drain')
    k('s_barrier')
    k(f'v_mov_b32 v9, {LFLAG}'); k('ds_read_b32 v8, v9'); k('s_waitcnt lgkmcnt(0)'); k('s_nop 0')
    k('v_readfirstlane_b32 s43, v8')
    k('s_cmp_eq_u32 s43, 0'); k(f's_cbranch_scc1 {FIN}')
    k('s_cmp_lg_u32 s40, 0'); k(f's_cbranch_scc1 {FIN}')
    k('s_mov_b32 s40, 1')
    k(f'v_mov_b32 v66, 0xff800000'); k(f'v_mov_b32 v67, 0xff800000')
    k('s_mov_b32 s44, 0')
    LP = k.new_label('mx'); k.label(LP)
    k('s_lshl_b32 s45, s44, 12'); k('s_add_u32 s45, s45, s29')
    k(f'buffer_load_dwordx4 {vr(KV)}, v5, s[4:7], s45 offen')
    k(f'buffer_load_dwordx4 {vr(KV+4)}, v5, s[4:7], s45 offen offset:1024')
    k('s_waitcnt vmcnt(0)')
    for q in range(2):
        s = 64 + 0 if False else 48 + 0
    for q in range(2):
        s = 128 + 16*q
        k(f'{MF} {vr(s,16)}, {vr(KV)}, {vr(Q+8*q)}, 0'); k(f'{MF} {vr(s,16)}, {vr(KV+4)}, {vr(Q+8*q+4)}, {vr(s,16)}')
    k.nop(20)
    for q in range(2):
        s = 128 + 16*q
        for r in range(0, 16, 2): k(f'v_max3_f32 v{66+q}, v{66+q}, v{s+r}, v{s+r+1}')
    k('s_add_u32 s44, s44, 1'); k('s_cmp_lt_u32 s44, 16'); k(f's_cbranch_scc1 {LP}')
    for q in range(2):
        k(f'v_mov_b32 v68, v{66+q}'); k.nop(2)
        k(f'v_permlane32_swap_b32 v{66+q}, v68'); k.nop(1)
        k(f'v_max_f32 v{66+q}, v{66+q}, v68')
    k('s_lshl_b32 s45, s3, 8'); k(f's_add_u32 s45, s45, {LM}')
    k('v_lshlrev_b32 v8, 2, v4'); k('v_add_u32 v9, s45, v8')
    k('ds_write_b32 v9, v66'); k('ds_write_b32 v9, v67 offset:128')
    k('s_waitcnt lgkmcnt(0)'); k('s_barrier')
    k('s_lshl_b32 s45, s23, 8'); k(f's_add_u32 s45, s45, {LM}'); k('v_add_u32 v9, s45, v8')
    for j in range(4):
        k(f'ds_read_b32 v{32+2*j}, v9 offset:{j*512}'); k(f'ds_read_b32 v{33+2*j}, v9 offset:{j*512+128}')
    k(f'v_mov_b32 v8, 0'); k(f'v_mov_b32 v10, {LFLAG}'); k('ds_write_b32 v10, v8')
    k('s_waitcnt lgkmcnt(0)')
    for q in range(2):
        k(f'v_max3_f32 v{32+q}, v{32+q}, v{34+q}, v{36+q}'); k(f'v_max_f32 v{32+q}, v{32+q}, v{38+q}')
        k(f'v_add_f32 v{C+q}, v{C+q}, v{32+q}')
        set_shift(q, C+q)
    k('s_barrier')
    k.vm = []
    for kb in range(D): kvload(kb)
    k(f's_branch {MAIN}')
    k.label(FIN)
    k.vm = []; k.lg = []
    k('s_setprio 0')
    k('s_lshl_b32 s24, s21, 7'); k('s_lshl_b32 s25, s22, 2'); k('s_add_u32 s24, s24, s25'); k('s_add_u32 s24, s24, s16')
    k(f's_add_u32 s24, s24, {FA}')
    Ld = k.new_label('pb')
    k('s_cmp_lg_u32 s3, 0'); k(f's_cbranch_scc1 {Ld}')
    k('s_mov_b32 exec_lo, 1'); k('s_mov_b32 exec_hi, 0'); k('v_mov_b32 v9, 1')
    k(f'buffer_store_dword v9, off, s[4:7], s24 sc1')
    k('s_mov_b32 exec_lo, -1'); k('s_mov_b32 exec_hi, -1')
    k.label(Ld)
    stamp(k, 'a.end')
```

```python
from g2b import *

def wave_roles(k):
    k('s_and_b32 s56, s3, 3'); k('s_lshr_b32 s57, s3, 2')
    k('s_lshl_b32 s58, s50, 1'); k('s_add_u32 s58, s58, s57')
    k('s_lshl_b32 s59, s51, 2'); k('s_add_u32 s59, s59, s56')

def reduce_fin(k, acc, tmp, res, xdst, stdst, final_ok, pre=None, cold0=False, nobar=False, reswait=False):
    k.nop(16)
    if not nobar: k('s_barrier')
    if pre: pre()
    k('s_lshl_b32 s60, s57, 15'); k('s_lshl_b32 s61, s56, 11'); k('s_add_u32 s61, s61, s60'); k('v_add_u32 v8, s61, v5')
    for j in range(4):
        k(f'ds_write_b128 v8, {vr(acc+8*j)} offset:{j*8192}')
        k(f'ds_write_b128 v8, {vr(acc+8*j+4)} offset:{j*8192+1024}')
    k('s_lshl_b32 s61, s56, 13'); k('s_add_u32 s61, s61, s60'); k('v_add_u32 v9, s61, v5')
    k('s_mul_i32 s62, s58, 28'); k('s_add_u32 s62, s62, s59'); k('s_lshl_b32 s62, s62, 10'); k('s_add_u32 s62, s62, s14')
    k(f's_add_u32 s62, s62, 0x{xdst:x}')
    k('s_lshr_b32 s63, s59, 1'); k('s_mul_i32 s60, s58, 14'); k('s_add_u32 s63, s63, s60'); k('s_lshl_b32 s63, s63, 9')
    k('s_and_b32 s60, s59, 1'); k('s_lshl_b32 s60, s60, 3'); k('s_add_u32 s63, s63, s60'); k('s_add_u32 s63, s63, s14')
    k(f's_add_u32 s63, s63, 0x{stdst:x}')
    k('s_waitcnt lgkmcnt(0)'); k('s_barrier')
    stamp(k, 'red.w')
    for s in range(4):
        k(f'ds_read_b128 {vr(tmp+8*s)}, v9 offset:{s*2048}'); k(f'ds_read_b128 {vr(tmp+8*s+4)}, v9 offset:{s*2048+1024}')
    if reswait:
        Lr, Lr2 = k.new_label('rw'), k.new_label('rw')
        k('s_cmp_eq_u32 s3, 0'); k(f's_cbranch_scc1 {Lr}')
        k('s_waitcnt vmcnt(0)'); k(f's_branch {Lr2}')
        k.label(Lr); k('s_waitcnt vmcnt(12)'); k.label(Lr2); k.vm = []
    for i in range(4):
        k(f'v_lshlrev_b32 v{acc+2*i}, 16, v{res+i}'); k(f'v_and_b32 v{acc+2*i+1}, 0xffff0000, v{res+i}')
    for s in range(4):
        k(f's_waitcnt lgkmcnt({6-2*s})')
        for r in range(8): k(f'v_add_f32 v{acc+r}, v{acc+r}, v{tmp+8*s+r}')
    k.lg = []
    for i in range(4): k(f'v_cvt_pk_bf16_f32 v{tmp+i}, v{acc+2*i}, v{acc+2*i+1}')
    Lf, Le = k.new_label('rf'), k.new_label('re')
    if final_ok:
        k('s_cmp_lg_u32 s15, 0'); k(f's_cbranch_scc1 {Lf}')
    hstore(k, [f'buffer_store_dwordx4 {vr(tmp)}, v5, s[4:7], s62 offen'], cold0=cold0)
    k(f'v_add_f32 v8, v{acc}, v{acc+1}'); k(f'v_mul_f32 v9, v{acc}, v{acc}'); k(f'v_fmac_f32 v9, v{acc+1}, v{acc+1}')
    k(f'v_add_f32 v10, v{acc+2}, v{acc+3}'); k(f'v_mul_f32 v11, v{acc+2}, v{acc+2}'); k(f'v_fmac_f32 v11, v{acc+3}, v{acc+3}')
    for r in range(4, 8, 2):
        k(f'v_add_f32 v8, v8, v{acc+r}'); k(f'v_fmac_f32 v9, v{acc+r}, v{acc+r}')
        k(f'v_add_f32 v10, v10, v{acc+r+1}'); k(f'v_fmac_f32 v11, v{acc+r+1}, v{acc+r+1}')
    k('v_add_f32 v8, v8, v10'); k('v_add_f32 v9, v9, v11')
    half_sum(k, 8, 10); half_sum(k, 9, 10)
    k('v_lshlrev_b32 v10, 4, v4')
    k('s_mov_b32 exec_hi, 0')
    hstore(k, ['buffer_store_dwordx2 v[8:9], v10, s[4:7], s63 offen'], cold0=cold0)
    k('s_mov_b32 exec_hi, -1')
    if final_ok:
        k(f's_branch {Le}')
        k.label(Lf)
        k.nop(2)
        k(f'v_permlane32_swap_b32 v{tmp}, v{tmp+2}'); k(f'v_permlane32_swap_b32 v{tmp+1}, v{tmp+3}')
        k('v_mul_u32_u24 v10, 896, v4'); k('v_lshl_add_u32 v10, v3, 4, v10')
        k(f's_mul_i32 s62, s58, {32*896}'); k('s_lshl_b32 s63, s59, 5'); k('s_add_u32 s62, s62, s63')
        k(f'buffer_store_dwordx4 {vr(tmp)}, v10, s[8:11], s62 offen')
        k.label(Le)

def res_load(k, res, xsrc):
    k('s_mul_i32 s60, s58, 28'); k('s_add_u32 s60, s60, s59'); k('s_lshl_b32 s60, s60, 10'); k('s_add_u32 s60, s60, s14')
    k(f's_add_u32 s60, s60, 0x{xsrc:x}')
    k.vmem(f'buffer_load_dwordx4 {vr(res)}, v5, s[4:7], s60 offen sc1', 'res')

WONB = os.environ.get('WONB', '1') == '1'
def w2early(k):
    w2src(k, 30); k(f's_add_u32 s31, s30, {112*1024}')
    for i in range(6):
        for n in range(2):
            if i % 4 == 0: k(f's_add_u32 s{36+n}, s{30+n}, {(i//4)*4096}')
            k.vmem(f'buffer_load_dwordx4 {vr(w2reg(i,n))}, v5, s[4:7], s{36+n} offen offset:{(i%4)*1024}', 'pf')
def wo(k):
    OFR, WB, ACC, RES = 16, 48, 64, 48
    wave_roles(k)
    L0 = k.new_label('w0')
    k('s_cmp_eq_u32 s3, 0'); k(f's_cbranch_scc1 {L0}')
    w2early(k); k.vm = []
    k.label(L0)
    k('s_lshr_b32 s24, s50, 1'); k('s_lshl_b32 s24, s24, 7'); k('s_add_u32 s24, s24, s16'); k(f's_add_u32 s24, s24, {FA}')
    k('s_lshl_b32 s25, s56, 13'); k(f's_add_u32 s25, s25, {LWO}'); k('v_add_u32 v12, s25, v5')
    def wread(i):
        for n in range(2): k.ds(f'ds_read_b128 {vr(WB+8*(i%2)+4*n)}, v12 offset:{n*32768+i*1024}', f'w{i}')
    for i in range(2): wread(i)
    k('s_lshl_b32 s26, s58, 5'); k('s_lshl_b32 s27, s56, 3'); k('s_add_u32 s26, s26, s27'); k('s_lshl_b32 s26, s26, 10')
    k('s_add_u32 s26, s26, s14'); k(f's_add_u32 s26, s26, 0x{OF:x}'); k('s_add_u32 s27, s26, 4096')
    poll(k, 24, 16, OFR)
    stamp(k, 'w.sync')
    for i in range(8):
        k.vmem(f'buffer_load_dwordx4 {vr(OFR+4*i)}, v5, s[4:7], s{26+i//4} offen offset:{(i%4)*1024} sc1', f'o{i}')
    for i in range(8):
        k.vm_wait(f'o{i}'); k.lg_wait(f'w{i}')
        for n in range(2):
            c = '0' if i == 0 else vr(ACC+16*n, 16)
            k(f'{MF} {vr(ACC+16*n,16)}, {vr(WB+8*(i%2)+4*n)}, {vr(OFR+4*i)}, {c}')
        if i + 2 < 8: wread(i + 2)
    res_load(k, RES, XIN)
    L1 = k.new_label('w1')
    k('s_cmp_lg_u32 s3, 0'); k(f's_cbranch_scc1 {L1}')
    sv = list(k.vm); w2early(k); k.vm = sv
    k.label(L1)
    stamp(k, 'w.mfma')
    reduce_fin(k, ACC, 16, RES, XMID, STM, False, cold0=True, nobar=WONB, reswait=True)
    k('s_lshl_b32 s24, s50, 7'); k('s_lshl_b32 s25, s51, 2'); k('s_add_u32 s24, s24, s25'); k('s_add_u32 s24, s24, s16')
    k(f's_add_u32 s24, s24, {FW}')
    stamp(k, 'w.st')
    publish(k, 24, local=True)

def w2src(k, sdst):
    k(f's_mul_i32 s{sdst}, s51, 224'); k(f's_mul_i32 s60, s56, 28'); k(f's_add_u32 s{sdst}, s{sdst}, s60')
    k(f's_lshl_b32 s{sdst}, s{sdst}, 10'); k(f's_add_u32 s{sdst}, s{sdst}, 0x{W2:x}')
def w2reg(i, n):
    if i < 6: return 128 + 8*i + 4*n
    assert 18 <= i < 22
    return 176 + 8*(i-18) + 4*n

F1PRIO = os.environ.get('F1PRIO', '1') == '1'
def ffn1(k):
    A0, A1, T, U, XB = 16, 32, 48, 64, 80
    k('s_lshl_b32 s24, s50, 7'); k('s_add_u32 s24, s24, s16'); k(f's_add_u32 s24, s24, {FW}')
    k('s_lshl_b32 s25, s51, 3'); k('s_add_u32 s25, s25, s3')
    k('s_lshl_b32 s26, s25, 8'); k(f's_add_u32 s26, s26, 0x{C1:x}')
    k('s_lshl_b32 s27, s3, 8'); k(f's_add_u32 m0, s27, {LC1}')
    k('s_mov_b32 exec_lo, 0xffff'); k('s_mov_b32 exec_hi, 0')
    k('buffer_load_dwordx4 v5, s[4:7], s26 offen lds')
    k('s_mov_b32 exec_lo, -1'); k('s_mov_b32 exec_hi, -1')
    k(f's_mul_i32 s28, s50, {56*1024}'); k('s_lshl_b32 s29, s3, 10'); k('s_add_u32 s28, s28, s29')
    k('s_add_u32 s28, s28, s14'); k(f's_add_u32 s28, s28, 0x{XMID:x}')
    w2src(k, 30); k(f's_add_u32 s31, s30, {112*1024}')
    k(f's_mul_i32 s32, s57, {112*1024}'); k('s_add_u32 s32, s32, s30')
    k('s_mul_i32 s33, s56, 24576'); k('s_lshl_b32 s34, s57, 10'); k('s_add_u32 s33, s33, s34'); k(f's_add_u32 s33, s33, {LE}')
    k('s_mul_i32 s35, s56, 12288'); k('s_add_u32 s35, s35, s34')
    poll(k, 24, 7, 60)
    stamp(k, 'f1.sync')
    Ls = k.new_label('fs')
    k('s_cmp_ge_u32 s3, 2'); k(f's_cbranch_scc1 {Ls}')
    k('s_lshl_b32 s37, s50, 1'); k('s_add_u32 s37, s37, s3'); k(f's_mul_i32 s37, s37, {STB}'); k('s_add_u32 s37, s37, s14')
    k(f's_add_u32 s37, s37, 0x{STM:x}')
    sv = list(k.vm)
    stats_load(k, 37, 32, 0)
    k.label(Ls)
    k.vm = sv
    XS = [60, 64, 68, 72, 76, 80, 84]
    for i in range(7):
        k(f's_add_u32 s36, s28, {8192*i}')
        k.vmem(f'buffer_load_dwordx4 {vr(XS[i])}, v5, s[4:7], s36 offen sc1', f'xt{i}')
    k('v_add_u32 v15, s29, v5')
    def xt_write(lo, hi):
        for i in range(lo, hi):
            k.vm_wait(f'xt{i}')
            k.ds(f'ds_write_b128 v15, {vr(XS[i])} offset:{8192*i}', 'xw')
    def stats_fin():
        L = k.new_label('fs')
        k('s_cmp_ge_u32 s3, 2'); k(f's_cbranch_scc1 {L}')
        stats_finish(k, 32, 8, 9, 10)
        k(f'v_mul_f32 v8, {fl(LOG2E)}, v8')
        k('s_lshl_b32 s37, s3, 8'); k(f's_add_u32 s37, s37, {LST}'); k('v_lshlrev_b32 v10, 3, v4'); k('v_add_u32 v10, s37, v10')
        k('ds_write_b64 v10, v[8:9]')
        k.label(L)
    def pfe(j):
        if j < 12:
            i = 6 + j
            k(f's_add_u32 m0, s33, {2048*j}'); k(f's_add_u32 s36, s32, {1024*i}')
            k.vmem('buffer_load_dwordx4 v5, s[4:7], s36 offen lds', 'pf')
        elif j < 24:
            i, n = (j - 12) >> 1, (j - 12) & 1
            k(f's_add_u32 s36, s{30+n}, {(i//4)*4096}')
            k.vmem(f'buffer_load_dwordx4 {vr(w2reg(i,n))}, v5, s[4:7], s36 offen offset:{(i%4)*1024}', 'pf')
    def pfl(j):
        if j < 6:
            i = 22 + j
            k(f's_add_u32 m0, s35, {2048*j}'); k(f's_add_u32 s36, s32, {1024*i}')
            k.vmem('buffer_load_dwordx4 v5, s[4:7], s36 offen lds', 'pf')
        else:
            i, n = 18 + ((j - 6) >> 1), (j - 6) & 1
            k(f's_add_u32 s36, s{30+n}, {(i//4)*4096}')
            k.vmem(f'buffer_load_dwordx4 {vr(w2reg(i,n))}, v5, s[4:7], s36 offen offset:{(i%4)*1024}', 'pf')
    def xread(tb, ks): k.ds(ldsr(XB + 4*((tb*28+ks) % 4), (tb*28+ks)*1024), f'x{tb}_{ks}')
    def mish(A, tbl):
        rs, mr = 8 + 2*tbl, 9 + 2*tbl
        L = []
        for i in range(4): L.append(('ds', f'ds_read_b128 {vr(T+4*i)}, v14 offset:{16*i}', 'cs'))
        for i in range(4): L.append(('ds', f'ds_read_b128 {vr(U+4*i)}, v14 offset:{128+16*i}', 'cs'))
        L.append(('lw', 'cs'))
        V = lambda s: L.append(('v', s))
        for r in range(16): V(f'v_fma_f32 v{T+r}, v{mr}, v{T+r}, v{U+r}')
        for r in range(16): V(f'v_fma_f32 v{A+r}, v{rs}, v{A+r}, v{T+r}')
        for r in range(16): V(f'v_exp_f32 v{T+r}, v{A+r}')
        for r in range(16): V(f'v_add_f32 v{T+r}, 1.0, v{T+r}')
        for r in range(16): V(f'v_fma_f32 v{T+r}, v{T+r}, v{T+r}, 1.0')
        for r in range(16): V(f'v_rcp_f32 v{T+r}, v{T+r}')
        for r in range(16): V(f'v_fma_f32 v{T+r}, v{T+r}, v12, v13')
        for r in range(16): V(f'v_mul_f32 v{A+r}, v{A+r}, v{T+r}')
        for i in range(8): V(f'v_cvt_pk_bf16_f32 v{U+i}, v{A+2*i}, v{A+2*i+1}')
        L.append(('st', [f'buffer_store_dwordx4 {vr(U)}, v5, s[4:7], s{38+tbl} offen',
                         f'buffer_store_dwordx4 {vr(U+4)}, v5, s[4:7], s{38+tbl} offen offset:1024']))
        return L
    def emit(it):
        if it[0] == 'ds': k.ds(it[1], it[2])
        elif it[0] == 'lw': k.lg_wait(it[1])
        elif it[0] == 'st': hstore(k, it[1], 'st', cold0=True)
        else: k(it[1])
    k('s_mul_i32 s38, s50, 224'); k('s_lshl_b32 s39, s25, 1'); k('s_add_u32 s38, s38, s39'); k('s_lshl_b32 s38, s38, 10')
    k('s_add_u32 s38, s38, s14'); k(f's_add_u32 s38, s38, 0x{ACT:x}'); k(f's_add_u32 s39, s38, {112*1024}')
    k(f'v_mov_b32 v12, {fl(-2*LN2)}'); k(f'v_mov_b32 v13, {fl(LN2)}')
    k('v_lshlrev_b32 v14, 6, v3'); k(f'v_add_u32 v14, {LC1}, v14'); k('v_add_u32 v14, s27, v14')
    Lq = k.new_label('fq')
    k('s_cmp_ge_u32 s3, 2'); k(f's_cbranch_scc1 {Lq}')
    k('s_waitcnt vmcnt(7)')
    k.label(Lq)
    stats_fin()
    xt_write(0, 7); k.lg_wait(); k('s_barrier')
    stamp(k, 'f1.x')
    LB, LJ = k.new_label('fb'), k.new_label('fj')
    def stats_read():
        k('v_lshlrev_b32 v15, 3, v4'); k(f'v_add_u32 v15, {LST}, v15')
        k.ds('ds_read_b64 v[8:9], v15', 's'); k.ds('ds_read_b64 v[10:11], v15 offset:256', 's')
    def edma(j, n):
        k(f's_add_u32 m0, s33, {2048*j + 1024*n}'); k(f's_add_u32 s36, s{30+n}, {1024*(6+j)}')
        k.vmem('buffer_load_dwordx4 v5, s[4:7], s36 offen lds', 'pf')
    def chain(tb, extra):
        A = A0 if tb == 0 else A1
        M = mish(A, tb)
        if F1PRIO: k('s_setprio 1')
        for ks in range(28):
            if ks + 3 < 28: xread(tb, ks + 3)
            k.lg_wait(f'x{tb}_{ks}')
            k(f'{MF} {vr(A,16)}, {vr(w1reg(ks))}, {vr(XB+4*((tb*28+ks)%4))}, {"0" if ks == 0 else vr(A,16)}')
            if ks == 10 and tb == 0: stats_read()
            if 16 <= ks < 24: emit(M[ks - 16])
            if ks in extra: extra[ks]()
        if F1PRIO: k('s_setprio 0')
        return M[8:]
    def body(isA):
        late = {9 + 2*j: (lambda j=j: pfl(6 + j)) for j in range(8)}
        for ks in range(3): xread(0, ks)
        if not isA: k('s_barrier')
        M = chain(0, {} if isA else {2 + 4*j: (lambda j=j: edma(6 + j//2, j % 2)) for j in range(6)})
        if isA: k('s_barrier')
        stamp(k, '*f1.c0')
        for ks in range(3): xread(1, ks)
        k.nop(4)
        for it in M: emit(it)
        stamp(k, '*f1.m0')
        ex = dict(late)
        if isA: ex.update({j: (lambda j=j: edma(9 + j//2, j % 2)) for j in range(6)})
        M = chain(1, ex)
        stamp(k, '*f1.c1')
        if isA:
            k.nop(8)
            for it in M: emit(it)
            stamp(k, '*f1.m1')
            k('s_barrier')
            for j in range(6):
                for n in range(2):
                    k(f's_add_u32 m0, s35, {2048*j + 1024*n}'); k(f's_add_u32 s36, s{30+n}, {1024*(22+j)}')
                    k.vmem('buffer_load_dwordx4 v5, s[4:7], s36 offen lds', 'pf')
        else:
            k('s_barrier')
            stamp(k, '*f1.m1')
            k.nop(8)
            for it in M: emit(it)
    k('s_sub_u32 s33, s33, s34')
    k('s_cmp_ge_u32 s3, 4'); k(f's_cbranch_scc1 {LB}')
    sv, svl = list(k.vm), list(k.lg)
    body(True)
    k(f's_branch {LJ}')
    k.label(LB)
    k.vm, k.lg = sv, svl
    for j in range(6):
        for n in range(2): edma(j, n)
    body(False)
    k.label(LJ)
    if F1PRIO: k('s_setprio 0')
    stamp(k, 'f1.mish')
    k('s_lshl_b32 s24, s50, 7'); k('s_lshl_b32 s25, s51, 2'); k('s_add_u32 s24, s24, s25'); k('s_add_u32 s24, s24, s16')
    k(f's_add_u32 s24, s24, {F1}')
    publish(k, 24, local=True)

def ffn2(k):
    ACC, WB, RES, RD = 16, 48, 80, 20
    ring = lambda p: (96 + 4*(p % RD)) if (p % RD) < 8 else (208 + 4*(p % RD - 8))
    k('s_lshl_b32 s24, s50, 7'); k('s_add_u32 s24, s24, s16'); k(f's_add_u32 s24, s24, {F1}')
    k('s_mul_i32 s25, s58, 112'); k('s_mul_i32 s26, s56, 28'); k('s_add_u32 s25, s25, s26'); k('s_lshl_b32 s25, s25, 10')
    k('s_add_u32 s25, s25, s14'); k(f's_add_u32 s25, s25, 0x{ACT:x}')
    k('s_mul_i32 s26, s56, 24576'); k(f's_add_u32 s26, s26, {LE}'); k('v_add_u32 v12, s26, v5')
    k('s_mul_i32 s26, s56, 12288'); k('v_add_u32 v13, s26, v5')
    res_load(k, RES, XMID)
    order = list(range(6, 18)) + list(range(22, 28)) + list(range(0, 6)) + list(range(18, 22))
    NL = 18
    ldsi = order[:NL]
    slot = {i: j % 4 for j, i in enumerate(ldsi)}
    def wread(i):
        for n in range(2):
            if i < 18: k.ds(f'ds_read_b128 {vr(WB+8*slot[i]+4*n)}, v12 offset:{(i-6)*2048+n*1024}', f'w{i}')
            else: k.ds(f'ds_read_b128 {vr(WB+8*slot[i]+4*n)}, v13 offset:{(i-22)*2048+n*1024}', f'w{i}')
    for i in ldsi[:4]: wread(i)
    poll(k, 24, 7, ring(0))
    stamp(k, 'f2.sync')
    PD = 14
    last = [None]
    def aload(p):
        i = order[p]
        if last[0] != i // 4: k(f's_add_u32 s27, s25, {(i//4)*4096}'); last[0] = i // 4
        k.vmem(f'buffer_load_dwordx4 {vr(ring(p))}, v5, s[4:7], s27 offen offset:{(i%4)*1024} sc1', f'a{i}')
    for p in range(PD): aload(p)
    nl = [4]
    def step(p):
        i = order[p]
        k.vm_wait(f'a{i}')
        if i in slot: k.lg_wait(f'w{i}')
        for n in range(2):
            a = WB + 8*slot[i] + 4*n if i in slot else w2reg(i, n)
            k(f'{MF} {vr(ACC+16*n,16)}, {vr(a)}, {vr(ring(p))}, {"0" if p == 0 else vr(ACC+16*n,16)}')
        if i in slot and nl[0] < len(ldsi): wread(ldsi[nl[0]]); nl[0] += 1
        if p + PD < 28: aload(p + PD)
    for p in range(NL): step(p)
    assert NL - 1 + PD >= 27
    k('s_barrier')
    Lw, Lj = k.new_label('np'), k.new_label('np')
    k('s_cmp_lg_u32 s15, 0'); k(f's_cbranch_scc1 {Lw}')
    sv, svl = list(k.vm), list(k.lg)
    wq_prefetch(k, track=True)
    for p in range(NL, 28): step(p)
    k(f's_branch {Lj}')
    k.label(Lw)
    k.vm, k.lg = sv, svl
    for p in range(NL, 28): step(p)
    k.label(Lj)
    stamp(k, 'f2.mf')
    reduce_fin(k, ACC, 48, RES, XIN + LS, STI + LS, True, nobar=True)
    k('s_lshr_b32 s24, s50, 1'); k('s_lshl_b32 s24, s24, 7'); k('s_and_b32 s25, s50, 1'); k('s_mul_i32 s25, s25, 7')
    k('s_add_u32 s25, s25, s51'); k('s_lshl_b32 s25, s25, 2'); k('s_add_u32 s24, s24, s25'); k('s_add_u32 s24, s24, s16')
    k(f's_add_u32 s24, s24, {F2}')
    stamp(k, 'f2.st')
    publish(k, 24, local=True)

def xcc_check(k):
    L = k.new_label('xk')
    k('s_cmp_lg_u32 s15, 0'); k(f's_cbranch_scc1 {L}')
    k('s_lshl_b32 s18, s12, 7'); k(f's_add_u32 s18, s18, {FL + XT}')
    k('v_lshlrev_b32 v8, 2, v4')
    k('buffer_load_dword v9, v8, s[4:7], s18 offen sc1')
    k('s_waitcnt vmcnt(0)')
    k('v_cmp_ne_u32 vcc, s46, v9')
    k('s_nop 1')
    k('s_or_b32 s18, vcc_lo, vcc_hi')
    k('s_cmp_eq_u32 s18, 0'); k('s_cselect_b32 s17, 1, 0')
    if os.environ.get('DELAYTEST'):
        L2 = k.new_label('dl'); L3 = k.new_label('dl')
        k('s_cmp_lg_u32 s17, 0'); k(f's_cbranch_scc1 {L3}')
        k('s_mov_b32 s18, 0')
        k.label(L2)
        k('s_sleep 8'); k('s_add_u32 s18, s18, 1'); k('s_cmp_lt_u32 s18, 80'); k(f's_cbranch_scc1 {L2}')
        k.label(L3)
    k.label(L)

TOUCH = int(os.environ.get('TOUCH', '0'))
def touch_q(k):
    L = k.new_label('tq'); L5 = k.new_label('tq'); L6 = k.new_label('tq')
    k('s_cmp_lt_u32 s3, 4'); k(f's_cbranch_scc1 {L}')
    k('v_lshlrev_b32 v12, 7, v1')
    k('s_and_b32 s18, s13, 1'); k('s_lshl_b32 s19, s12, 1'); k('s_add_u32 s18, s18, s19'); k('s_lshl_b32 s18, s18, 2')
    k('s_lshr_b32 s19, s13, 1'); k('s_lshl_b32 s19, s19, 6'); k('s_add_u32 s18, s18, s19')
    k('s_lshl_b32 s19, s18, 12'); k('s_and_b32 s20, s3, 1'); k('s_lshl_b32 s20, s20, 13'); k('s_add_u32 s19, s19, s20')
    k('s_and_b32 s20, s3, 2'); k(f's_mul_i32 s20, s20, 0x{KVLS//2:x}'); k('s_add_u32 s19, s19, s20'); k(f's_add_u32 s19, s19, 0x{KVF:x}')
    k('buffer_load_dword v13, v12, s[4:7], s19 offen')
    k('s_cmp_lg_u32 s3, 4'); k(f's_cbranch_scc1 {L}')
    k('s_lshl_b32 s19, s18, 11'); k(f's_add_u32 s19, s19, 0x{QF:x}')
    k('buffer_load_dword v13, v12, s[4:7], s19 offen')
    k.label(L)
def touch_rest(k):
    L = k.new_label('tr'); L4 = k.new_label('tr'); L5 = k.new_label('tr')
    k('s_cmp_lt_u32 s3, 4'); k(f's_cbranch_scc1 {L}')
    k('s_cmp_lg_u32 s15, 0'); k(f's_cbranch_scc1 {L}')
    k('v_lshlrev_b32 v12, 7, v1')
    k('s_cmp_lg_u32 s3, 4'); k(f's_cbranch_scc1 {L4}')
    k('s_and_b32 s18, s13, 1'); k('s_lshl_b32 s19, s12, 1'); k('s_add_u32 s18, s18, s19'); k('s_lshl_b32 s18, s18, 11')
    k('s_lshr_b32 s19, s13, 1'); k('s_lshl_b32 s19, s19, 17'); k('s_add_u32 s18, s18, s19'); k(f's_add_u32 s18, s18, 0x{OF:x}')
    k('v_lshrrev_b32 v11, 4, v1'); k('v_lshlrev_b32 v11, 15, v11'); k('v_and_b32 v10, 15, v1'); k('v_lshl_add_u32 v11, v10, 7, v11')
    k('buffer_load_dword v13, v11, s[4:7], s18 offen')
    k.label(L4)
    k('s_cmp_ge_u32 s13, 28'); k(f's_cbranch_scc1 {L}')
    k('s_sub_u32 s18, s3, 4'); k('s_lshr_b32 s19, s18, 1'); k('s_and_b32 s18, s18, 1')
    k('s_lshl_b32 s20, s50, 1'); k('s_add_u32 s20, s20, s19'); k('s_mul_i32 s21, s20, 112'); k('s_lshl_b32 s19, s51, 4'); k('s_add_u32 s21, s21, s19')
    k('s_lshl_b32 s19, s18, 3'); k('s_add_u32 s21, s21, s19'); k('s_lshl_b32 s21, s21, 10'); k(f's_add_u32 s21, s21, 0x{ACT:x}')
    k('buffer_load_dword v13, v12, s[4:7], s21 offen')
    k('s_cmp_lg_u32 s18, 0'); k(f's_cbranch_scc1 {L5}')
    k('s_mul_i32 s21, s20, 28'); k('s_lshl_b32 s19, s51, 2'); k('s_add_u32 s21, s21, s19'); k('s_lshl_b32 s21, s21, 10'); k(f's_add_u32 s21, s21, 0x{XMID:x}')
    k('s_mov_b32 exec_hi, 0')
    k('buffer_load_dword v13, v12, s[4:7], s21 offen')
    k('s_mul_i32 s21, s20, 14'); k('s_lshl_b32 s19, s51, 1'); k('s_add_u32 s21, s21, s19'); k('s_lshl_b32 s21, s21, 9'); k(f's_add_u32 s21, s21, 0x{STM:x}')
    k('s_mov_b32 exec_lo, 0xff')
    k('buffer_load_dword v13, v12, s[4:7], s21 offen')
    k('s_mov_b32 exec_lo, -1'); k('s_mov_b32 exec_hi, -1')
    k(f's_branch {L}')
    k.label(L5)
    k('v_mul_u32_u24 v11, 896, v1')
    k(f's_mul_i32 s21, s20, {32*896}'); k('s_lshl_b32 s19, s51, 7'); k('s_add_u32 s21, s21, s19')
    k('s_mov_b32 exec_hi, 0')
    k('buffer_load_dword v13, v11, s[8:11], s21 offen')
    k('s_mov_b32 exec_hi, -1')
    k.label(L)

def gen_main():
    if TOUCH == 2: HOOKS['after_wo'] = touch_rest
    k = K('main_kernel', 512, 256, 163840, 256)
    prologue(k, [(72, 4, WS_BYTES), (56, 8, 2048*448*2)])
    k('v_lshrrev_b32 v3, 5, v1'); k('v_and_b32 v4, 31, v1'); k('v_lshlrev_b32 v5, 4, v1')
    k('v_add_u32 v6, 0x10000, v5'); k('v_add_u32 v7, 0x20000, v5')
    k('s_and_b32 s12, s2, 7'); k('s_lshr_b32 s13, s2, 3')
    k('s_mov_b32 s14, 0'); k('s_mov_b32 s47, 0'); k('s_mov_b32 s15, 0'); k(f's_mov_b32 s16, {FL}')
    if DBG:
        DW = int(os.environ.get('DBGWG', '0'))
        k('s_load_dwordx2 s[84:85], s[0:1], 64'); k('s_mov_b32 s86, 256'); k('s_mov_b32 s87, 0x00020000')
        k('s_mov_b32 s88, 0'); k('s_mov_b32 s89, 1')
        L = k.new_label('d')
        k(f's_cmp_lg_u32 s2, {DW}'); k(f's_cbranch_scc1 {L}'); k(f"s_xor_b32 s89, s3, {int(os.environ.get('DBGWAVE', '0'))}"); k.label(L)
        k('s_waitcnt lgkmcnt(0)')
        k('v_mov_b32 v2, 0')
    stamp(k, 'start')
    tl_roles(k)
    k('s_mov_b32 s17, 0'); k('s_mov_b32 s48, 0')
    if FAST:
        L = k.new_label('xc')
        k('s_getreg_b32 s46, hwreg(HW_REG_XCC_ID, 0, 4)'); k('s_add_u32 s46, s46, 1')
        k('s_cmp_lg_u32 s3, 0'); k(f's_cbranch_scc1 {L}')
        k('s_lshl_b32 s18, s12, 7'); k('s_lshl_b32 s19, s13, 2'); k('s_add_u32 s18, s18, s19'); k(f's_add_u32 s18, s18, {FL + XT}')
        k('v_mov_b32 v9, s46')
        k('s_mov_b32 exec_lo, 1'); k('s_mov_b32 exec_hi, 0')
        k('buffer_store_dword v9, off, s[4:7], s18 sc1')
        k('s_mov_b32 exec_lo, -1'); k('s_mov_b32 exec_hi, -1')
        k.label(L)
    wq_prefetch(k)
    if TOUCH >= 1: touch_q(k)
    if TOUCH == 1: touch_rest(k)
    TOP = k.new_label('top'); IDLE = k.new_label('idle'); NEXT = k.new_label('next'); END = k.new_label('fin')
    k.label(TOP)
    def stopchk(ph):
        if STOP < 5 and ph == STOP: k(f's_branch {END}')
        elif STOP >= 5 and STOP < 10 and ph == STOP - 5:
            k('s_cmp_eq_u32 s15, 1'); k(f's_cbranch_scc1 {END}')
    qkv(k); stopchk(0)
    attn(k); stopchk(1)
    k('s_cmp_ge_u32 s13, 28'); k(f's_cbranch_scc1 {IDLE}')
    wo(k); stopchk(2)
    ffn1(k); stopchk(3)
    ffn2(k); stopchk(4)
    k(f's_branch {NEXT}')
    k.label(IDLE)
    if STOP < 5: k(f's_branch {END}')
    k('s_cmp_lg_u32 s15, 0'); k(f's_cbranch_scc1 {END}')
    wq_prefetch(k)
    k.label(NEXT)
    stamp(k, 'end')
    k('s_cmp_lg_u32 s15, 0'); k(f's_cbranch_scc1 {END}')
    k('s_mov_b32 s15, 1'); k(f's_mov_b32 s14, 0x{LS:x}'); k(f's_mov_b32 s47, 0x{KVLS:x}'); k(f's_mov_b32 s16, {FL + FLS}')
    if DBG: k('s_mov_b32 s88, 32')
    k(f's_branch {TOP}')
    k.label(END)
    if DBG:
        L = k.new_label('d')
        k('s_cmp_lg_u32 s89, 0'); k(f's_cbranch_scc1 {L}')
        k('v_lshlrev_b32 v8, 2, v1')
        k('buffer_store_dword v2, v8, s[84:87], 0 offen')
        k.label(L)
    k.label(k.name + '_end')
    k('s_endpgm')
    return k

def build(path):
    p = gen_prep(); m = gen_main()
    open(path + '.names', 'w').write(' '.join(STN))
    return emit_file([p, m], [NAME + '_kernel', 'main_kernel'], path)
if __name__ == '__main__':
    build(sys.argv[1] if len(sys.argv) > 1 else 'p1.s')
```

```python
import sys, os, struct
sys.path.insert(0, 'dev')
from asmlib import *
WQ = 0x900000; WO = 0xA80000; W1 = 0xB00000; W2 = 0xD00000; CSQ = 0xF00000; C1 = 0xF10000
FL = 0xF40000; FLS = 0x4000
FQ, FA, FW, F1, F2 = 0, 0x800, 0x1000, 0x2000, 0x3000
R0 = 0x1000000; LS = 0; KVLS = 0x400000
XIN = R0; STI = R0 + 0x1C0000; STM = R0 + 0x230000; KN = R0 + 0x2A0000; XMID = R0 + 0x2C0000
QF = R0 + 0x480000; OF = R0 + 0x680000; KVF = R0 + 0x880000; ACT = R0 + 0x1080000
STB = 14 * 512
WS_BYTES = 0x10000000
LOG2E = 1.4426950408889634
LN2 = 0.6931471805599453
def f2u(x): return struct.unpack('<I', struct.pack('<f', x))[0]
def fl(x): return f'0x{f2u(x):08x}'
def srd(k, s, nrec):
    k(f's_mov_b32 s{s+2}, 0x{nrec:x}'); k(f's_mov_b32 s{s+3}, 0x00020000')
def prologue(k, ptrs):
    k(f's_cmp_ge_u32 s2, {k.nwg}')
    k(f's_cbranch_scc1 {k.name}_end')
    for off, s, n in ptrs: k(f's_load_dwordx2 s[{s}:{s+1}], s[0:1], {off}')
    k('v_lshrrev_b32 v2, 6, v0'); k('v_and_b32 v1, 63, v0'); k('s_nop 0')
    k('v_readfirstlane_b32 s3, v2')
    k('s_waitcnt lgkmcnt(0)')
    for off, s, n in ptrs: srd(k, s, n)
def half_sum(k, va, vb):
    k(f'v_mov_b32 v{vb}, v{va}'); k.nop(2)
    k(f'v_permlane32_swap_b32 v{va}, v{vb}'); k.nop(1)
    k(f'v_add_f32 v{va}, v{va}, v{vb}')
def wave_max(k, v):
    for sh in (1, 2, 4, 8):
        k.nop(2); k(f'v_max_f32_dpp v{v}, v{v}, v{v} row_shr:{sh} row_mask:0xf bank_mask:0xf')
    k.nop(2); k(f'v_max_f32_dpp v{v}, v{v}, v{v} row_bcast:15 row_mask:0xa bank_mask:0xf')
    k.nop(2); k(f'v_max_f32_dpp v{v}, v{v}, v{v} row_bcast:31 row_mask:0xc bank_mask:0xf')

def gen_prep():
    import gen as G
    G.X[0] = XIN
    k = G.gen_prep()
    L = k.L
    out = []
    for i, ln in enumerate(L):
        s = ln.strip()
        if s == 's_mul_i32 s37, s2, 14*256': ln = f'    s_mul_i32 s37, s2, {STB}'
        elif s == 's_lshl_b32 s36, s3, 8' and L[i-1].strip() == 's_mul_i32 s37, s2, 14*256': ln = '    s_lshl_b32 s36, s3, 9'
        elif s == f's_add_u32 s37, s37, 0x{G.ST[0]:x}': ln = f'    s_add_u32 s37, s37, 0x{STI:x}'
        elif s == 'v_lshlrev_b32 v7, 3, v4': ln = '    v_lshlrev_b32 v7, 4, v4'
        elif s.startswith('s_add_u32 s38, s37, '):
            ii = int(s.split(',')[-1]) // 1024; ln = f'    s_add_u32 s38, s37, {ii*2048}'
        elif s == 'buffer_store_dwordx2 v[8:9], v7, s[4:7], s38 offen':
            out.append('    v_mov_b32 v10, 0'); out.append('    v_mov_b32 v11, 0')
            ln = '    buffer_store_dwordx4 v[8:11], v7, s[4:7], s38 offen'
        out.append(ln)
        if s == 'v_lshlrev_b32 v5, 4, v1':
            out += ['    s_cmp_ge_u32 s2, 32', '    s_cbranch_scc1 prep_nf', '    s_cmp_lg_u32 s3, 0', '    s_cbranch_scc1 prep_nf',
                    '    v_mov_b32 v8, 0', '    v_mov_b32 v9, 0', '    v_mov_b32 v10, 0', '    v_mov_b32 v11, 0',
                    '    s_lshl_b32 s32, s2, 10', f'    s_add_u32 s32, s32, 0x{FL:x}',
                    '    buffer_store_dwordx4 v[8:11], v5, s[4:7], s32 offen', '    s_nop 1', 'prep_nf:']
    PT = os.environ.get('PT', '')
    if PT:
        st, mb, T = PT.split(','); st = int(st, 16); mb = float(mb); T = int(T)
        per = int(mb * (1 << 20)) // T // 4096
        o2 = []
        for ln in out:
            s_ = ln.strip()
            if s_ == 's_cmp_ge_u32 s2, 252': ln = f'    s_cmp_ge_u32 s2, {252+T}'
            o2.append(ln)
            if s_ == 'v_lshlrev_b32 v5, 4, v1':
                o2 += ['    s_cmp_ge_u32 s2, 252', '    s_cbranch_scc1 prep_touch']
        idx = max(i for i, l in enumerate(o2) if l.strip().startswith(k.name + '_end'))
        tc = ['    s_endpgm', 'prep_touch:', '    v_lshlrev_b32 v6, 4, v0', '    s_sub_u32 s32, s2, 252', f'    s_mul_i32 s32, s32, {per*4096}',
              f'    s_add_u32 s32, s32, 0x{R0+st:x}', '    v_mov_b32 v8, 0', '    v_mov_b32 v9, 0', '    v_mov_b32 v10, 0', '    v_mov_b32 v11, 0']
        sc = os.environ.get('PTSC', ' sc1')
        for i in range(per):
            tc += [f'    buffer_store_dwordx4 v[8:11], v6, s[4:7], s32 offen{sc}', '    s_add_u32 s32, s32, 4096']
        tc += ['    s_endpgm']
        o2[idx:idx] = tc
        out = o2; k.nwg = 252 + T
    o3 = []
    for ln in out:
        if ln.strip() == 's_endpgm': o3.append('    s_waitcnt vmcnt(0)')
        o3.append(ln)
    out = o3
    k.L = out
    return k
```

```python
from g2a import *
DBG = os.environ.get('K2DEBUG', '0') == '1'
STOP = int(os.environ.get('STOP', '99'))
LWQ = 65536; LCS = LWQ + 86016; LSC = LCS + 512
LWO = 69632; LFLAG = 159744; LM = LFLAG + 64
LC1 = 57344; LST = LC1 + 2048; LE = 65536
POLLMAX = 1 << 15
STN = []
SKIP = set(os.environ.get('STSKIP', '').split(','))
def stamp(k, name):
    if not DBG or name in SKIP: return
    if name.startswith('*') and name in STN: i = STN.index(name)
    else: i = len(STN); STN.append(name)
    assert i < 32
    La, Lb = k.new_label('st'), k.new_label('st')
    k('s_memtime s[90:91]'); k('s_cmp_eq_u32 s88, 0'); k('s_waitcnt lgkmcnt(0)'); k.lg = []
    k(f's_cbranch_scc1 {La}')
    k(f'v_writelane_b32 v2, s90, {32+i}'); k(f's_branch {Lb}')
    k.label(La); k(f'v_writelane_b32 v2, s90, {i}'); k.label(Lb)
PPOLL = int(os.environ.get('PPOLL', '4'))
PSL = int(os.environ.get('PSL', '2'))
def poll(k, s_addr, n, rb=None):
    L, Ld, Lt = k.new_label('pl'), k.new_label('pl'), k.new_label('pl')
    k('s_cmp_lg_u32 s3, 0'); k(f's_cbranch_scc1 {Ld}')
    k(f's_mov_b32 exec_lo, 0x{(1 << n) - 1:x}'); k('s_mov_b32 exec_hi, 0')
    k('v_lshlrev_b32 v8, 2, v1'); k('s_mov_b32 s18, 0')
    if rb is None or PPOLL <= 1:
        k.label(L)
        k(f'buffer_load_dword v9, v8, s[4:7], s{s_addr} offen sc1')
        k('s_waitcnt vmcnt(0)')
        k('v_cmp_eq_u32 vcc, 0, v9')
        k('s_add_u32 s18, s18, 1')
        k('s_nop 0')
        k('s_cmp_eq_u32 vcc_lo, 0'); k(f's_cbranch_scc1 {Lt}')
        k(f's_cmp_ge_u32 s18, {POLLMAX}'); k(f's_cbranch_scc1 {Lt}')
        k('s_sleep 1'); k(f's_branch {L}')
    else:
        P = PPOLL
        for j in range(P):
            k(f'buffer_load_dword v{rb+j}, v8, s[4:7], s{s_addr} offen sc1')
            if j + 1 < P: k(f's_sleep {PSL}')
        k.label(L)
        for j in range(P):
            k(f's_waitcnt vmcnt({P-1})')
            k(f'v_cmp_eq_u32 vcc, 0, v{rb+j}')
            k('s_add_u32 s18, s18, 1')
            k('s_nop 0')
            k('s_cmp_eq_u32 vcc_lo, 0'); k(f's_cbranch_scc1 {Lt}')
            k(f'buffer_load_dword v{rb+j}, v8, s[4:7], s{s_addr} offen sc1')
        k(f's_cmp_lt_u32 s18, {POLLMAX}'); k(f's_cbranch_scc1 {L}')
    k.label(Lt)
    k('s_mov_b32 exec_lo, -1'); k('s_mov_b32 exec_hi, -1')
    k.label(Ld)
    k('s_barrier')
FAST = os.environ.get('FAST', '1') == '1'
XT = 0x3800
def hstore(k, txts, tag=None, cold0=False):
    if not FAST:
        for t in txts: k.vmem(t + ' sc1', tag)
        return
    Ls, Lj = k.new_label('hs'), k.new_label('hs')
    k(f's_cmp_eq_u32 s{48 if (cold0 and HYB) else 17}, 0'); k(f's_cbranch_scc1 {Ls}')
    for t in txts: k(t)
    k(f's_branch {Lj}')
    k.label(Ls)
    for t in txts: k.vmem(t + ' sc1', tag)
    k.label(Lj)
HYB = os.environ.get('HYB', '1') == '1'
def publish(k, s_addr, local=False, skip_hi=False):
    if skip_hi:
        Lh = k.new_label('ph'); k('s_cmp_ge_u32 s3, 4'); k(f's_cbranch_scc1 {Lh}')
    k('s_waitcnt vmcnt(0)'); k.vm = []
    if skip_hi: k.label(Lh)
    stamp(k, 'drain')
    k('s_barrier')
    Ld = k.new_label('pb')
    k('s_cmp_lg_u32 s3, 0'); k(f's_cbranch_scc1 {Ld}')
    k('s_mov_b32 exec_lo, 1'); k('s_mov_b32 exec_hi, 0')
    k('v_mov_b32 v9, 1')
    if local: hstore(k, [f'buffer_store_dword v9, off, s[4:7], s{s_addr}'])
    else: k(f'buffer_store_dword v9, off, s[4:7], s{s_addr} sc1')
    k.vm = []
    k('s_mov_b32 exec_lo, -1'); k('s_mov_b32 exec_hi, -1')
    k.label(Ld)
    stamp(k, 'flag')
def stats_load(k, s_off, vb, vaddr):
    k(f'v_mul_u32_u24 v{vaddr}, {7*512}, v3'); k(f'v_lshl_add_u32 v{vaddr}, v4, 4, v{vaddr}')
    for i in range(7):
        k.vmem(f'buffer_load_dwordx4 {vr(vb+4*i)}, v{vaddr}, s[4:7], s{s_off} offen offset:{i*512} sc1', 'st')
def stats_finish(k, vb, rs, mr, tmp):
    for i in range(1, 7):
        for j in range(4): k(f'v_add_f32 v{vb+j}, v{vb+j}, v{vb+4*i+j}')
    k(f'v_add_f32 v{vb}, v{vb}, v{vb+2}'); k(f'v_add_f32 v{vb+1}, v{vb+1}, v{vb+3}')
    half_sum(k, vb, tmp); half_sum(k, vb+1, tmp)
    k(f'v_mul_f32 v{vb}, {fl(1/448)}, v{vb}'); k(f'v_mul_f32 v{vb+1}, {fl(1/448)}, v{vb+1}')
    k(f'v_fma_f32 v{vb+1}, -v{vb}, v{vb}, v{vb+1}')
    k(f'v_max_f32 v{vb+1}, 0, v{vb+1}'); k(f'v_add_f32 v{vb+1}, {fl(1e-5)}, v{vb+1}')
    k(f'v_rsq_f32 v{rs}, v{vb+1}'); k.nop(1)
    k(f'v_mul_f32 v{mr}, v{vb}, v{rs}'); k(f'v_sub_f32 v{mr}, 0, v{mr}')
def ldsr(dst, off):
    b = off >> 16
    return f'ds_read_b128 {vr(dst)}, v{5+b} offset:{off & 0xffff}'
MF = 'v_mfma_f32_32x32x16_bf16'

def wq_prefetch(k, track=False):
    k('s_lshr_b32 s18, s13, 1')
    k(f's_mul_i32 s19, s18, 86016'); k(f's_add_u32 s19, s19, 0x{WQ:x}')
    k('s_lshl_b32 s20, s3, 10'); k('s_add_u32 s19, s19, s20'); k(f's_add_u32 s20, s20, {LWQ}')
    for i in range(11):
        L = None
        if i == 10:
            L = k.new_label('wq'); k('s_cmp_ge_u32 s3, 4'); k(f's_cbranch_scc1 {L}')
        k(f's_add_u32 m0, s20, {8192*i}'); k(f's_add_u32 s21, s19, {8192*i}')
        k('buffer_load_dwordx4 v5, s[4:7], s21 offen lds')
        if track and i < 10: k.vm.append('wq')
    L2 = k.new_label('wq'); k(f's_branch {L2}')
    k.label(L)
    k('s_cmp_lg_u32 s3, 4'); k(f's_cbranch_scc1 {L2}')
    k('s_lshl_b32 s21, s18, 9'); k(f's_add_u32 s21, s21, 0x{CSQ:x}')
    k(f's_mov_b32 m0, {LCS}'); k('s_mov_b32 exec_hi, 0')
    k('buffer_load_dwordx4 v5, s[4:7], s21 offen lds')
    k('s_mov_b32 exec_hi, -1')
    k.label(L2)

def w1reg(ks): return 176 + 4*ks if ks < 20 else 96 + 4*(ks - 20)
def w1pf(k, ks):
    k(f's_add_u32 s55, s54, {(ks//4)*4096}')
    k.vmem(f'buffer_load_dwordx4 {vr(w1reg(ks))}, v5, s[4:7], s55 offen offset:{(ks%4)*1024}', 'pf')
def tl_roles(k):
    k('s_and_b32 s50, s13, 3'); k('s_lshl_b32 s51, s12, 2'); k('s_add_u32 s50, s50, s51'); k('s_lshr_b32 s51, s13, 2')
    k('s_lshl_b32 s54, s51, 3'); k('s_add_u32 s54, s54, s3'); k(f's_mul_i32 s54, s54, {28*1024}'); k(f's_add_u32 s54, s54, 0x{W1:x}')

HOOKS = {}
def qkv(k):
    XF, WB, AQ, AK, AV, SB = 16, 72, 96, 112, 128, 144
    Lhi = k.new_label('qh')
    Lend = k.new_label('qe')
    k('s_and_b32 s22, s13, 1'); k('s_lshl_b32 s23, s12, 1'); k('s_add_u32 s22, s22, s23'); k('s_lshr_b32 s23, s13, 1')
    Ln = k.new_label('q0'); Lw = k.new_label('q2'); Lw2 = k.new_label('q3'); Lg = k.new_label('q1')
    k('s_lshl_b32 s25, s22, 2'); k('s_add_u32 s25, s25, s3')
    k(f's_mul_i32 s26, s25, {28*1024}'); k('s_add_u32 s26, s26, s14'); k(f's_add_u32 s26, s26, 0x{XIN:x}')
    k(f's_mul_i32 s27, s25, {STB}'); k('s_add_u32 s27, s27, s14'); k(f's_add_u32 s27, s27, 0x{STI:x}')
    Ln0 = k.new_label('q4')
    k('s_cmp_eq_u32 s15, 0'); k(f's_cbranch_scc1 {Ln0}')
    k('s_lshl_b32 s24, s22, 7'); k(f's_add_u32 s24, s24, {FL + F2}')
    k('s_waitcnt vmcnt(0)')
    poll(k, 24, 14, 16)
    k(f's_branch {Ln}')
    k.label(Ln0); k('s_barrier')
    k.label(Ln)
    DEPTH = 14
    def xload(ks):
        if ks % 4 == 0: k(f's_add_u32 s21, s26, {ks*1024}')
        k.vmem(f'buffer_load_dwordx4 {vr(XF+4*(ks%DEPTH))}, v5, s[4:7], s21 offen offset:{(ks%4)*1024} sc1', f'x{ks}')
    def wread(ks):
        b = WB + 12 * (ks % 2)
        for i in range(3): k.ds(ldsr(b+4*i, LWQ + (ks*3+i)*1024), f'w{ks}')
    k.vm = []
    k('s_cmp_ge_u32 s3, 4'); k(f's_cbranch_scc1 {Lw}')
    for ks in range(DEPTH): xload(ks)
    stats_load(k, 27, SB, 0)
    k('s_cmp_lg_u32 s15, 0'); k(f's_cbranch_scc1 {Lg}')
    k(f's_waitcnt vmcnt({DEPTH+7})'); k(f's_branch {Lw2}')
    k.label(Lw)
    k('s_cmp_lg_u32 s15, 0'); k(f's_cbranch_scc1 {Lhi}')
    k('s_waitcnt vmcnt(0)')
    k.label(Lw2)
    k('s_barrier')
    k('s_cmp_ge_u32 s3, 4'); k(f's_cbranch_scc1 {Lhi}')
    k.label(Lg)
    stamp(k, 'q.sync')
    wread(0)
    RS, MR = 8, 9
    CQ, CK, CV, VR = 176, 192, 208, 212
    SC = (28 ** -0.5) * LOG2E
    side = {ks: [] for ks in range(28)}
    def E(t): return lambda: k(t)
    side[1] = [E('v_lshlrev_b32 v11, 6, v3'), E(f'v_add_u32 v11, {LCS}, v11')] + \
              [(lambda i=i: k.ds(f'ds_read_b128 {vr(CQ+4*i)}, v11 offset:{16*i}', 'c')) for i in range(4)]
    side[2] = [(lambda i=i: k.ds(f'ds_read_b128 {vr(CK+4*i)}, v11 offset:{128+16*i}', 'c')) for i in range(4)]
    side[3] = [E('v_lshlrev_b32 v10, 2, v4'), E(f'v_add_u32 v10, {LCS+256}, v10'), lambda: k.ds(f'ds_read_b32 v{CV}, v10', 'c'),
               E('v_cmp_eq_u32 vcc, 28, v4'), E('v_mov_b32 v49x, 0'.replace('v49x', f'v{CV+1}')), E(f'v_mov_b32 v{CV+2}, 1.0'), E('s_nop 1'),
               E(f'v_cndmask_b32 v{CV+1}, v{CV+1}, v{CV+2}, vcc')]
    L0 = len(k.L); stats_finish(k, SB, RS, MR, 10); sf = k.L[L0:]; del k.L[L0:]
    n = len(sf); cuts = [0, 14, 26, n - 8, n]
    for j in range(4): side[15 + j] = [(lambda t=t: k.L.append(t)) for t in sf[cuts[j]:cuts[j+1]]]
    side[15].insert(0, lambda: k.vm_wait('st'))
    side[19] = [E('s_lshl_b32 s28, s3, 8'), E(f's_add_u32 s28, s28, {LSC}'), E('v_lshlrev_b32 v10, 3, v4'), E('v_add_u32 v10, s28, v10'),
                lambda: k.ds(f'ds_write_b64 v10, v[{RS}:{MR}]', 'sw'),
                E(f'v_mul_f32 v14, {fl(SC)}, v{RS}'), E(f'v_mul_f32 v15, {fl(SC)}, v{MR}'),
                E('v_lshlrev_b32 v11, 5, v3'), E('v_add_u32 v11, s28, v11')]
    side[20] = [lambda: k.lg_wait('sw')]
    for g in range(4):
        side[20] += [(lambda g=g: k.ds(f'ds_read_b128 {vr(VR+8*g)}, v11 offset:{64*g}', 'vr')),
                     (lambda g=g: k.ds(f'ds_read_b128 {vr(VR+8*g+4)}, v11 offset:{64*g+16}', 'vr'))]
    side[21] = [E(f'v_mul_f32 v{CQ+r}, v15, v{CQ+r}') for r in range(16)]
    side[22] = [E(f'v_mul_f32 v{CK+r}, v{MR}, v{CK+r}') for r in range(16)]
    for r in range(16):
        g, i = r >> 2, r & 3
        side[24 + r // 8].append(E(f'v_fma_f32 v{VR+8*g+2*i+1}, v{VR+8*g+2*i+1}, v{CV}, v{CV+1}'))
    side[26] = [E('s_lshl_b32 s29, s23, 6'), E('s_add_u32 s29, s29, s25'),
                E('s_lshl_b32 s30, s29, 11'), E('s_add_u32 s30, s30, s14'), E(f's_add_u32 s30, s30, 0x{QF:x}'),
                E('s_lshl_b32 s31, s29, 12'), E('s_add_u32 s31, s31, s47'), E(f's_add_u32 s31, s31, 0x{KVF:x}'),
                E('s_lshl_b32 s32, s29, 2'), E('s_lshr_b32 s33, s47, 10'), E('s_add_u32 s32, s32, s33'), E(f's_add_u32 s32, s32, 0x{KN:x}'),
                E('v_mov_b32 v12, 0'), E('v_mov_b32 v13, 0'), E('v_mov_b32 v10, 0'), E('v_mov_b32 v11, 0')]
    nxt = DEPTH
    for ks in range(28):
        if ks + 1 < 28: wread(ks + 1)
        k.vm_wait(f'x{ks}'); k.lg_wait(f'w{ks}')
        b = WB + 12 * (ks % 2); x = vr(XF + 4*(ks%DEPTH))
        c = lambda A: '0' if ks == 0 else vr(A, 16)
        sd = side[ks]; t3 = (len(sd) + 2) // 3
        k(f'{MF} {vr(AQ,16)}, {vr(b)}, {x}, {c(AQ)}')
        for f in sd[:t3]: f()
        k(f'{MF} {vr(AK,16)}, {vr(b+4)}, {x}, {c(AK)}')
        for f in sd[t3:2*t3]: f()
        k(f'{MF} {vr(AV,16)}, {x}, {vr(b+8)}, {c(AV)}')
        if nxt < 28:
            if nxt % 4 and ks == 0: k(f's_add_u32 s21, s26, {(nxt//4)*4096}')
            xload(nxt); nxt += 1
        for f in sd[2*t3:]: f()
    stamp(k, 'q.mfma')
    k.nop(14)
    k.lg = []; k.vm = []
    for r in range(16): k(f'v_fma_f32 v{AK+r}, v{RS}, v{AK+r}, v{CK+r}')
    for r in range(16):
        g, i = r >> 2, r & 3
        k(f'v_fma_f32 v{AV+r}, v{VR+8*g+2*i}, v{AV+r}, v{VR+8*g+2*i+1}')
    for i in range(8): k(f'v_cvt_pk_bf16_f32 v{32+i}, v{AV+2*i}, v{AV+2*i+1}')
    for r in range(0, 16, 2):
        k(f'v_fmac_f32 v13, v{AK+r}, v{AK+r}'); k(f'v_fmac_f32 v11, v{AK+r+1}, v{AK+r+1}')
        if r == 2:
            for i in range(2, 4): k(f'buffer_store_dwordx4 {vr(24+4*i)}, v5, s[4:7], s31 offen offset:{1024*i} sc1')
    k('s_mov_b32 exec_lo, 0')
    k(f'v_mov_b32 v{AK+12}, 1.0'); k(f'v_mov_b32 v{AK+13}, 1.0')
    k('s_mov_b32 exec_lo, -1')
    for i in range(8): k(f'v_cvt_pk_bf16_f32 v{24+i}, v{AK+2*i}, v{AK+2*i+1}')
    for r in range(16):
        k(f'v_fma_f32 v{AQ+r}, v14, v{AQ+r}, v{CQ+r}')
        if r == 2:
            for i in range(2): k(f'buffer_store_dwordx4 {vr(24+4*i)}, v5, s[4:7], s31 offen offset:{1024*i} sc1')
    for r in range(0, 16, 2):
        k(f'v_fmac_f32 v12, v{AQ+r}, v{AQ+r}'); k(f'v_fmac_f32 v10, v{AQ+r+1}, v{AQ+r+1}')
    k('v_add_f32 v12, v12, v10'); k('v_add_f32 v13, v13, v11')
    k('v_mov_b32 v10, v12'); k('v_mov_b32 v11, v13')
    for i in range(4): k(f'v_cvt_pk_bf16_f32 v{16+i}, v{AQ+2*i}, v{AQ+2*i+1}')
    k('v_permlane32_swap_b32 v12, v10'); k('v_permlane32_swap_b32 v13, v11')
    k('buffer_store_dwordx4 v[16:19], v5, s[4:7], s30 offen sc1')
    k.nop(1)
    k('v_add_f32 v12, v12, v10'); k('v_add_f32 v13, v13, v11')
    k('v_sqrt_f32 v12, v12')
    for i in range(4, 7): k(f'v_cvt_pk_bf16_f32 v{16+i}, v{AQ+2*i}, v{AQ+2*i+1}')
    k('s_mov_b32 exec_lo, 0')
    k(f'v_mov_b32 v{AQ+14}, v12')
    k('s_mov_b32 exec_lo, -1')
    k(f'v_cvt_pk_bf16_f32 v23, v{AQ+14}, v{AQ+15}')
    k.nop(1)
    k(f'buffer_store_dwordx4 v[20:23], v5, s[4:7], s30 offen offset:1024 sc1')
    wave_max(k, 13)
    k('s_mov_b32 exec_lo, 0'); k('s_mov_b32 exec_hi, 0x80000000')
    k('buffer_store_dword v13, off, s[4:7], s32 sc1')
    k('s_mov_b32 exec_lo, -1'); k('s_mov_b32 exec_hi, -1')
    k(f's_branch {Lend}')
    k.label(Lhi)
    k.label(Lend)
    k.lg = []
    k('s_lshl_b32 s24, s23, 7'); k('s_lshl_b32 s25, s22, 2'); k('s_add_u32 s24, s24, s25'); k('s_add_u32 s24, s24, s16')
    stamp(k, 'q.epi')
    publish(k, 24, skip_hi=True)
    Lwo = k.new_label('qw')
    k('s_cmp_lt_u32 s3, 4'); k(f's_cbranch_scc1 {Lwo}')
    k('s_lshl_b32 s52, s51, 16'); k('s_sub_u32 s53, s3, 4'); k('s_lshl_b32 s53, s53, 10'); k('s_add_u32 s52, s52, s53')
    k(f's_add_u32 s52, s52, 0x{WO:x}'); k(f's_add_u32 s53, s53, {LWO}')
    for n in range(16):
        k(f's_add_u32 m0, s53, {4096*n}'); k(f's_add_u32 s55, s52, {4096*n}')
        k('buffer_load_dwordx4 v5, s[4:7], s55 offen lds')
    k.label(Lwo)
    k.vm = []


def attn(k):
    Q, KV, S, P, O, C = 16, 32, 96, 128, 144, 14
    D = 4
    k('s_and_b32 s20, s13, 1'); k('s_lshl_b32 s22, s12, 1'); k('s_add_u32 s22, s22, s20')
    k('s_lshr_b32 s21, s13, 1')
    k('s_lshl_b32 s24, s22, 7'); k('s_add_u32 s24, s24, s16')
    poll(k, 24, 16, 32)
    stamp(k, 'a.sync')
    k('s_and_b32 s23, s3, 1'); k('s_lshr_b32 s24, s3, 1')
    k('s_lshl_b32 s25, s21, 2'); k('s_lshl_b32 s26, s23, 1'); k('s_add_u32 s25, s25, s26')
    k('s_lshl_b32 s27, s22, 6')
    k('s_add_u32 s28, s27, s25'); k('s_lshl_b32 s28, s28, 11'); k('s_add_u32 s28, s28, s14'); k(f's_add_u32 s28, s28, 0x{QF:x}')
    k('s_lshl_b32 s29, s24, 4'); k('s_add_u32 s29, s29, s27'); k('s_lshl_b32 s29, s29, 12')
    k('s_add_u32 s29, s29, s47'); k(f's_add_u32 s29, s29, 0x{KVF:x}')
    k('s_lshl_b32 s30, s27, 2'); k('s_lshr_b32 s33, s47, 10'); k('s_add_u32 s30, s30, s33'); k(f's_add_u32 s30, s30, 0x{KN:x}')
    k('v_lshlrev_b32 v0, 2, v1')
    if FAST:
        k('s_lshl_b32 s18, s12, 7'); k(f's_add_u32 s18, s18, {FL + XT}'); k('v_lshlrev_b32 v8, 2, v4')
        k.vmem('buffer_load_dword v12, v8, s[4:7], s18 offen sc1', 'kn')
    k.vmem('buffer_load_dword v11, v0, s[4:7], s30 offen sc1', 'kn')
    for i in range(4): k.vmem(f'buffer_load_dwordx4 {vr(Q+4*i)}, v5, s[4:7], s28 offen offset:{1024*i} sc1', 'q')
    k('v_mov_b32 v8, 0'); k(f'v_mov_b32 v9, {LFLAG}'); k('ds_write_b32 v9, v8')
    k('s_mov_b32 s40, 0')
    def kvload(kb):
        b = KV + 16 * (kb % D)
        k(f's_add_u32 s31, s29, {kb*4096}')
        for i in range(4):
            k.vmem(f'buffer_load_dwordx4 {vr(b+4*i)}, v5, s[4:7], s31 offen offset:{1024*i}', f'k{kb}' if i < 2 else f'v{kb}')
    for kb in range(D): kvload(kb)
    k.vm_wait('kn')
    if FAST:
        k('v_cmp_ne_u32 vcc, s46, v12'); k('s_nop 1')
        k('s_or_b32 s18, vcc_lo, vcc_hi'); k('s_cmp_eq_u32 s18, 0'); k('s_cselect_b32 s17, 1, 0')
        k('s_and_b32 s48, s17, s15')
        if os.environ.get('DELAYTEST'):
            L2 = k.new_label('dl'); L3 = k.new_label('dl')
            k('s_cmp_lg_u32 s17, 0'); k(f's_cbranch_scc1 {L3}')
            k('s_mov_b32 s18, 0')
            k.label(L2)
            k('s_sleep 8'); k('s_add_u32 s18, s18, 1'); k('s_cmp_lt_u32 s18, 40'); k(f's_cbranch_scc1 {L2}')
            k.label(L3)
    wave_max(k, 11); k.nop(1)
    k('v_readlane_b32 s32, v11, 63'); k.nop(2)
    k('v_sqrt_f32 v11, s32'); k.nop(1)
    k(f'v_mul_f32 v11, {fl(1.0+1/64)}, v11')
    k.vm_wait('q')
    def set_shift(q, cv):
        d = Q + 8*q + 4 + 2
        k(f'v_cvt_pk_bf16_f32 v8, v{cv}, v{cv}'); k('v_and_b32 v8, 0xffff0000, v8')
        k(f'v_sub_f32 v9, v{cv}, v8'); k(f'v_cvt_pk_bf16_f32 v10, v9, v9'); k('v_and_b32 v10, 0xffff0000, v10')
        k(f'v_add_f32 v{cv}, v8, v10'); k('v_cvt_pk_bf16_f32 v9, -v8, -v10')
        k('s_mov_b32 exec_lo, 0'); k(f'v_mov_b32 v{d}, v9'); k('s_mov_b32 exec_lo, -1')
    for q in range(2):
        k(f'v_lshlrev_b32 v{C+q}, 16, v{Q+8*q+4+3}'); k(f'v_mul_f32 v{C+q}, v{C+q}, v11')
        set_shift(q, C+q)
    MAIN = k.new_label('main'); FIN = k.new_label('fin')
    k.label(MAIN)
    NT = 32
    def smf(n, which):
        kb, q = n >> 1, n & 1
        b = KV + 16*(kb % D); s = S + 16*(n % 2)
        if which == 0: return f'{MF} {vr(s,16)}, {vr(b)}, {vr(Q+8*q)}, 0'
        return f'{MF} {vr(s,16)}, {vr(b+4)}, {vr(Q+8*q+4)}, {vr(s,16)}'
    def pmf(n, which):
        kb, q = n >> 1, n & 1
        b = KV + 16*(kb % D) + 8; p = P + 8*(n % 2); o = O + 16*q
        c = '0' if (n < 2 and which == 0) else vr(o, 16)
        return f'{MF} {vr(o,16)}, {vr(b+4*which)}, {vr(p+4*which)}, {c}'
    k.vm_wait('k0')
    stamp(k, 'a.k0')
    k.nop(2); k(smf(0, 0)); k(smf(0, 1)); k.nop(16)
    PRIO = os.environ.get('APRIO', '1') == '1'
    for n in range(NT + 1):
        if PRIO and n % 8 == 0 and n < NT: k(f's_setprio {3 - n//8}')
        valu = []
        if n < NT:
            s = S + 16*(n % 2); p = P + 8*(n % 2)
            valu = [f'v_exp_f32 v{s+r}, v{s+r}' for r in range(16)]
            valu += [f'v_cvt_pk_bf16_f32 v{p+i}, v{s+2*i}, v{s+2*i+1}' for i in range(8)]
        mf = []
        if n + 1 < NT:
            if (n + 1) % 2 == 0: k.vm_wait(f'k{(n+1)>>1}')
            mf += [smf(n+1, 0), smf(n+1, 1)]
        if n >= 1:
            k.vm_wait(f'v{(n-1)>>1}')
            mf += [pmf(n-1, 0), pmf(n-1, 1)]
        if n == NT: k.nop(2)
        pos = [0, 6, 12, 18] if len(mf) == 4 else ([0, 6] if n == 0 else [12, 18])
        mi = 0
        if not valu:
            for m in mf: k(m)
        else:
            for i, v in enumerate(valu):
                while mi < len(mf) and pos[mi] == i:
                    k(mf[mi]); mi += 1
                k(v)
        if n >= 1 and (n - 1) % 2 == 1:
            kbn = ((n - 1) >> 1) + D
            if kbn < 16: kvload(kbn)
        if 2 <= n < 22: w1pf(k, n - 2)
    for ks in range(20, 28): w1pf(k, ks)
    k.nop(8)
    stamp(k, 'a.main')
    k('s_lshl_b32 s33, s3, 13'); k('v_add_u32 v8, s33, v5')
    for q in range(2):
        for i in range(4): k(f'ds_write_b128 v8, {vr(O+16*q+4*i)} offset:{q*4096+i*1024}')
    k('s_waitcnt lgkmcnt(0)'); k('s_barrier')
    k('s_lshr_b32 s34, s24, 1'); k('s_and_b32 s35, s24, 1')
    k('s_lshl_b32 s36, s23, 13'); k('s_lshl_b32 s37, s34, 12'); k('s_add_u32 s36, s36, s37')
    k('s_lshl_b32 s37, s35, 11'); k('s_add_u32 s37, s37, s36')
    k('v_add_u32 v8, s37, v5')
    k('v_lshlrev_b32 v9, 4, v4'); k(f'v_add_u32 v9, {3*1024 + 32*16}, v9'); k('v_add_u32 v9, s36, v9')
    for j in range(4):
        k(f'ds_read_b128 {vr(32+8*j)}, v8 offset:{j*16384}')
        k(f'ds_read_b128 {vr(36+8*j)}, v8 offset:{j*16384+1024}')
        k(f'ds_read_b32 v{64+j}, v9 offset:{j*16384}')
    k('s_waitcnt lgkmcnt(0)')
    for j in range(1, 4):
        for r in range(8): k(f'v_add_f32 v{32+r}, v{32+r}, v{32+8*j+r}')
        k(f'v_add_f32 v64, v64, v{64+j}')
    k('v_rcp_f32 v65, v64')
    k(f'v_mov_b32 v66, {fl(2.0**-80)}'); k('v_cmp_nge_f32 vcc, v64, v66')
    k(f'v_mov_b32 v66, {fl(2.0**100)}'); k('v_cmp_nle_f32 s[38:39], v64, v66')
    for r in range(8): k(f'v_mul_f32 v{32+r}, v{32+r}, v65')
    for i in range(4): k(f'v_cvt_pk_bf16_f32 v{40+i}, v{32+2*i}, v{32+2*i+1}')
    k('s_add_u32 s41, s25, s34'); k('s_lshl_b32 s41, s41, 5'); k('s_lshl_b32 s42, s22, 1')
    k('s_add_u32 s41, s41, s42'); k('s_add_u32 s41, s41, s35'); k('s_lshl_b32 s41, s41, 10')
    k('s_add_u32 s41, s41, s14'); k(f's_add_u32 s41, s41, 0x{OF:x}')
    k('buffer_store_dwordx4 v[40:43], v5, s[4:7], s41 offen sc1')
    k('s_or_b64 vcc, vcc, s[38:39]')
    Lok = k.new_label('ok')
    k(f's_cbranch_vccz {Lok}')
    k('v_mov_b32 v8, 1'); k(f'v_mov_b32 v9, {LFLAG}'); k('ds_write_b32 v9, v8')
    k.label(Lok)
    stamp(k, 'a.st')
    k('s_waitcnt vmcnt(0) lgkmcnt(0)'); k.vm = []
    stamp(k, 'a.drain')
    k('s_barrier')
    k(f'v_mov_b32 v9, {LFLAG}'); k('ds_read_b32 v8, v9'); k('s_waitcnt lgkmcnt(0)'); k('s_nop 0')
    k('v_readfirstlane_b32 s43, v8')
    k('s_cmp_eq_u32 s43, 0'); k(f's_cbranch_scc1 {FIN}')
    k('s_cmp_lg_u32 s40, 0'); k(f's_cbranch_scc1 {FIN}')
    k('s_mov_b32 s40, 1')
    k(f'v_mov_b32 v66, 0xff800000'); k(f'v_mov_b32 v67, 0xff800000')
    k('s_mov_b32 s44, 0')
    LP = k.new_label('mx'); k.label(LP)
    k('s_lshl_b32 s45, s44, 12'); k('s_add_u32 s45, s45, s29')
    k(f'buffer_load_dwordx4 {vr(KV)}, v5, s[4:7], s45 offen')
    k(f'buffer_load_dwordx4 {vr(KV+4)}, v5, s[4:7], s45 offen offset:1024')
    k('s_waitcnt vmcnt(0)')
    for q in range(2):
        s = 64 + 0 if False else 48 + 0
    for q in range(2):
        s = 128 + 16*q
        k(f'{MF} {vr(s,16)}, {vr(KV)}, {vr(Q+8*q)}, 0'); k(f'{MF} {vr(s,16)}, {vr(KV+4)}, {vr(Q+8*q+4)}, {vr(s,16)}')
    k.nop(20)
    for q in range(2):
        s = 128 + 16*q
        for r in range(0, 16, 2): k(f'v_max3_f32 v{66+q}, v{66+q}, v{s+r}, v{s+r+1}')
    k('s_add_u32 s44, s44, 1'); k('s_cmp_lt_u32 s44, 16'); k(f's_cbranch_scc1 {LP}')
    for q in range(2):
        k(f'v_mov_b32 v68, v{66+q}'); k.nop(2)
        k(f'v_permlane32_swap_b32 v{66+q}, v68'); k.nop(1)
        k(f'v_max_f32 v{66+q}, v{66+q}, v68')
    k('s_lshl_b32 s45, s3, 8'); k(f's_add_u32 s45, s45, {LM}')
    k('v_lshlrev_b32 v8, 2, v4'); k('v_add_u32 v9, s45, v8')
    k('ds_write_b32 v9, v66'); k('ds_write_b32 v9, v67 offset:128')
    k('s_waitcnt lgkmcnt(0)'); k('s_barrier')
    k('s_lshl_b32 s45, s23, 8'); k(f's_add_u32 s45, s45, {LM}'); k('v_add_u32 v9, s45, v8')
    for j in range(4):
        k(f'ds_read_b32 v{32+2*j}, v9 offset:{j*512}'); k(f'ds_read_b32 v{33+2*j}, v9 offset:{j*512+128}')
    k(f'v_mov_b32 v8, 0'); k(f'v_mov_b32 v10, {LFLAG}'); k('ds_write_b32 v10, v8')
    k('s_waitcnt lgkmcnt(0)')
    for q in range(2):
        k(f'v_max3_f32 v{32+q}, v{32+q}, v{34+q}, v{36+q}'); k(f'v_max_f32 v{32+q}, v{32+q}, v{38+q}')
        k(f'v_add_f32 v{C+q}, v{C+q}, v{32+q}')
        set_shift(q, C+q)
    k('s_barrier')
    k.vm = []
    for kb in range(D): kvload(kb)
    k(f's_branch {MAIN}')
    k.label(FIN)
    k.vm = []; k.lg = []
    k('s_setprio 0')
    k('s_lshl_b32 s24, s21, 7'); k('s_lshl_b32 s25, s22, 2'); k('s_add_u32 s24, s24, s25'); k('s_add_u32 s24, s24, s16')
    k(f's_add_u32 s24, s24, {FA}')
    Ld = k.new_label('pb')
    k('s_cmp_lg_u32 s3, 0'); k(f's_cbranch_scc1 {Ld}')
    k('s_mov_b32 exec_lo, 1'); k('s_mov_b32 exec_hi, 0'); k('v_mov_b32 v9, 1')
    k(f'buffer_store_dword v9, off, s[4:7], s24 sc1')
    k('s_mov_b32 exec_lo, -1'); k('s_mov_b32 exec_hi, -1')
    k.label(Ld)
    stamp(k, 'a.end')
```

```python
from g2a import *
DBG = os.environ.get('K2DEBUG', '0') == '1'
STOP = int(os.environ.get('STOP', '99'))
LWQ = 65536; LCS = LWQ + 86016; LSC = LCS + 512
LWO = 69632; LFLAG = 159744; LM = LFLAG + 64
LC1 = 57344; LST = LC1 + 2048; LE = 65536
POLLMAX = 1 << 15
STN = []
SKIP = set(os.environ.get('STSKIP', '').split(','))
def stamp(k, name):
    if not DBG or name in SKIP: return
    if name.startswith('*') and name in STN: i = STN.index(name)
    else: i = len(STN); STN.append(name)
    assert i < 32
    La, Lb = k.new_label('st'), k.new_label('st')
    k('s_memtime s[90:91]'); k('s_cmp_eq_u32 s88, 0'); k('s_waitcnt lgkmcnt(0)'); k.lg = []
    k(f's_cbranch_scc1 {La}')
    k(f'v_writelane_b32 v2, s90, {32+i}'); k(f's_branch {Lb}')
    k.label(La); k(f'v_writelane_b32 v2, s90, {i}'); k.label(Lb)
PPOLL = int(os.environ.get('PPOLL', '4'))
PSL = int(os.environ.get('PSL', '2'))
def poll(k, s_addr, n, rb=None):
    L, Ld, Lt = k.new_label('pl'), k.new_label('pl'), k.new_label('pl')
    k('s_cmp_lg_u32 s3, 0'); k(f's_cbranch_scc1 {Ld}')
    k(f's_mov_b32 exec_lo, 0x{(1 << n) - 1:x}'); k('s_mov_b32 exec_hi, 0')
    k('v_lshlrev_b32 v8, 2, v1'); k('s_mov_b32 s18, 0')
    if rb is None or PPOLL <= 1:
        k.label(L)
        k(f'buffer_load_dword v9, v8, s[4:7], s{s_addr} offen sc1')
        k('s_waitcnt vmcnt(0)')
        k('v_cmp_eq_u32 vcc, 0, v9')
        k('s_add_u32 s18, s18, 1')
        k('s_nop 0')
        k('s_cmp_eq_u32 vcc_lo, 0'); k(f's_cbranch_scc1 {Lt}')
        k(f's_cmp_ge_u32 s18, {POLLMAX}'); k(f's_cbranch_scc1 {Lt}')
        k('s_sleep 1'); k(f's_branch {L}')
    else:
        P = PPOLL
        for j in range(P):
            k(f'buffer_load_dword v{rb+j}, v8, s[4:7], s{s_addr} offen sc1')
            if j + 1 < P: k(f's_sleep {PSL}')
        k.label(L)
        for j in range(P):
            k(f's_waitcnt vmcnt({P-1})')
            k(f'v_cmp_eq_u32 vcc, 0, v{rb+j}')
            k('s_add_u32 s18, s18, 1')
            k('s_nop 0')
            k('s_cmp_eq_u32 vcc_lo, 0'); k(f's_cbranch_scc1 {Lt}')
            k(f'buffer_load_dword v{rb+j}, v8, s[4:7], s{s_addr} offen sc1')
        k(f's_cmp_lt_u32 s18, {POLLMAX}'); k(f's_cbranch_scc1 {L}')
    k.label(Lt)
    k('s_mov_b32 exec_lo, -1'); k('s_mov_b32 exec_hi, -1')
    k.label(Ld)
    k('s_barrier')
FAST = os.environ.get('FAST', '1') == '1'
XT = 0x3800
def hstore(k, txts, tag=None, cold0=False):
    if not FAST:
        for t in txts: k.vmem(t + ' sc1', tag)
        return
    Ls, Lj = k.new_label('hs'), k.new_label('hs')
    k(f's_cmp_eq_u32 s{48 if (cold0 and HYB) else 17}, 0'); k(f's_cbranch_scc1 {Ls}')
    for t in txts: k(t)
    k(f's_branch {Lj}')
    k.label(Ls)
    for t in txts: k.vmem(t + ' sc1', tag)
    k.label(Lj)
HYB = os.environ.get('HYB', '1') == '1'
W1E = int(os.environ.get('W1E', '2'))
W1N = int(os.environ.get('W1N', '20'))
def publish(k, s_addr, local=False, skip_hi=False, nowait=False):
    if skip_hi:
        Lh = k.new_label('ph'); k('s_cmp_ge_u32 s3, 4'); k(f's_cbranch_scc1 {Lh}')
    if not nowait: k('s_waitcnt vmcnt(0)')
    k.vm = []
    if skip_hi: k.label(Lh)
    stamp(k, 'drain')
    k('s_barrier')
    Ld = k.new_label('pb')
    k('s_cmp_lg_u32 s3, 0'); k(f's_cbranch_scc1 {Ld}')
    k('s_mov_b32 exec_lo, 1'); k('s_mov_b32 exec_hi, 0')
    k('v_mov_b32 v9, 1')
    if local: hstore(k, [f'buffer_store_dword v9, off, s[4:7], s{s_addr}'])
    else: k(f'buffer_store_dword v9, off, s[4:7], s{s_addr} sc1')
    k.vm = []
    k('s_mov_b32 exec_lo, -1'); k('s_mov_b32 exec_hi, -1')
    k.label(Ld)
    stamp(k, 'flag')
def stats_load(k, s_off, vb, vaddr):
    k(f'v_mul_u32_u24 v{vaddr}, {7*512}, v3'); k(f'v_lshl_add_u32 v{vaddr}, v4, 4, v{vaddr}')
    for i in range(7):
        k.vmem(f'buffer_load_dwordx4 {vr(vb+4*i)}, v{vaddr}, s[4:7], s{s_off} offen offset:{i*512} sc1', 'st')
def stats_finish(k, vb, rs, mr, tmp):
    for i in range(1, 7):
        for j in range(4): k(f'v_add_f32 v{vb+j}, v{vb+j}, v{vb+4*i+j}')
    k(f'v_add_f32 v{vb}, v{vb}, v{vb+2}'); k(f'v_add_f32 v{vb+1}, v{vb+1}, v{vb+3}')
    half_sum(k, vb, tmp); half_sum(k, vb+1, tmp)
    k(f'v_mul_f32 v{vb}, {fl(1/448)}, v{vb}'); k(f'v_mul_f32 v{vb+1}, {fl(1/448)}, v{vb+1}')
    k(f'v_fma_f32 v{vb+1}, -v{vb}, v{vb}, v{vb+1}')
    k(f'v_max_f32 v{vb+1}, 0, v{vb+1}'); k(f'v_add_f32 v{vb+1}, {fl(1e-5)}, v{vb+1}')
    k(f'v_rsq_f32 v{rs}, v{vb+1}'); k.nop(1)
    k(f'v_mul_f32 v{mr}, v{vb}, v{rs}'); k(f'v_sub_f32 v{mr}, 0, v{mr}')
def ldsr(dst, off):
    b = off >> 16
    return f'ds_read_b128 {vr(dst)}, v{5+b} offset:{off & 0xffff}'
MF = 'v_mfma_f32_32x32x16_bf16'

def wq_prefetch(k, track=False):
    k('s_lshr_b32 s18, s13, 1')
    k(f's_mul_i32 s19, s18, 86016'); k(f's_add_u32 s19, s19, 0x{WQ:x}')
    k('s_lshl_b32 s20, s3, 10'); k('s_add_u32 s19, s19, s20'); k(f's_add_u32 s20, s20, {LWQ}')
    for i in range(11):
        L = None
        if i == 10:
            L = k.new_label('wq'); k('s_cmp_ge_u32 s3, 4'); k(f's_cbranch_scc1 {L}')
        k(f's_add_u32 m0, s20, {8192*i}'); k(f's_add_u32 s21, s19, {8192*i}')
        k('buffer_load_dwordx4 v5, s[4:7], s21 offen lds')
        if track and i < 10: k.vm.append('wq')
    L2 = k.new_label('wq'); k(f's_branch {L2}')
    k.label(L)
    k('s_cmp_lg_u32 s3, 4'); k(f's_cbranch_scc1 {L2}')
    k('s_lshl_b32 s21, s18, 9'); k(f's_add_u32 s21, s21, 0x{CSQ:x}')
    k(f's_mov_b32 m0, {LCS}'); k('s_mov_b32 exec_hi, 0')
    k('buffer_load_dwordx4 v5, s[4:7], s21 offen lds')
    k('s_mov_b32 exec_hi, -1')
    k.label(L2)

def w1reg(ks): return 176 + 4*ks if ks < 20 else 96 + 4*(ks - 20)
def w1pf(k, ks):
    k(f's_add_u32 s55, s54, {(ks//4)*4096}')
    k.vmem(f'buffer_load_dwordx4 {vr(w1reg(ks))}, v5, s[4:7], s55 offen offset:{(ks%4)*1024}', 'pf')
def tl_roles(k):
    k('s_and_b32 s50, s13, 3'); k('s_lshl_b32 s51, s12, 2'); k('s_add_u32 s50, s50, s51'); k('s_lshr_b32 s51, s13, 2')
    k('s_lshl_b32 s54, s51, 3'); k('s_add_u32 s54, s54, s3'); k(f's_mul_i32 s54, s54, {28*1024}'); k(f's_add_u32 s54, s54, 0x{W1:x}')

HOOKS = {}
def qkv(k):
    XF, WB, AQ, AK, AV, SB = 16, 72, 96, 112, 128, 144
    Lhi = k.new_label('qh')
    Lend = k.new_label('qe')
    k('s_and_b32 s22, s13, 1'); k('s_lshl_b32 s23, s12, 1'); k('s_add_u32 s22, s22, s23'); k('s_lshr_b32 s23, s13, 1')
    Ln = k.new_label('q0'); Lw = k.new_label('q2'); Lw2 = k.new_label('q3'); Lg = k.new_label('q1')
    k('s_lshl_b32 s25, s22, 2'); k('s_add_u32 s25, s25, s3')
    k(f's_mul_i32 s26, s25, {28*1024}'); k('s_add_u32 s26, s26, s14'); k(f's_add_u32 s26, s26, 0x{XIN:x}')
    k(f's_mul_i32 s27, s25, {STB}'); k('s_add_u32 s27, s27, s14'); k(f's_add_u32 s27, s27, 0x{STI:x}')
    Ln0 = k.new_label('q4')
    k('s_cmp_eq_u32 s15, 0'); k(f's_cbranch_scc1 {Ln0}')
    k('s_lshl_b32 s24, s22, 7'); k(f's_add_u32 s24, s24, {FL + F2}')
    k('s_waitcnt vmcnt(0)')
    poll(k, 24, 14, 16)
    k(f's_branch {Ln}')
    k.label(Ln0); k('s_barrier')
    k.label(Ln)
    DEPTH = 14
    def xload(ks):
        if ks % 4 == 0: k(f's_add_u32 s21, s26, {ks*1024}')
        k.vmem(f'buffer_load_dwordx4 {vr(XF+4*(ks%DEPTH))}, v5, s[4:7], s21 offen offset:{(ks%4)*1024} sc1', f'x{ks}')
    def wread(ks):
        b = WB + 12 * (ks % 2)
        for i in range(3): k.ds(ldsr(b+4*i, LWQ + (ks*3+i)*1024), f'w{ks}')
    k.vm = []
    k('s_cmp_ge_u32 s3, 4'); k(f's_cbranch_scc1 {Lw}')
    for ks in range(DEPTH): xload(ks)
    stats_load(k, 27, SB, 0)
    k('s_cmp_lg_u32 s15, 0'); k(f's_cbranch_scc1 {Lg}')
    k(f's_waitcnt vmcnt({DEPTH+7})'); k(f's_branch {Lw2}')
    k.label(Lw)
    k('s_cmp_lg_u32 s15, 0'); k(f's_cbranch_scc1 {Lhi}')
    k('s_waitcnt vmcnt(0)')
    k.label(Lw2)
    k('s_barrier')
    k('s_cmp_ge_u32 s3, 4'); k(f's_cbranch_scc1 {Lhi}')
    k.label(Lg)
    stamp(k, 'q.sync')
    wread(0)
    RS, MR = 8, 9
    CQ, CK, CV, VR = 176, 192, 208, 212
    SC = (28 ** -0.5) * LOG2E
    side = {ks: [] for ks in range(28)}
    def E(t): return lambda: k(t)
    side[1] = [E('v_lshlrev_b32 v11, 6, v3'), E(f'v_add_u32 v11, {LCS}, v11')] + \
              [(lambda i=i: k.ds(f'ds_read_b128 {vr(CQ+4*i)}, v11 offset:{16*i}', 'c')) for i in range(4)]
    side[2] = [(lambda i=i: k.ds(f'ds_read_b128 {vr(CK+4*i)}, v11 offset:{128+16*i}', 'c')) for i in range(4)]
    side[3] = [E('v_lshlrev_b32 v10, 2, v4'), E(f'v_add_u32 v10, {LCS+256}, v10'), lambda: k.ds(f'ds_read_b32 v{CV}, v10', 'c'),
               E('v_cmp_eq_u32 vcc, 28, v4'), E('v_mov_b32 v49x, 0'.replace('v49x', f'v{CV+1}')), E(f'v_mov_b32 v{CV+2}, 1.0'), E('s_nop 1'),
               E(f'v_cndmask_b32 v{CV+1}, v{CV+1}, v{CV+2}, vcc')]
    L0 = len(k.L); stats_finish(k, SB, RS, MR, 10); sf = k.L[L0:]; del k.L[L0:]
    n = len(sf); cuts = [0, 14, 26, n - 8, n]
    for j in range(4): side[15 + j] = [(lambda t=t: k.L.append(t)) for t in sf[cuts[j]:cuts[j+1]]]
    side[15].insert(0, lambda: k.vm_wait('st'))
    side[19] = [E('s_lshl_b32 s28, s3, 8'), E(f's_add_u32 s28, s28, {LSC}'), E('v_lshlrev_b32 v10, 3, v4'), E('v_add_u32 v10, s28, v10'),
                lambda: k.ds(f'ds_write_b64 v10, v[{RS}:{MR}]', 'sw'),
                E(f'v_mul_f32 v14, {fl(SC)}, v{RS}'), E(f'v_mul_f32 v15, {fl(SC)}, v{MR}'),
                E('v_lshlrev_b32 v11, 5, v3'), E('v_add_u32 v11, s28, v11')]
    side[20] = [lambda: k.lg_wait('sw')]
    for g in range(4):
        side[20] += [(lambda g=g: k.ds(f'ds_read_b128 {vr(VR+8*g)}, v11 offset:{64*g}', 'vr')),
                     (lambda g=g: k.ds(f'ds_read_b128 {vr(VR+8*g+4)}, v11 offset:{64*g+16}', 'vr'))]
    side[21] = [E(f'v_mul_f32 v{CQ+r}, v15, v{CQ+r}') for r in range(16)]
    side[22] = [E(f'v_mul_f32 v{CK+r}, v{MR}, v{CK+r}') for r in range(16)]
    for r in range(16):
        g, i = r >> 2, r & 3
        side[24 + r // 8].append(E(f'v_fma_f32 v{VR+8*g+2*i+1}, v{VR+8*g+2*i+1}, v{CV}, v{CV+1}'))
    side[26] = [E('s_lshl_b32 s29, s23, 6'), E('s_add_u32 s29, s29, s25'),
                E('s_lshl_b32 s30, s29, 11'), E('s_add_u32 s30, s30, s14'), E(f's_add_u32 s30, s30, 0x{QF:x}'),
                E('s_lshl_b32 s31, s29, 12'), E('s_add_u32 s31, s31, s47'), E(f's_add_u32 s31, s31, 0x{KVF:x}'),
                E('s_lshl_b32 s32, s29, 2'), E('s_lshr_b32 s33, s47, 10'), E('s_add_u32 s32, s32, s33'), E(f's_add_u32 s32, s32, 0x{KN:x}'),
                E('v_mov_b32 v12, 0'), E('v_mov_b32 v13, 0'), E('v_mov_b32 v10, 0'), E('v_mov_b32 v11, 0')]
    nxt = DEPTH
    for ks in range(28):
        if ks + 1 < 28: wread(ks + 1)
        k.vm_wait(f'x{ks}'); k.lg_wait(f'w{ks}')
        b = WB + 12 * (ks % 2); x = vr(XF + 4*(ks%DEPTH))
        c = lambda A: '0' if ks == 0 else vr(A, 16)
        sd = side[ks]; t3 = (len(sd) + 2) // 3
        k(f'{MF} {vr(AQ,16)}, {vr(b)}, {x}, {c(AQ)}')
        for f in sd[:t3]: f()
        k(f'{MF} {vr(AK,16)}, {vr(b+4)}, {x}, {c(AK)}')
        for f in sd[t3:2*t3]: f()
        k(f'{MF} {vr(AV,16)}, {x}, {vr(b+8)}, {c(AV)}')
        if nxt < 28:
            if nxt % 4 and ks == 0: k(f's_add_u32 s21, s26, {(nxt//4)*4096}')
            xload(nxt); nxt += 1
        for f in sd[2*t3:]: f()
    stamp(k, 'q.mfma')
    k.nop(14)
    k.lg = []; k.vm = []
    for r in range(16): k(f'v_fma_f32 v{AK+r}, v{RS}, v{AK+r}, v{CK+r}')
    for r in range(16):
        g, i = r >> 2, r & 3
        k(f'v_fma_f32 v{AV+r}, v{VR+8*g+2*i}, v{AV+r}, v{VR+8*g+2*i+1}')
    for i in range(8): k(f'v_cvt_pk_bf16_f32 v{32+i}, v{AV+2*i}, v{AV+2*i+1}')
    for r in range(0, 16, 2):
        k(f'v_fmac_f32 v13, v{AK+r}, v{AK+r}'); k(f'v_fmac_f32 v11, v{AK+r+1}, v{AK+r+1}')
        if r == 2:
            for i in range(2, 4): k(f'buffer_store_dwordx4 {vr(24+4*i)}, v5, s[4:7], s31 offen offset:{1024*i} sc1')
    k('s_mov_b32 exec_lo, 0')
    k(f'v_mov_b32 v{AK+12}, 1.0'); k(f'v_mov_b32 v{AK+13}, 1.0')
    k('s_mov_b32 exec_lo, -1')
    for i in range(8): k(f'v_cvt_pk_bf16_f32 v{24+i}, v{AK+2*i}, v{AK+2*i+1}')
    for r in range(16):
        k(f'v_fma_f32 v{AQ+r}, v14, v{AQ+r}, v{CQ+r}')
        if r == 2:
            for i in range(2): k(f'buffer_store_dwordx4 {vr(24+4*i)}, v5, s[4:7], s31 offen offset:{1024*i} sc1')
    for r in range(0, 16, 2):
        k(f'v_fmac_f32 v12, v{AQ+r}, v{AQ+r}'); k(f'v_fmac_f32 v10, v{AQ+r+1}, v{AQ+r+1}')
    k('v_add_f32 v12, v12, v10'); k('v_add_f32 v13, v13, v11')
    k('v_mov_b32 v10, v12'); k('v_mov_b32 v11, v13')
    for i in range(4): k(f'v_cvt_pk_bf16_f32 v{16+i}, v{AQ+2*i}, v{AQ+2*i+1}')
    k('v_permlane32_swap_b32 v12, v10'); k('v_permlane32_swap_b32 v13, v11')
    k('buffer_store_dwordx4 v[16:19], v5, s[4:7], s30 offen sc1')
    k.nop(1)
    k('v_add_f32 v12, v12, v10'); k('v_add_f32 v13, v13, v11')
    k('v_sqrt_f32 v12, v12')
    for i in range(4, 7): k(f'v_cvt_pk_bf16_f32 v{16+i}, v{AQ+2*i}, v{AQ+2*i+1}')
    k('s_mov_b32 exec_lo, 0')
    k(f'v_mov_b32 v{AQ+14}, v12')
    k('s_mov_b32 exec_lo, -1')
    k(f'v_cvt_pk_bf16_f32 v23, v{AQ+14}, v{AQ+15}')
    k.nop(1)
    k(f'buffer_store_dwordx4 v[20:23], v5, s[4:7], s30 offen offset:1024 sc1')
    wave_max(k, 13)
    k('s_mov_b32 exec_lo, 0'); k('s_mov_b32 exec_hi, 0x80000000')
    k('buffer_store_dword v13, off, s[4:7], s32 sc1')
    k('s_mov_b32 exec_lo, -1'); k('s_mov_b32 exec_hi, -1')
    if W1E == 1:
        for ks in range(20): w1pf(k, ks)
        k('s_waitcnt vmcnt(20)')
    k(f's_branch {Lend}')
    k.label(Lhi)
    k.label(Lend)
    k.lg = []
    k('s_lshl_b32 s24, s23, 7'); k('s_lshl_b32 s25, s22, 2'); k('s_add_u32 s24, s24, s25'); k('s_add_u32 s24, s24, s16')
    stamp(k, 'q.epi')
    publish(k, 24, skip_hi=True, nowait=(W1E == 1))
    Lwo = k.new_label('qw')
    k('s_cmp_lt_u32 s3, 4'); k(f's_cbranch_scc1 {Lwo}')
    k('s_lshl_b32 s52, s51, 16'); k('s_sub_u32 s53, s3, 4'); k('s_lshl_b32 s53, s53, 10'); k('s_add_u32 s52, s52, s53')
    k(f's_add_u32 s52, s52, 0x{WO:x}'); k(f's_add_u32 s53, s53, {LWO}')
    for n in range(16):
        k(f's_add_u32 m0, s53, {4096*n}'); k(f's_add_u32 s55, s52, {4096*n}')
        k('buffer_load_dwordx4 v5, s[4:7], s55 offen lds')
    if W1E == 1:
        for ks in range(20): w1pf(k, ks)
    k.label(Lwo)
    if W1E == 2:
        Lw1 = k.new_label('qw')
        k('s_cmp_eq_u32 s3, 0'); k(f's_cbranch_scc1 {Lw1}')
        for ks in range(W1N): w1pf(k, ks)
        k.label(Lw1)
    k.vm = []


def attn(k):
    Q, KV, S, P, O, C = 16, 32, 96, 128, 144, 14
    D = 4
    k('s_and_b32 s20, s13, 1'); k('s_lshl_b32 s22, s12, 1'); k('s_add_u32 s22, s22, s20')
    k('s_lshr_b32 s21, s13, 1')
    k('s_lshl_b32 s24, s22, 7'); k('s_add_u32 s24, s24, s16')
    poll(k, 24, 16, 32)
    stamp(k, 'a.sync')
    k('s_and_b32 s23, s3, 1'); k('s_lshr_b32 s24, s3, 1')
    k('s_lshl_b32 s25, s21, 2'); k('s_lshl_b32 s26, s23, 1'); k('s_add_u32 s25, s25, s26')
    k('s_lshl_b32 s27, s22, 6')
    k('s_add_u32 s28, s27, s25'); k('s_lshl_b32 s28, s28, 11'); k('s_add_u32 s28, s28, s14'); k(f's_add_u32 s28, s28, 0x{QF:x}')
    k('s_lshl_b32 s29, s24, 4'); k('s_add_u32 s29, s29, s27'); k('s_lshl_b32 s29, s29, 12')
    k('s_add_u32 s29, s29, s47'); k(f's_add_u32 s29, s29, 0x{KVF:x}')
    k('s_lshl_b32 s30, s27, 2'); k('s_lshr_b32 s33, s47, 10'); k('s_add_u32 s30, s30, s33'); k(f's_add_u32 s30, s30, 0x{KN:x}')
    k('v_lshlrev_b32 v0, 2, v1')
    if FAST:
        k('s_lshl_b32 s18, s12, 7'); k(f's_add_u32 s18, s18, {FL + XT}'); k('v_lshlrev_b32 v8, 2, v4')
        k.vmem('buffer_load_dword v12, v8, s[4:7], s18 offen sc1', 'kn')
    k.vmem('buffer_load_dword v11, v0, s[4:7], s30 offen sc1', 'kn')
    for i in range(4): k.vmem(f'buffer_load_dwordx4 {vr(Q+4*i)}, v5, s[4:7], s28 offen offset:{1024*i} sc1', 'q')
    k('v_mov_b32 v8, 0'); k(f'v_mov_b32 v9, {LFLAG}'); k('ds_write_b32 v9, v8')
    k('s_mov_b32 s40, 0')
    def kvload(kb, part=(0, 1, 2, 3)):
        b = KV + 16 * (kb % D)
        k(f's_add_u32 s31, s29, {kb*4096}')
        for i in part:
            k.vmem(f'buffer_load_dwordx4 {vr(b+4*i)}, v5, s[4:7], s31 offen offset:{1024*i}', f'k{kb}' if i < 2 else f'v{kb}')
    if os.environ.get('AORD', '1') == '1':
        kvload(0, (0, 1))
        k('s_barrier')
        kvload(0, (2, 3))
        for kb in range(1, D): kvload(kb)
    else:
        for kb in range(D): kvload(kb)
    k.vm_wait('kn')
    if FAST:
        k('v_cmp_ne_u32 vcc, s46, v12'); k('s_nop 1')
        k('s_or_b32 s18, vcc_lo, vcc_hi'); k('s_cmp_eq_u32 s18, 0'); k('s_cselect_b32 s17, 1, 0')
        k('s_and_b32 s48, s17, s15')
        if os.environ.get('DELAYTEST'):
            L2 = k.new_label('dl'); L3 = k.new_label('dl')
            k('s_cmp_lg_u32 s17, 0'); k(f's_cbranch_scc1 {L3}')
            k('s_mov_b32 s18, 0')
            k.label(L2)
            k('s_sleep 8'); k('s_add_u32 s18, s18, 1'); k('s_cmp_lt_u32 s18, 40'); k(f's_cbranch_scc1 {L2}')
            k.label(L3)
    wave_max(k, 11); k.nop(1)
    k('v_readlane_b32 s32, v11, 63'); k.nop(2)
    k('v_sqrt_f32 v11, s32'); k.nop(1)
    k(f'v_mul_f32 v11, {fl(1.0+1/64)}, v11')
    k.vm_wait('q')
    def set_shift(q, cv):
        d = Q + 8*q + 4 + 2
        k(f'v_cvt_pk_bf16_f32 v8, v{cv}, v{cv}'); k('v_and_b32 v8, 0xffff0000, v8')
        k(f'v_sub_f32 v9, v{cv}, v8'); k(f'v_cvt_pk_bf16_f32 v10, v9, v9'); k('v_and_b32 v10, 0xffff0000, v10')
        k(f'v_add_f32 v{cv}, v8, v10'); k('v_cvt_pk_bf16_f32 v9, -v8, -v10')
        k('s_mov_b32 exec_lo, 0'); k(f'v_mov_b32 v{d}, v9'); k('s_mov_b32 exec_lo, -1')
    for q in range(2):
        k(f'v_lshlrev_b32 v{C+q}, 16, v{Q+8*q+4+3}'); k(f'v_mul_f32 v{C+q}, v{C+q}, v11')
        set_shift(q, C+q)
    MAIN = k.new_label('main'); FIN = k.new_label('fin')
    k.label(MAIN)
    NT = 32
    def smf(n, which):
        kb, q = n >> 1, n & 1
        b = KV + 16*(kb % D); s = S + 16*(n % 2)
        if which == 0: return f'{MF} {vr(s,16)}, {vr(b)}, {vr(Q+8*q)}, 0'
        return f'{MF} {vr(s,16)}, {vr(b+4)}, {vr(Q+8*q+4)}, {vr(s,16)}'
    def pmf(n, which):
        kb, q = n >> 1, n & 1
        b = KV + 16*(kb % D) + 8; p = P + 8*(n % 2); o = O + 16*q
        c = '0' if (n < 2 and which == 0) else vr(o, 16)
        return f'{MF} {vr(o,16)}, {vr(b+4*which)}, {vr(p+4*which)}, {c}'
    k.vm_wait('k0')
    stamp(k, 'a.k0')
    k.nop(2); k(smf(0, 0)); k(smf(0, 1)); k.nop(16)
    PRIO = os.environ.get('APRIO', '1') == '1'
    for n in range(NT + 1):
        if PRIO and n % 8 == 0 and n < NT: k(f's_setprio {3 - n//8}')
        valu = []
        if n < NT:
            s = S + 16*(n % 2); p = P + 8*(n % 2)
            valu = [f'v_exp_f32 v{s+r}, v{s+r}' for r in range(16)]
            valu += [f'v_cvt_pk_bf16_f32 v{p+i}, v{s+2*i}, v{s+2*i+1}' for i in range(8)]
        mf = []
        if n + 1 < NT:
            if (n + 1) % 2 == 0: k.vm_wait(f'k{(n+1)>>1}')
            mf += [smf(n+1, 0), smf(n+1, 1)]
        if n >= 1:
            k.vm_wait(f'v{(n-1)>>1}')
            mf += [pmf(n-1, 0), pmf(n-1, 1)]
        if n == NT: k.nop(2)
        pos = [0, 6, 12, 18] if len(mf) == 4 else ([0, 6] if n == 0 else [12, 18])
        mi = 0
        if not valu:
            for m in mf: k(m)
        else:
            for i, v in enumerate(valu):
                while mi < len(mf) and pos[mi] == i:
                    k(mf[mi]); mi += 1
                k(v)
        if n >= 1 and (n - 1) % 2 == 1:
            kbn = ((n - 1) >> 1) + D
            if kbn < 16: kvload(kbn)
        if 2 <= n < 22 and (not W1E or (W1E == 2 and n - 2 >= W1N)): w1pf(k, n - 2)
        elif 2 <= n < 22 and W1E == 2:
            Lp = k.new_label('pf'); sv = list(k.vm)
            k('s_cmp_lg_u32 s3, 0'); k(f's_cbranch_scc1 {Lp}'); w1pf(k, n - 2); k.label(Lp); k.vm = sv
    for ks in range(20, 28): w1pf(k, ks)
    k.nop(8)
    stamp(k, 'a.main')
    k('s_lshl_b32 s33, s3, 13'); k('v_add_u32 v8, s33, v5')
    for q in range(2):
        for i in range(4): k(f'ds_write_b128 v8, {vr(O+16*q+4*i)} offset:{q*4096+i*1024}')
    k('s_waitcnt lgkmcnt(0)'); k('s_barrier')
    k('s_lshr_b32 s34, s24, 1'); k('s_and_b32 s35, s24, 1')
    k('s_lshl_b32 s36, s23, 13'); k('s_lshl_b32 s37, s34, 12'); k('s_add_u32 s36, s36, s37')
    k('s_lshl_b32 s37, s35, 11'); k('s_add_u32 s37, s37, s36')
    k('v_add_u32 v8, s37, v5')
    k('v_lshlrev_b32 v9, 4, v4'); k(f'v_add_u32 v9, {3*1024 + 32*16}, v9'); k('v_add_u32 v9, s36, v9')
    for j in range(4):
        k(f'ds_read_b128 {vr(32+8*j)}, v8 offset:{j*16384}')
        k(f'ds_read_b128 {vr(36+8*j)}, v8 offset:{j*16384+1024}')
        k(f'ds_read_b32 v{64+j}, v9 offset:{j*16384}')
    k('s_waitcnt lgkmcnt(0)')
    for j in range(1, 4):
        for r in range(8): k(f'v_add_f32 v{32+r}, v{32+r}, v{32+8*j+r}')
        k(f'v_add_f32 v64, v64, v{64+j}')
    k('v_rcp_f32 v65, v64')
    k(f'v_mov_b32 v66, {fl(2.0**-80)}'); k('v_cmp_nge_f32 vcc, v64, v66')
    k(f'v_mov_b32 v66, {fl(2.0**100)}'); k('v_cmp_nle_f32 s[38:39], v64, v66')
    for r in range(8): k(f'v_mul_f32 v{32+r}, v{32+r}, v65')
    for i in range(4): k(f'v_cvt_pk_bf16_f32 v{40+i}, v{32+2*i}, v{32+2*i+1}')
    k('s_add_u32 s41, s25, s34'); k('s_lshl_b32 s41, s41, 5'); k('s_lshl_b32 s42, s22, 1')
    k('s_add_u32 s41, s41, s42'); k('s_add_u32 s41, s41, s35'); k('s_lshl_b32 s41, s41, 10')
    k('s_add_u32 s41, s41, s14'); k(f's_add_u32 s41, s41, 0x{OF:x}')
    k('buffer_store_dwordx4 v[40:43], v5, s[4:7], s41 offen sc1')
    k('s_or_b64 vcc, vcc, s[38:39]')
    Lok = k.new_label('ok')
    k(f's_cbranch_vccz {Lok}')
    k('v_mov_b32 v8, 1'); k(f'v_mov_b32 v9, {LFLAG}'); k('ds_write_b32 v9, v8')
    k.label(Lok)
    stamp(k, 'a.st')
    k('s_waitcnt vmcnt(0) lgkmcnt(0)'); k.vm = []
    stamp(k, 'a.drain')
    k('s_barrier')
    k(f'v_mov_b32 v9, {LFLAG}'); k('ds_read_b32 v8, v9'); k('s_waitcnt lgkmcnt(0)'); k('s_nop 0')
    k('v_readfirstlane_b32 s43, v8')
    k('s_cmp_eq_u32 s43, 0'); k(f's_cbranch_scc1 {FIN}')
    k('s_cmp_lg_u32 s40, 0'); k(f's_cbranch_scc1 {FIN}')
    k('s_mov_b32 s40, 1')
    k(f'v_mov_b32 v66, 0xff800000'); k(f'v_mov_b32 v67, 0xff800000')
    k('s_mov_b32 s44, 0')
    LP = k.new_label('mx'); k.label(LP)
    k('s_lshl_b32 s45, s44, 12'); k('s_add_u32 s45, s45, s29')
    k(f'buffer_load_dwordx4 {vr(KV)}, v5, s[4:7], s45 offen')
    k(f'buffer_load_dwordx4 {vr(KV+4)}, v5, s[4:7], s45 offen offset:1024')
    k('s_waitcnt vmcnt(0)')
    for q in range(2):
        s = 64 + 0 if False else 48 + 0
    for q in range(2):
        s = 128 + 16*q
        k(f'{MF} {vr(s,16)}, {vr(KV)}, {vr(Q+8*q)}, 0'); k(f'{MF} {vr(s,16)}, {vr(KV+4)}, {vr(Q+8*q+4)}, {vr(s,16)}')
    k.nop(20)
    for q in range(2):
        s = 128 + 16*q
        for r in range(0, 16, 2): k(f'v_max3_f32 v{66+q}, v{66+q}, v{s+r}, v{s+r+1}')
    k('s_add_u32 s44, s44, 1'); k('s_cmp_lt_u32 s44, 16'); k(f's_cbranch_scc1 {LP}')
    for q in range(2):
        k(f'v_mov_b32 v68, v{66+q}'); k.nop(2)
        k(f'v_permlane32_swap_b32 v{66+q}, v68'); k.nop(1)
        k(f'v_max_f32 v{66+q}, v{66+q}, v68')
    k('s_lshl_b32 s45, s3, 8'); k(f's_add_u32 s45, s45, {LM}')
    k('v_lshlrev_b32 v8, 2, v4'); k('v_add_u32 v9, s45, v8')
    k('ds_write_b32 v9, v66'); k('ds_write_b32 v9, v67 offset:128')
    k('s_waitcnt lgkmcnt(0)'); k('s_barrier')
    k('s_lshl_b32 s45, s23, 8'); k(f's_add_u32 s45, s45, {LM}'); k('v_add_u32 v9, s45, v8')
    for j in range(4):
        k(f'ds_read_b32 v{32+2*j}, v9 offset:{j*512}'); k(f'ds_read_b32 v{33+2*j}, v9 offset:{j*512+128}')
    k(f'v_mov_b32 v8, 0'); k(f'v_mov_b32 v10, {LFLAG}'); k('ds_write_b32 v10, v8')
    k('s_waitcnt lgkmcnt(0)')
    for q in range(2):
        k(f'v_max3_f32 v{32+q}, v{32+q}, v{34+q}, v{36+q}'); k(f'v_max_f32 v{32+q}, v{32+q}, v{38+q}')
        k(f'v_add_f32 v{C+q}, v{C+q}, v{32+q}')
        set_shift(q, C+q)
    k('s_barrier')
    k.vm = []
    for kb in range(D): kvload(kb)
    k(f's_branch {MAIN}')
    k.label(FIN)
    k.vm = []; k.lg = []
    k('s_setprio 0')
    k('s_lshl_b32 s24, s21, 7'); k('s_lshl_b32 s25, s22, 2'); k('s_add_u32 s24, s24, s25'); k('s_add_u32 s24, s24, s16')
    k(f's_add_u32 s24, s24, {FA}')
    Ld = k.new_label('pb')
    k('s_cmp_lg_u32 s3, 0'); k(f's_cbranch_scc1 {Ld}')
    k('s_mov_b32 exec_lo, 1'); k('s_mov_b32 exec_hi, 0'); k('v_mov_b32 v9, 1')
    k(f'buffer_store_dword v9, off, s[4:7], s24 sc1')
    k('s_mov_b32 exec_lo, -1'); k('s_mov_b32 exec_hi, -1')
    k.label(Ld)
    stamp(k, 'a.end')
```

```python
from g2a import *
DBG = os.environ.get('K2DEBUG', '0') == '1'
STOP = int(os.environ.get('STOP', '99'))
LWQ = 65536; LCS = LWQ + 86016; LSC = LCS + 512
LWO = 69632; LFLAG = 159744; LM = LFLAG + 64
LC1 = 57344; LST = LC1 + 2048; LE = 65536
POLLMAX = 1 << 15
STN = []
SKIP = set(os.environ.get('STSKIP', '').split(','))
def stamp(k, name):
    if not DBG or name in SKIP: return
    if name.startswith('*') and name in STN: i = STN.index(name)
    else: i = len(STN); STN.append(name)
    assert i < 32
    La, Lb = k.new_label('st'), k.new_label('st')
    k('s_memtime s[90:91]'); k('s_cmp_eq_u32 s88, 0'); k('s_waitcnt lgkmcnt(0)'); k.lg = []
    k(f's_cbranch_scc1 {La}')
    k(f'v_writelane_b32 v2, s90, {32+i}'); k(f's_branch {Lb}')
    k.label(La); k(f'v_writelane_b32 v2, s90, {i}'); k.label(Lb)
PPOLL = int(os.environ.get('PPOLL', '4'))
PSL = int(os.environ.get('PSL', '2'))
def poll(k, s_addr, n, rb=None):
    L, Ld, Lt = k.new_label('pl'), k.new_label('pl'), k.new_label('pl')
    k('s_cmp_lg_u32 s3, 0'); k(f's_cbranch_scc1 {Ld}')
    k(f's_mov_b32 exec_lo, 0x{(1 << n) - 1:x}'); k('s_mov_b32 exec_hi, 0')
    k('v_lshlrev_b32 v8, 2, v1'); k('s_mov_b32 s18, 0')
    if rb is None or PPOLL <= 1:
        k.label(L)
        k(f'buffer_load_dword v9, v8, s[4:7], s{s_addr} offen sc1')
        k('s_waitcnt vmcnt(0)')
        k('v_cmp_eq_u32 vcc, 0, v9')
        k('s_add_u32 s18, s18, 1')
        k('s_nop 0')
        k('s_cmp_eq_u32 vcc_lo, 0'); k(f's_cbranch_scc1 {Lt}')
        k(f's_cmp_ge_u32 s18, {POLLMAX}'); k(f's_cbranch_scc1 {Lt}')
        k('s_sleep 1'); k(f's_branch {L}')
    else:
        P = PPOLL
        for j in range(P):
            k(f'buffer_load_dword v{rb+j}, v8, s[4:7], s{s_addr} offen sc1')
            if j + 1 < P: k(f's_sleep {PSL}')
        k.label(L)
        for j in range(P):
            k(f's_waitcnt vmcnt({P-1})')
            k(f'v_cmp_eq_u32 vcc, 0, v{rb+j}')
            k('s_add_u32 s18, s18, 1')
            k('s_nop 0')
            k('s_cmp_eq_u32 vcc_lo, 0'); k(f's_cbranch_scc1 {Lt}')
            k(f'buffer_load_dword v{rb+j}, v8, s[4:7], s{s_addr} offen sc1')
        k(f's_cmp_lt_u32 s18, {POLLMAX}'); k(f's_cbranch_scc1 {L}')
    k.label(Lt)
    k('s_mov_b32 exec_lo, -1'); k('s_mov_b32 exec_hi, -1')
    k.label(Ld)
    k('s_barrier')
FAST = os.environ.get('FAST', '1') == '1'
XT = 0x3800
def hstore(k, txts, tag=None, cold0=False):
    if not FAST:
        for t in txts: k.vmem(t + ' sc1', tag)
        return
    Ls, Lj = k.new_label('hs'), k.new_label('hs')
    k(f's_cmp_eq_u32 s{48 if (cold0 and HYB) else 17}, 0'); k(f's_cbranch_scc1 {Ls}')
    for t in txts: k(t)
    k(f's_branch {Lj}')
    k.label(Ls)
    for t in txts: k.vmem(t + ' sc1', tag)
    k.label(Lj)
HYB = os.environ.get('HYB', '1') == '1'
W1E = int(os.environ.get('W1E', '0'))
WOL = int(os.environ.get('WOL', '22'))
W1N = int(os.environ.get('W1N', '20'))
def publish(k, s_addr, local=False, skip_hi=False, nowait=False):
    if skip_hi:
        Lh = k.new_label('ph'); k('s_cmp_ge_u32 s3, 4'); k(f's_cbranch_scc1 {Lh}')
    if not nowait: k('s_waitcnt vmcnt(0)')
    k.vm = []
    if skip_hi: k.label(Lh)
    stamp(k, 'drain')
    k('s_barrier')
    Ld = k.new_label('pb')
    k('s_cmp_lg_u32 s3, 0'); k(f's_cbranch_scc1 {Ld}')
    k('s_mov_b32 exec_lo, 1'); k('s_mov_b32 exec_hi, 0')
    k('v_mov_b32 v9, 1')
    if local: hstore(k, [f'buffer_store_dword v9, off, s[4:7], s{s_addr}'])
    else: k(f'buffer_store_dword v9, off, s[4:7], s{s_addr} sc1')
    k.vm = []
    k('s_mov_b32 exec_lo, -1'); k('s_mov_b32 exec_hi, -1')
    k.label(Ld)
    stamp(k, 'flag')
def stats_load(k, s_off, vb, vaddr):
    k(f'v_mul_u32_u24 v{vaddr}, {7*512}, v3'); k(f'v_lshl_add_u32 v{vaddr}, v4, 4, v{vaddr}')
    for i in range(7):
        k.vmem(f'buffer_load_dwordx4 {vr(vb+4*i)}, v{vaddr}, s[4:7], s{s_off} offen offset:{i*512} sc1', 'st')
def stats_finish(k, vb, rs, mr, tmp):
    for i in range(1, 7):
        for j in range(4): k(f'v_add_f32 v{vb+j}, v{vb+j}, v{vb+4*i+j}')
    k(f'v_add_f32 v{vb}, v{vb}, v{vb+2}'); k(f'v_add_f32 v{vb+1}, v{vb+1}, v{vb+3}')
    half_sum(k, vb, tmp); half_sum(k, vb+1, tmp)
    k(f'v_mul_f32 v{vb}, {fl(1/448)}, v{vb}'); k(f'v_mul_f32 v{vb+1}, {fl(1/448)}, v{vb+1}')
    k(f'v_fma_f32 v{vb+1}, -v{vb}, v{vb}, v{vb+1}')
    k(f'v_max_f32 v{vb+1}, 0, v{vb+1}'); k(f'v_add_f32 v{vb+1}, {fl(1e-5)}, v{vb+1}')
    k(f'v_rsq_f32 v{rs}, v{vb+1}'); k.nop(1)
    k(f'v_mul_f32 v{mr}, v{vb}, v{rs}'); k(f'v_sub_f32 v{mr}, 0, v{mr}')
def ldsr(dst, off):
    b = off >> 16
    return f'ds_read_b128 {vr(dst)}, v{5+b} offset:{off & 0xffff}'
MF = 'v_mfma_f32_32x32x16_bf16'

def wq_prefetch(k, track=False):
    k('s_lshr_b32 s18, s13, 1')
    k(f's_mul_i32 s19, s18, 86016'); k(f's_add_u32 s19, s19, 0x{WQ:x}')
    k('s_lshl_b32 s20, s3, 10'); k('s_add_u32 s19, s19, s20'); k(f's_add_u32 s20, s20, {LWQ}')
    for i in range(11):
        L = None
        if i == 10:
            L = k.new_label('wq'); k('s_cmp_ge_u32 s3, 4'); k(f's_cbranch_scc1 {L}')
        k(f's_add_u32 m0, s20, {8192*i}'); k(f's_add_u32 s21, s19, {8192*i}')
        k('buffer_load_dwordx4 v5, s[4:7], s21 offen lds')
        if track and i < 10: k.vm.append('wq')
    L2 = k.new_label('wq'); k(f's_branch {L2}')
    k.label(L)
    k('s_cmp_lg_u32 s3, 4'); k(f's_cbranch_scc1 {L2}')
    k('s_lshl_b32 s21, s18, 9'); k(f's_add_u32 s21, s21, 0x{CSQ:x}')
    k(f's_mov_b32 m0, {LCS}'); k('s_mov_b32 exec_hi, 0')
    k('buffer_load_dwordx4 v5, s[4:7], s21 offen lds')
    k('s_mov_b32 exec_hi, -1')
    k.label(L2)

def w1reg(ks): return 176 + 4*ks if ks < 20 else 96 + 4*(ks - 20)
def w1pf(k, ks):
    k(f's_add_u32 s55, s54, {(ks//4)*4096}')
    k.vmem(f'buffer_load_dwordx4 {vr(w1reg(ks))}, v5, s[4:7], s55 offen offset:{(ks%4)*1024}', 'pf')
def tl_roles(k):
    k('s_and_b32 s50, s13, 3'); k('s_lshl_b32 s51, s12, 2'); k('s_add_u32 s50, s50, s51'); k('s_lshr_b32 s51, s13, 2')
    k('s_lshl_b32 s54, s51, 3'); k('s_add_u32 s54, s54, s3'); k(f's_mul_i32 s54, s54, {28*1024}'); k(f's_add_u32 s54, s54, 0x{W1:x}')

HOOKS = {}
def qkv(k):
    XF, WB, AQ, AK, AV, SB = 16, 72, 96, 112, 128, 144
    Lhi = k.new_label('qh')
    Lend = k.new_label('qe')
    k('s_and_b32 s22, s13, 1'); k('s_lshl_b32 s23, s12, 1'); k('s_add_u32 s22, s22, s23'); k('s_lshr_b32 s23, s13, 1')
    Ln = k.new_label('q0'); Lw = k.new_label('q2'); Lw2 = k.new_label('q3'); Lg = k.new_label('q1')
    k('s_lshl_b32 s25, s22, 2'); k('s_add_u32 s25, s25, s3')
    k(f's_mul_i32 s26, s25, {28*1024}'); k('s_add_u32 s26, s26, s14'); k(f's_add_u32 s26, s26, 0x{XIN:x}')
    k(f's_mul_i32 s27, s25, {STB}'); k('s_add_u32 s27, s27, s14'); k(f's_add_u32 s27, s27, 0x{STI:x}')
    Ln0 = k.new_label('q4')
    k('s_cmp_eq_u32 s15, 0'); k(f's_cbranch_scc1 {Ln0}')
    k('s_lshl_b32 s24, s22, 7'); k(f's_add_u32 s24, s24, {FL + F2}')
    k('s_waitcnt vmcnt(0)')
    poll(k, 24, 14, 16)
    k(f's_branch {Ln}')
    k.label(Ln0); k('s_barrier')
    k.label(Ln)
    DEPTH = 14
    def xload(ks):
        if ks % 4 == 0: k(f's_add_u32 s21, s26, {ks*1024}')
        k.vmem(f'buffer_load_dwordx4 {vr(XF+4*(ks%DEPTH))}, v5, s[4:7], s21 offen offset:{(ks%4)*1024} sc1', f'x{ks}')
    def wread(ks):
        b = WB + 12 * (ks % 2)
        for i in range(3): k.ds(ldsr(b+4*i, LWQ + (ks*3+i)*1024), f'w{ks}')
    k.vm = []
    k('s_cmp_ge_u32 s3, 4'); k(f's_cbranch_scc1 {Lw}')
    for ks in range(DEPTH): xload(ks)
    stats_load(k, 27, SB, 0)
    k('s_cmp_lg_u32 s15, 0'); k(f's_cbranch_scc1 {Lg}')
    k(f's_waitcnt vmcnt({DEPTH+7})'); k(f's_branch {Lw2}')
    k.label(Lw)
    k('s_cmp_lg_u32 s15, 0'); k(f's_cbranch_scc1 {Lhi}')
    k('s_waitcnt vmcnt(0)')
    k.label(Lw2)
    k('s_barrier')
    k('s_cmp_ge_u32 s3, 4'); k(f's_cbranch_scc1 {Lhi}')
    k.label(Lg)
    stamp(k, 'q.sync')
    wread(0)
    RS, MR = 8, 9
    CQ, CK, CV, VR = 176, 192, 208, 212
    SC = (28 ** -0.5) * LOG2E
    side = {ks: [] for ks in range(28)}
    def E(t): return lambda: k(t)
    side[1] = [E('v_lshlrev_b32 v11, 6, v3'), E(f'v_add_u32 v11, {LCS}, v11')] + \
              [(lambda i=i: k.ds(f'ds_read_b128 {vr(CQ+4*i)}, v11 offset:{16*i}', 'c')) for i in range(4)]
    side[2] = [(lambda i=i: k.ds(f'ds_read_b128 {vr(CK+4*i)}, v11 offset:{128+16*i}', 'c')) for i in range(4)]
    side[3] = [E('v_lshlrev_b32 v10, 2, v4'), E(f'v_add_u32 v10, {LCS+256}, v10'), lambda: k.ds(f'ds_read_b32 v{CV}, v10', 'c'),
               E('v_cmp_eq_u32 vcc, 28, v4'), E('v_mov_b32 v49x, 0'.replace('v49x', f'v{CV+1}')), E(f'v_mov_b32 v{CV+2}, 1.0'), E('s_nop 1'),
               E(f'v_cndmask_b32 v{CV+1}, v{CV+1}, v{CV+2}, vcc')]
    L0 = len(k.L); stats_finish(k, SB, RS, MR, 10); sf = k.L[L0:]; del k.L[L0:]
    n = len(sf); cuts = [0, 14, 26, n - 8, n]
    for j in range(4): side[15 + j] = [(lambda t=t: k.L.append(t)) for t in sf[cuts[j]:cuts[j+1]]]
    side[15].insert(0, lambda: k.vm_wait('st'))
    side[19] = [E('s_lshl_b32 s28, s3, 8'), E(f's_add_u32 s28, s28, {LSC}'), E('v_lshlrev_b32 v10, 3, v4'), E('v_add_u32 v10, s28, v10'),
                lambda: k.ds(f'ds_write_b64 v10, v[{RS}:{MR}]', 'sw'),
                E(f'v_mul_f32 v14, {fl(SC)}, v{RS}'), E(f'v_mul_f32 v15, {fl(SC)}, v{MR}'),
                E('v_lshlrev_b32 v11, 5, v3'), E('v_add_u32 v11, s28, v11')]
    side[20] = [lambda: k.lg_wait('sw')]
    for g in range(4):
        side[20] += [(lambda g=g: k.ds(f'ds_read_b128 {vr(VR+8*g)}, v11 offset:{64*g}', 'vr')),
                     (lambda g=g: k.ds(f'ds_read_b128 {vr(VR+8*g+4)}, v11 offset:{64*g+16}', 'vr'))]
    side[21] = [E(f'v_mul_f32 v{CQ+r}, v15, v{CQ+r}') for r in range(16)]
    side[22] = [E(f'v_mul_f32 v{CK+r}, v{MR}, v{CK+r}') for r in range(16)]
    for r in range(16):
        g, i = r >> 2, r & 3
        side[24 + r // 8].append(E(f'v_fma_f32 v{VR+8*g+2*i+1}, v{VR+8*g+2*i+1}, v{CV}, v{CV+1}'))
    side[26] = [E('s_lshl_b32 s29, s23, 6'), E('s_add_u32 s29, s29, s25'),
                E('s_lshl_b32 s30, s29, 11'), E('s_add_u32 s30, s30, s14'), E(f's_add_u32 s30, s30, 0x{QF:x}'),
                E('s_lshl_b32 s31, s29, 12'), E('s_add_u32 s31, s31, s47'), E(f's_add_u32 s31, s31, 0x{KVF:x}'),
                E('s_lshl_b32 s32, s29, 2'), E('s_lshr_b32 s33, s47, 10'), E('s_add_u32 s32, s32, s33'), E(f's_add_u32 s32, s32, 0x{KN:x}'),
                E('v_mov_b32 v12, 0'), E('v_mov_b32 v13, 0'), E('v_mov_b32 v10, 0'), E('v_mov_b32 v11, 0')]
    nxt = DEPTH
    for ks in range(28):
        if ks + 1 < 28: wread(ks + 1)
        k.vm_wait(f'x{ks}'); k.lg_wait(f'w{ks}')
        b = WB + 12 * (ks % 2); x = vr(XF + 4*(ks%DEPTH))
        c = lambda A: '0' if ks == 0 else vr(A, 16)
        sd = side[ks]; t3 = (len(sd) + 2) // 3
        k(f'{MF} {vr(AQ,16)}, {vr(b)}, {x}, {c(AQ)}')
        for f in sd[:t3]: f()
        k(f'{MF} {vr(AK,16)}, {vr(b+4)}, {x}, {c(AK)}')
        for f in sd[t3:2*t3]: f()
        k(f'{MF} {vr(AV,16)}, {x}, {vr(b+8)}, {c(AV)}')
        if nxt < 28:
            if nxt % 4 and ks == 0: k(f's_add_u32 s21, s26, {(nxt//4)*4096}')
            xload(nxt); nxt += 1
        for f in sd[2*t3:]: f()
    stamp(k, 'q.mfma')
    k.nop(14)
    k.lg = []; k.vm = []
    for r in range(16): k(f'v_fma_f32 v{AK+r}, v{RS}, v{AK+r}, v{CK+r}')
    for r in range(16):
        g, i = r >> 2, r & 3
        k(f'v_fma_f32 v{AV+r}, v{VR+8*g+2*i}, v{AV+r}, v{VR+8*g+2*i+1}')
    for i in range(8): k(f'v_cvt_pk_bf16_f32 v{32+i}, v{AV+2*i}, v{AV+2*i+1}')
    for r in range(0, 16, 2):
        k(f'v_fmac_f32 v13, v{AK+r}, v{AK+r}'); k(f'v_fmac_f32 v11, v{AK+r+1}, v{AK+r+1}')
        if r == 2:
            for i in range(2, 4): k(f'buffer_store_dwordx4 {vr(24+4*i)}, v5, s[4:7], s31 offen offset:{1024*i} sc1')
    k('s_mov_b32 exec_lo, 0')
    k(f'v_mov_b32 v{AK+12}, 1.0'); k(f'v_mov_b32 v{AK+13}, 1.0')
    k('s_mov_b32 exec_lo, -1')
    for i in range(8): k(f'v_cvt_pk_bf16_f32 v{24+i}, v{AK+2*i}, v{AK+2*i+1}')
    for r in range(16):
        k(f'v_fma_f32 v{AQ+r}, v14, v{AQ+r}, v{CQ+r}')
        if r == 2:
            for i in range(2): k(f'buffer_store_dwordx4 {vr(24+4*i)}, v5, s[4:7], s31 offen offset:{1024*i} sc1')
    for r in range(0, 16, 2):
        k(f'v_fmac_f32 v12, v{AQ+r}, v{AQ+r}'); k(f'v_fmac_f32 v10, v{AQ+r+1}, v{AQ+r+1}')
    k('v_add_f32 v12, v12, v10'); k('v_add_f32 v13, v13, v11')
    k('v_mov_b32 v10, v12'); k('v_mov_b32 v11, v13')
    for i in range(4): k(f'v_cvt_pk_bf16_f32 v{16+i}, v{AQ+2*i}, v{AQ+2*i+1}')
    k('v_permlane32_swap_b32 v12, v10'); k('v_permlane32_swap_b32 v13, v11')
    k('buffer_store_dwordx4 v[16:19], v5, s[4:7], s30 offen sc1')
    k.nop(1)
    k('v_add_f32 v12, v12, v10'); k('v_add_f32 v13, v13, v11')
    k('v_sqrt_f32 v12, v12')
    for i in range(4, 7): k(f'v_cvt_pk_bf16_f32 v{16+i}, v{AQ+2*i}, v{AQ+2*i+1}')
    k('s_mov_b32 exec_lo, 0')
    k(f'v_mov_b32 v{AQ+14}, v12')
    k('s_mov_b32 exec_lo, -1')
    k(f'v_cvt_pk_bf16_f32 v23, v{AQ+14}, v{AQ+15}')
    k.nop(1)
    k(f'buffer_store_dwordx4 v[20:23], v5, s[4:7], s30 offen offset:1024 sc1')
    wave_max(k, 13)
    k('s_mov_b32 exec_lo, 0'); k('s_mov_b32 exec_hi, 0x80000000')
    k('buffer_store_dword v13, off, s[4:7], s32 sc1')
    k('s_mov_b32 exec_lo, -1'); k('s_mov_b32 exec_hi, -1')
    if W1E == 1:
        for ks in range(20): w1pf(k, ks)
        k('s_waitcnt vmcnt(20)')
    k(f's_branch {Lend}')
    k.label(Lhi)
    k.label(Lend)
    k.lg = []
    k('s_lshl_b32 s24, s23, 7'); k('s_lshl_b32 s25, s22, 2'); k('s_add_u32 s24, s24, s25'); k('s_add_u32 s24, s24, s16')
    stamp(k, 'q.epi')
    publish(k, 24, skip_hi=True, nowait=(W1E == 1))
    if WOL:
        k.vm = []
        return
    Lwo = k.new_label('qw')
    k('s_cmp_lt_u32 s3, 4'); k(f's_cbranch_scc1 {Lwo}')
    k('s_lshl_b32 s52, s51, 16'); k('s_sub_u32 s53, s3, 4'); k('s_lshl_b32 s53, s53, 10'); k('s_add_u32 s52, s52, s53')
    k(f's_add_u32 s52, s52, 0x{WO:x}'); k(f's_add_u32 s53, s53, {LWO}')
    for n in range(16):
        k(f's_add_u32 m0, s53, {4096*n}'); k(f's_add_u32 s55, s52, {4096*n}')
        k('buffer_load_dwordx4 v5, s[4:7], s55 offen lds')
    if W1E == 1:
        for ks in range(20): w1pf(k, ks)
    k.label(Lwo)
    if W1E == 2:
        Lw1 = k.new_label('qw')
        k('s_cmp_eq_u32 s3, 0'); k(f's_cbranch_scc1 {Lw1}')
        for ks in range(W1N): w1pf(k, ks)
        k.label(Lw1)
    k.vm = []


def attn(k):
    Q, KV, S, P, O, C = 16, 32, 96, 128, 144, 14
    D = 4
    k('s_and_b32 s20, s13, 1'); k('s_lshl_b32 s22, s12, 1'); k('s_add_u32 s22, s22, s20')
    k('s_lshr_b32 s21, s13, 1')
    k('s_lshl_b32 s24, s22, 7'); k('s_add_u32 s24, s24, s16')
    poll(k, 24, 16, 32)
    stamp(k, 'a.sync')
    k('s_and_b32 s23, s3, 1'); k('s_lshr_b32 s24, s3, 1')
    k('s_lshl_b32 s25, s21, 2'); k('s_lshl_b32 s26, s23, 1'); k('s_add_u32 s25, s25, s26')
    k('s_lshl_b32 s27, s22, 6')
    k('s_add_u32 s28, s27, s25'); k('s_lshl_b32 s28, s28, 11'); k('s_add_u32 s28, s28, s14'); k(f's_add_u32 s28, s28, 0x{QF:x}')
    k('s_lshl_b32 s29, s24, 4'); k('s_add_u32 s29, s29, s27'); k('s_lshl_b32 s29, s29, 12')
    k('s_add_u32 s29, s29, s47'); k(f's_add_u32 s29, s29, 0x{KVF:x}')
    k('s_lshl_b32 s30, s27, 2'); k('s_lshr_b32 s33, s47, 10'); k('s_add_u32 s30, s30, s33'); k(f's_add_u32 s30, s30, 0x{KN:x}')
    k('v_lshlrev_b32 v0, 2, v1')
    if FAST:
        k('s_lshl_b32 s18, s12, 7'); k(f's_add_u32 s18, s18, {FL + XT}'); k('v_lshlrev_b32 v8, 2, v4')
        k.vmem('buffer_load_dword v12, v8, s[4:7], s18 offen sc1', 'kn')
    k.vmem('buffer_load_dword v11, v0, s[4:7], s30 offen sc1', 'kn')
    for i in range(4): k.vmem(f'buffer_load_dwordx4 {vr(Q+4*i)}, v5, s[4:7], s28 offen offset:{1024*i} sc1', 'q')
    k('v_mov_b32 v8, 0'); k(f'v_mov_b32 v9, {LFLAG}'); k('ds_write_b32 v9, v8')
    k('s_mov_b32 s40, 0')
    def kvload(kb, part=(0, 1, 2, 3)):
        b = KV + 16 * (kb % D)
        k(f's_add_u32 s31, s29, {kb*4096}')
        for i in part:
            k.vmem(f'buffer_load_dwordx4 {vr(b+4*i)}, v5, s[4:7], s31 offen offset:{1024*i}', f'k{kb}' if i < 2 else f'v{kb}')
    if os.environ.get('AORD', '1') == '1':
        kvload(0, (0, 1))
        k('s_barrier')
        kvload(0, (2, 3))
        for kb in range(1, D): kvload(kb)
    else:
        for kb in range(D): kvload(kb)
    k.vm_wait('kn')
    if FAST:
        k('v_cmp_ne_u32 vcc, s46, v12'); k('s_nop 1')
        k('s_or_b32 s18, vcc_lo, vcc_hi'); k('s_cmp_eq_u32 s18, 0'); k('s_cselect_b32 s17, 1, 0')
        k('s_and_b32 s48, s17, s15')
        if os.environ.get('DELAYTEST'):
            L2 = k.new_label('dl'); L3 = k.new_label('dl')
            k('s_cmp_lg_u32 s17, 0'); k(f's_cbranch_scc1 {L3}')
            k('s_mov_b32 s18, 0')
            k.label(L2)
            k('s_sleep 8'); k('s_add_u32 s18, s18, 1'); k('s_cmp_lt_u32 s18, 40'); k(f's_cbranch_scc1 {L2}')
            k.label(L3)
    wave_max(k, 11); k.nop(1)
    k('v_readlane_b32 s32, v11, 63'); k.nop(2)
    k('v_sqrt_f32 v11, s32'); k.nop(1)
    k(f'v_mul_f32 v11, {fl(1.0+1/64)}, v11')
    k.vm_wait('q')
    def set_shift(q, cv):
        d = Q + 8*q + 4 + 2
        k(f'v_cvt_pk_bf16_f32 v8, v{cv}, v{cv}'); k('v_and_b32 v8, 0xffff0000, v8')
        k(f'v_sub_f32 v9, v{cv}, v8'); k(f'v_cvt_pk_bf16_f32 v10, v9, v9'); k('v_and_b32 v10, 0xffff0000, v10')
        k(f'v_add_f32 v{cv}, v8, v10'); k('v_cvt_pk_bf16_f32 v9, -v8, -v10')
        k('s_mov_b32 exec_lo, 0'); k(f'v_mov_b32 v{d}, v9'); k('s_mov_b32 exec_lo, -1')
    for q in range(2):
        k(f'v_lshlrev_b32 v{C+q}, 16, v{Q+8*q+4+3}'); k(f'v_mul_f32 v{C+q}, v{C+q}, v11')
        set_shift(q, C+q)
    MAIN = k.new_label('main'); FIN = k.new_label('fin')
    k.label(MAIN)
    NT = 32
    def smf(n, which):
        kb, q = n >> 1, n & 1
        b = KV + 16*(kb % D); s = S + 16*(n % 2)
        if which == 0: return f'{MF} {vr(s,16)}, {vr(b)}, {vr(Q+8*q)}, 0'
        return f'{MF} {vr(s,16)}, {vr(b+4)}, {vr(Q+8*q+4)}, {vr(s,16)}'
    def pmf(n, which):
        kb, q = n >> 1, n & 1
        b = KV + 16*(kb % D) + 8; p = P + 8*(n % 2); o = O + 16*q
        c = '0' if (n < 2 and which == 0) else vr(o, 16)
        return f'{MF} {vr(o,16)}, {vr(b+4*which)}, {vr(p+4*which)}, {c}'
    k.vm_wait('k0')
    stamp(k, 'a.k0')
    k.nop(2); k(smf(0, 0)); k(smf(0, 1)); k.nop(16)
    PRIO = os.environ.get('APRIO', '1') == '1'
    for n in range(NT + 1):
        PS = [int(x) for x in os.environ.get('PSCHED', '0,8,16,24').split(',')]
        if PRIO and n in PS: k(f's_setprio {3 - PS.index(n)}')
        valu = []
        if n < NT:
            s = S + 16*(n % 2); p = P + 8*(n % 2)
            valu = [f'v_exp_f32 v{s+r}, v{s+r}' for r in range(16)]
            valu += [f'v_cvt_pk_bf16_f32 v{p+i}, v{s+2*i}, v{s+2*i+1}' for i in range(8)]
        mf = []
        if n + 1 < NT:
            if (n + 1) % 2 == 0: k.vm_wait(f'k{(n+1)>>1}')
            mf += [smf(n+1, 0), smf(n+1, 1)]
        if n >= 1:
            k.vm_wait(f'v{(n-1)>>1}')
            mf += [pmf(n-1, 0), pmf(n-1, 1)]
        if n == NT: k.nop(2)
        pos = [0, 6, 12, 18] if len(mf) == 4 else ([0, 6] if n == 0 else [12, 18])
        mi = 0
        if not valu:
            for m in mf: k(m)
        else:
            for i, v in enumerate(valu):
                while mi < len(mf) and pos[mi] == i:
                    k(mf[mi]); mi += 1
                k(v)
        if n >= 1 and (n - 1) % 2 == 1:
            kbn = ((n - 1) >> 1) + D
            if kbn < 16: kvload(kbn)
        if WOL and WOL <= n < WOL + 8:
            j = n - WOL
            if j == 0:
                k('s_lshl_b32 s52, s51, 16'); k('s_lshl_b32 s53, s3, 10'); k('s_add_u32 s52, s52, s53')
                k(f's_add_u32 s52, s52, 0x{WO:x}'); k(f's_add_u32 s53, s53, {LWO}')
            k(f's_add_u32 m0, s53, {8192*j}'); k(f's_add_u32 s55, s52, {8192*j}')
            k.vmem('buffer_load_dwordx4 v5, s[4:7], s55 offen lds', 'wo')
        if 2 <= n < 22 and (not W1E or (W1E == 2 and n - 2 >= W1N)): w1pf(k, n - 2)
        elif 2 <= n < 22 and W1E == 2:
            Lp = k.new_label('pf'); sv = list(k.vm)
            k('s_cmp_lg_u32 s3, 0'); k(f's_cbranch_scc1 {Lp}'); w1pf(k, n - 2); k.label(Lp); k.vm = sv
    for ks in range(20, 28): w1pf(k, ks)
    k.nop(8)
    stamp(k, 'a.main')
    k('s_lshl_b32 s33, s3, 13'); k('v_add_u32 v8, s33, v5')
    for q in range(2):
        for i in range(4): k(f'ds_write_b128 v8, {vr(O+16*q+4*i)} offset:{q*4096+i*1024}')
    k('s_waitcnt lgkmcnt(0)'); k('s_barrier')
    k('s_lshr_b32 s34, s24, 1'); k('s_and_b32 s35, s24, 1')
    k('s_lshl_b32 s36, s23, 13'); k('s_lshl_b32 s37, s34, 12'); k('s_add_u32 s36, s36, s37')
    k('s_lshl_b32 s37, s35, 11'); k('s_add_u32 s37, s37, s36')
    k('v_add_u32 v8, s37, v5')
    k('v_lshlrev_b32 v9, 4, v4'); k(f'v_add_u32 v9, {3*1024 + 32*16}, v9'); k('v_add_u32 v9, s36, v9')
    for j in range(4):
        k(f'ds_read_b128 {vr(32+8*j)}, v8 offset:{j*16384}')
        k(f'ds_read_b128 {vr(36+8*j)}, v8 offset:{j*16384+1024}')
        k(f'ds_read_b32 v{64+j}, v9 offset:{j*16384}')
    k('s_waitcnt lgkmcnt(0)')
    for j in range(1, 4):
        for r in range(8): k(f'v_add_f32 v{32+r}, v{32+r}, v{32+8*j+r}')
        k(f'v_add_f32 v64, v64, v{64+j}')
    k('v_rcp_f32 v65, v64')
    k(f'v_mov_b32 v66, {fl(2.0**-80)}'); k('v_cmp_nge_f32 vcc, v64, v66')
    k(f'v_mov_b32 v66, {fl(2.0**100)}'); k('v_cmp_nle_f32 s[38:39], v64, v66')
    for r in range(8): k(f'v_mul_f32 v{32+r}, v{32+r}, v65')
    for i in range(4): k(f'v_cvt_pk_bf16_f32 v{40+i}, v{32+2*i}, v{32+2*i+1}')
    k('s_add_u32 s41, s25, s34'); k('s_lshl_b32 s41, s41, 5'); k('s_lshl_b32 s42, s22, 1')
    k('s_add_u32 s41, s41, s42'); k('s_add_u32 s41, s41, s35'); k('s_lshl_b32 s41, s41, 10')
    k('s_add_u32 s41, s41, s14'); k(f's_add_u32 s41, s41, 0x{OF:x}')
    k('buffer_store_dwordx4 v[40:43], v5, s[4:7], s41 offen sc1')
    k('s_or_b64 vcc, vcc, s[38:39]')
    Lok = k.new_label('ok')
    k(f's_cbranch_vccz {Lok}')
    k('v_mov_b32 v8, 1'); k(f'v_mov_b32 v9, {LFLAG}'); k('ds_write_b32 v9, v8')
    k.label(Lok)
    stamp(k, 'a.st')
    k('s_waitcnt vmcnt(0) lgkmcnt(0)'); k.vm = []
    stamp(k, 'a.drain')
    k('s_barrier')
    k(f'v_mov_b32 v9, {LFLAG}'); k('ds_read_b32 v8, v9'); k('s_waitcnt lgkmcnt(0)'); k('s_nop 0')
    k('v_readfirstlane_b32 s43, v8')
    k('s_cmp_eq_u32 s43, 0'); k(f's_cbranch_scc1 {FIN}')
    k('s_cmp_lg_u32 s40, 0'); k(f's_cbranch_scc1 {FIN}')
    k('s_mov_b32 s40, 1')
    k(f'v_mov_b32 v66, 0xff800000'); k(f'v_mov_b32 v67, 0xff800000')
    k('s_mov_b32 s44, 0')
    LP = k.new_label('mx'); k.label(LP)
    k('s_lshl_b32 s45, s44, 12'); k('s_add_u32 s45, s45, s29')
    k(f'buffer_load_dwordx4 {vr(KV)}, v5, s[4:7], s45 offen')
    k(f'buffer_load_dwordx4 {vr(KV+4)}, v5, s[4:7], s45 offen offset:1024')
    k('s_waitcnt vmcnt(0)')
    for q in range(2):
        s = 64 + 0 if False else 48 + 0
    for q in range(2):
        s = 128 + 16*q
        k(f'{MF} {vr(s,16)}, {vr(KV)}, {vr(Q+8*q)}, 0'); k(f'{MF} {vr(s,16)}, {vr(KV+4)}, {vr(Q+8*q+4)}, {vr(s,16)}')
    k.nop(20)
    for q in range(2):
        s = 128 + 16*q
        for r in range(0, 16, 2): k(f'v_max3_f32 v{66+q}, v{66+q}, v{s+r}, v{s+r+1}')
    k('s_add_u32 s44, s44, 1'); k('s_cmp_lt_u32 s44, 16'); k(f's_cbranch_scc1 {LP}')
    for q in range(2):
        k(f'v_mov_b32 v68, v{66+q}'); k.nop(2)
        k(f'v_permlane32_swap_b32 v{66+q}, v68'); k.nop(1)
        k(f'v_max_f32 v{66+q}, v{66+q}, v68')
    k('s_lshl_b32 s45, s3, 8'); k(f's_add_u32 s45, s45, {LM}')
    k('v_lshlrev_b32 v8, 2, v4'); k('v_add_u32 v9, s45, v8')
    k('ds_write_b32 v9, v66'); k('ds_write_b32 v9, v67 offset:128')
    k('s_waitcnt lgkmcnt(0)'); k('s_barrier')
    k('s_lshl_b32 s45, s23, 8'); k(f's_add_u32 s45, s45, {LM}'); k('v_add_u32 v9, s45, v8')
    for j in range(4):
        k(f'ds_read_b32 v{32+2*j}, v9 offset:{j*512}'); k(f'ds_read_b32 v{33+2*j}, v9 offset:{j*512+128}')
    k(f'v_mov_b32 v8, 0'); k(f'v_mov_b32 v10, {LFLAG}'); k('ds_write_b32 v10, v8')
    k('s_waitcnt lgkmcnt(0)')
    for q in range(2):
        k(f'v_max3_f32 v{32+q}, v{32+q}, v{34+q}, v{36+q}'); k(f'v_max_f32 v{32+q}, v{32+q}, v{38+q}')
        k(f'v_add_f32 v{C+q}, v{C+q}, v{32+q}')
        set_shift(q, C+q)
    k('s_barrier')
    k.vm = []
    for kb in range(D): kvload(kb)
    k(f's_branch {MAIN}')
    k.label(FIN)
    k.vm = []; k.lg = []
    k('s_setprio 0')
    k('s_lshl_b32 s24, s21, 7'); k('s_lshl_b32 s25, s22, 2'); k('s_add_u32 s24, s24, s25'); k('s_add_u32 s24, s24, s16')
    k(f's_add_u32 s24, s24, {FA}')
    Ld = k.new_label('pb')
    k('s_cmp_lg_u32 s3, 0'); k(f's_cbranch_scc1 {Ld}')
    k('s_mov_b32 exec_lo, 1'); k('s_mov_b32 exec_hi, 0'); k('v_mov_b32 v9, 1')
    k(f'buffer_store_dword v9, off, s[4:7], s24 sc1')
    k('s_mov_b32 exec_lo, -1'); k('s_mov_b32 exec_hi, -1')
    k.label(Ld)
    stamp(k, 'a.end')
```

```python
from g2b import *

def wave_roles(k):
    k('s_and_b32 s56, s3, 3'); k('s_lshr_b32 s57, s3, 2')
    k('s_lshl_b32 s58, s50, 1'); k('s_add_u32 s58, s58, s57')
    k('s_lshl_b32 s59, s51, 2'); k('s_add_u32 s59, s59, s56')

def reduce_fin(k, acc, tmp, res, xdst, stdst, final_ok, pre=None, cold0=False, nobar=False, reswait=False):
    k.nop(16)
    if not nobar: k('s_barrier')
    if pre: pre()
    OWN = os.environ.get('OWN', '1') == '1'
    if OWN:
        k('s_lshl_b32 s60, s57, 15'); k('v_add_u32 v8, s60, v5')
        Lq = [k.new_label('ro') for _ in range(4)]; Lj = k.new_label('ro')
        for q in range(1, 4): k(f's_cmp_eq_u32 s56, {q}'); k(f's_cbranch_scc1 {Lq[q]}')
        for q in range(4):
            k.label(Lq[q])
            for j in range(4):
                if j == q: continue
                p = (q - j - 1) % 4
                k(f'ds_write_b128 v8, {vr(acc+8*j)} offset:{j*8192+p*2048}')
                k(f'ds_write_b128 v8, {vr(acc+8*j+4)} offset:{j*8192+p*2048+1024}')
            for r in range(8): k(f'v_mov_b32 v{tmp+24+r}, v{acc+8*q+r}')
            if q < 3: k(f's_branch {Lj}')
        k.label(Lj)
    else:
        k('s_lshl_b32 s60, s57, 15'); k('s_lshl_b32 s61, s56, 11'); k('s_add_u32 s61, s61, s60'); k('v_add_u32 v8, s61, v5')
        for j in range(4):
            k(f'ds_write_b128 v8, {vr(acc+8*j)} offset:{j*8192}')
            k(f'ds_write_b128 v8, {vr(acc+8*j+4)} offset:{j*8192+1024}')
    k('s_lshl_b32 s61, s56, 13'); k('s_add_u32 s61, s61, s60'); k('v_add_u32 v9, s61, v5')
    k('s_mul_i32 s62, s58, 28'); k('s_add_u32 s62, s62, s59'); k('s_lshl_b32 s62, s62, 10'); k('s_add_u32 s62, s62, s14')
    k(f's_add_u32 s62, s62, 0x{xdst:x}')
    k('s_lshr_b32 s63, s59, 1'); k('s_mul_i32 s60, s58, 14'); k('s_add_u32 s63, s63, s60'); k('s_lshl_b32 s63, s63, 9')
    k('s_and_b32 s60, s59, 1'); k('s_lshl_b32 s60, s60, 3'); k('s_add_u32 s63, s63, s60'); k('s_add_u32 s63, s63, s14')
    k(f's_add_u32 s63, s63, 0x{stdst:x}')
    k('s_waitcnt lgkmcnt(0)'); k('s_barrier')
    stamp(k, 'red.w')
    for s in range(3 if OWN else 4):
        k(f'ds_read_b128 {vr(tmp+8*s)}, v9 offset:{s*2048}'); k(f'ds_read_b128 {vr(tmp+8*s+4)}, v9 offset:{s*2048+1024}')
    if reswait:
        Lr, Lr2 = k.new_label('rw'), k.new_label('rw')
        k('s_cmp_eq_u32 s3, 0'); k(f's_cbranch_scc1 {Lr}')
        k('s_waitcnt vmcnt(0)'); k(f's_branch {Lr2}')
        k.label(Lr); k('s_waitcnt vmcnt(12)'); k.label(Lr2); k.vm = []
    for i in range(4):
        k(f'v_lshlrev_b32 v{acc+2*i}, 16, v{res+i}'); k(f'v_and_b32 v{acc+2*i+1}, 0xffff0000, v{res+i}')
    for s in ([3, 0, 1, 2] if OWN else range(4)):
        if OWN:
            if s < 3: k(f's_waitcnt lgkmcnt({4-2*s})')
        else: k(f's_waitcnt lgkmcnt({6-2*s})')
        for r in range(8): k(f'v_add_f32 v{acc+r}, v{acc+r}, v{tmp+8*s+r}')
    k.lg = []
    for i in range(4): k(f'v_cvt_pk_bf16_f32 v{tmp+i}, v{acc+2*i}, v{acc+2*i+1}')
    Lf, Le = k.new_label('rf'), k.new_label('re')
    if final_ok:
        k('s_cmp_lg_u32 s15, 0'); k(f's_cbranch_scc1 {Lf}')
    hstore(k, [f'buffer_store_dwordx4 {vr(tmp)}, v5, s[4:7], s62 offen'], cold0=cold0)
    k(f'v_add_f32 v8, v{acc}, v{acc+1}'); k(f'v_mul_f32 v9, v{acc}, v{acc}'); k(f'v_fmac_f32 v9, v{acc+1}, v{acc+1}')
    k(f'v_add_f32 v10, v{acc+2}, v{acc+3}'); k(f'v_mul_f32 v11, v{acc+2}, v{acc+2}'); k(f'v_fmac_f32 v11, v{acc+3}, v{acc+3}')
    for r in range(4, 8, 2):
        k(f'v_add_f32 v8, v8, v{acc+r}'); k(f'v_fmac_f32 v9, v{acc+r}, v{acc+r}')
        k(f'v_add_f32 v10, v10, v{acc+r+1}'); k(f'v_fmac_f32 v11, v{acc+r+1}, v{acc+r+1}')
    k('v_add_f32 v8, v8, v10'); k('v_add_f32 v9, v9, v11')
    half_sum(k, 8, 10); half_sum(k, 9, 10)
    k('v_lshlrev_b32 v10, 4, v4')
    k('s_mov_b32 exec_hi, 0')
    hstore(k, ['buffer_store_dwordx2 v[8:9], v10, s[4:7], s63 offen'], cold0=cold0)
    k('s_mov_b32 exec_hi, -1')
    if final_ok:
        k(f's_branch {Le}')
        k.label(Lf)
        k.nop(2)
        k(f'v_permlane32_swap_b32 v{tmp}, v{tmp+2}'); k(f'v_permlane32_swap_b32 v{tmp+1}, v{tmp+3}')
        k('v_mul_u32_u24 v10, 896, v4'); k('v_lshl_add_u32 v10, v3, 4, v10')
        k(f's_mul_i32 s62, s58, {32*896}'); k('s_lshl_b32 s63, s59, 5'); k('s_add_u32 s62, s62, s63')
        k(f'buffer_store_dwordx4 {vr(tmp)}, v10, s[8:11], s62 offen')
        k.label(Le)

def res_load(k, res, xsrc):
    k('s_mul_i32 s60, s58, 28'); k('s_add_u32 s60, s60, s59'); k('s_lshl_b32 s60, s60, 10'); k('s_add_u32 s60, s60, s14')
    k(f's_add_u32 s60, s60, 0x{xsrc:x}')
    k.vmem(f'buffer_load_dwordx4 {vr(res)}, v5, s[4:7], s60 offen sc1', 'res')

WONB = os.environ.get('WONB', '1') == '1'
def w2early(k):
    w2src(k, 30); k(f's_add_u32 s31, s30, {112*1024}')
    for i in range(6):
        for n in range(2):
            if i % 4 == 0: k(f's_add_u32 s{36+n}, s{30+n}, {(i//4)*4096}')
            k.vmem(f'buffer_load_dwordx4 {vr(w2reg(i,n))}, v5, s[4:7], s{36+n} offen offset:{(i%4)*1024}', 'pf')
def wo(k):
    OFR, WB, ACC, RES = 16, 48, 64, 48
    wave_roles(k)
    L0 = k.new_label('w0')
    k('s_cmp_eq_u32 s3, 0'); k(f's_cbranch_scc1 {L0}')
    w2early(k); k.vm = []
    k.label(L0)
    k('s_lshr_b32 s24, s50, 1'); k('s_lshl_b32 s24, s24, 7'); k('s_add_u32 s24, s24, s16'); k(f's_add_u32 s24, s24, {FA}')
    k('s_lshl_b32 s25, s56, 13'); k(f's_add_u32 s25, s25, {LWO}'); k('v_add_u32 v12, s25, v5')
    def wread(i):
        for n in range(2): k.ds(f'ds_read_b128 {vr(WB+8*(i%2)+4*n)}, v12 offset:{n*32768+i*1024}', f'w{i}')
    for i in range(2): wread(i)
    k('s_lshl_b32 s26, s58, 5'); k('s_lshl_b32 s27, s56, 3'); k('s_add_u32 s26, s26, s27'); k('s_lshl_b32 s26, s26, 10')
    k('s_add_u32 s26, s26, s14'); k(f's_add_u32 s26, s26, 0x{OF:x}'); k('s_add_u32 s27, s26, 4096')
    poll(k, 24, 16, OFR)
    stamp(k, 'w.sync')
    for i in range(8):
        k.vmem(f'buffer_load_dwordx4 {vr(OFR+4*i)}, v5, s[4:7], s{26+i//4} offen offset:{(i%4)*1024} sc1', f'o{i}')
    for i in range(8):
        k.vm_wait(f'o{i}'); k.lg_wait(f'w{i}')
        for n in range(2):
            c = '0' if i == 0 else vr(ACC+16*n, 16)
            k(f'{MF} {vr(ACC+16*n,16)}, {vr(WB+8*(i%2)+4*n)}, {vr(OFR+4*i)}, {c}')
        if i + 2 < 8: wread(i + 2)
    res_load(k, RES, XIN)
    L1 = k.new_label('w1')
    k('s_cmp_lg_u32 s3, 0'); k(f's_cbranch_scc1 {L1}')
    sv = list(k.vm); w2early(k); k.vm = sv
    k.label(L1)
    stamp(k, 'w.mfma')
    reduce_fin(k, ACC, 16, RES, XMID, STM, False, cold0=True, nobar=WONB, reswait=True)
    k('s_lshl_b32 s24, s50, 7'); k('s_lshl_b32 s25, s51, 2'); k('s_add_u32 s24, s24, s25'); k('s_add_u32 s24, s24, s16')
    k(f's_add_u32 s24, s24, {FW}')
    stamp(k, 'w.st')
    publish(k, 24, local=True)

def w2src(k, sdst):
    k(f's_mul_i32 s{sdst}, s51, 224'); k(f's_mul_i32 s60, s56, 28'); k(f's_add_u32 s{sdst}, s{sdst}, s60')
    k(f's_lshl_b32 s{sdst}, s{sdst}, 10'); k(f's_add_u32 s{sdst}, s{sdst}, 0x{W2:x}')
def w2reg(i, n):
    if i < 6: return 128 + 8*i + 4*n
    assert 18 <= i < 22
    return 176 + 8*(i-18) + 4*n

F1PRIO = os.environ.get('F1PRIO', '1') == '1'
def ffn1(k):
    A0, A1, T, U, XB = 16, 32, 48, 64, 80
    k('s_lshl_b32 s24, s50, 7'); k('s_add_u32 s24, s24, s16'); k(f's_add_u32 s24, s24, {FW}')
    k('s_lshl_b32 s25, s51, 3'); k('s_add_u32 s25, s25, s3')
    k('s_lshl_b32 s26, s25, 8'); k(f's_add_u32 s26, s26, 0x{C1:x}')
    k('s_lshl_b32 s27, s3, 8'); k(f's_add_u32 m0, s27, {LC1}')
    k('s_mov_b32 exec_lo, 0xffff'); k('s_mov_b32 exec_hi, 0')
    k('buffer_load_dwordx4 v5, s[4:7], s26 offen lds')
    k('s_mov_b32 exec_lo, -1'); k('s_mov_b32 exec_hi, -1')
    k(f's_mul_i32 s28, s50, {56*1024}'); k('s_lshl_b32 s29, s3, 10'); k('s_add_u32 s28, s28, s29')
    k('s_add_u32 s28, s28, s14'); k(f's_add_u32 s28, s28, 0x{XMID:x}')
    w2src(k, 30); k(f's_add_u32 s31, s30, {112*1024}')
    k(f's_mul_i32 s32, s57, {112*1024}'); k('s_add_u32 s32, s32, s30')
    k('s_mul_i32 s33, s56, 24576'); k('s_lshl_b32 s34, s57, 10'); k('s_add_u32 s33, s33, s34'); k(f's_add_u32 s33, s33, {LE}')
    k('s_mul_i32 s35, s56, 12288'); k('s_add_u32 s35, s35, s34')
    poll(k, 24, 7, 60)
    stamp(k, 'f1.sync')
    Ls = k.new_label('fs')
    k('s_cmp_ge_u32 s3, 2'); k(f's_cbranch_scc1 {Ls}')
    k('s_lshl_b32 s37, s50, 1'); k('s_add_u32 s37, s37, s3'); k(f's_mul_i32 s37, s37, {STB}'); k('s_add_u32 s37, s37, s14')
    k(f's_add_u32 s37, s37, 0x{STM:x}')
    sv = list(k.vm)
    stats_load(k, 37, 32, 0)
    k.label(Ls)
    k.vm = sv
    XS = [60, 64, 68, 72, 76, 80, 84]
    for i in range(7):
        k(f's_add_u32 s36, s28, {8192*i}')
        k.vmem(f'buffer_load_dwordx4 {vr(XS[i])}, v5, s[4:7], s36 offen sc1', f'xt{i}')
    k('v_add_u32 v15, s29, v5')
    def xt_write(lo, hi):
        for i in range(lo, hi):
            k.vm_wait(f'xt{i}')
            k.ds(f'ds_write_b128 v15, {vr(XS[i])} offset:{8192*i}', 'xw')
    def stats_fin():
        L = k.new_label('fs')
        k('s_cmp_ge_u32 s3, 2'); k(f's_cbranch_scc1 {L}')
        stats_finish(k, 32, 8, 9, 10)
        k(f'v_mul_f32 v8, {fl(LOG2E)}, v8')
        k('s_lshl_b32 s37, s3, 8'); k(f's_add_u32 s37, s37, {LST}'); k('v_lshlrev_b32 v10, 3, v4'); k('v_add_u32 v10, s37, v10')
        k('ds_write_b64 v10, v[8:9]')
        k.label(L)
    def pfe(j):
        if j < 12:
            i = 6 + j
            k(f's_add_u32 m0, s33, {2048*j}'); k(f's_add_u32 s36, s32, {1024*i}')
            k.vmem('buffer_load_dwordx4 v5, s[4:7], s36 offen lds', 'pf')
        elif j < 24:
            i, n = (j - 12) >> 1, (j - 12) & 1
            k(f's_add_u32 s36, s{30+n}, {(i//4)*4096}')
            k.vmem(f'buffer_load_dwordx4 {vr(w2reg(i,n))}, v5, s[4:7], s36 offen offset:{(i%4)*1024}', 'pf')
    def pfl(j):
        if j < 6:
            i = 22 + j
            k(f's_add_u32 m0, s35, {2048*j}'); k(f's_add_u32 s36, s32, {1024*i}')
            k.vmem('buffer_load_dwordx4 v5, s[4:7], s36 offen lds', 'pf')
        else:
            i, n = 18 + ((j - 6) >> 1), (j - 6) & 1
            k(f's_add_u32 s36, s{30+n}, {(i//4)*4096}')
            k.vmem(f'buffer_load_dwordx4 {vr(w2reg(i,n))}, v5, s[4:7], s36 offen offset:{(i%4)*1024}', 'pf')
    def xread(tb, ks): k.ds(ldsr(XB + 4*((tb*28+ks) % 4), (tb*28+ks)*1024), f'x{tb}_{ks}')
    def mish(A, tbl):
        rs, mr = 8 + 2*tbl, 9 + 2*tbl
        L = []
        for i in range(4): L.append(('ds', f'ds_read_b128 {vr(T+4*i)}, v14 offset:{16*i}', 'cs'))
        for i in range(4): L.append(('ds', f'ds_read_b128 {vr(U+4*i)}, v14 offset:{128+16*i}', 'cs'))
        L.append(('lw', 'cs'))
        V = lambda s: L.append(('v', s))
        for r in range(16): V(f'v_fma_f32 v{T+r}, v{mr}, v{T+r}, v{U+r}')
        for r in range(16): V(f'v_fma_f32 v{A+r}, v{rs}, v{A+r}, v{T+r}')
        for r in range(16): V(f'v_exp_f32 v{T+r}, v{A+r}')
        for r in range(16): V(f'v_add_f32 v{T+r}, 1.0, v{T+r}')
        for r in range(16): V(f'v_fma_f32 v{T+r}, v{T+r}, v{T+r}, 1.0')
        for r in range(16): V(f'v_rcp_f32 v{T+r}, v{T+r}')
        for r in range(16): V(f'v_fma_f32 v{T+r}, v{T+r}, v12, v13')
        for r in range(16): V(f'v_mul_f32 v{A+r}, v{A+r}, v{T+r}')
        for i in range(8): V(f'v_cvt_pk_bf16_f32 v{U+i}, v{A+2*i}, v{A+2*i+1}')
        L.append(('st', [f'buffer_store_dwordx4 {vr(U)}, v5, s[4:7], s{38+tbl} offen',
                         f'buffer_store_dwordx4 {vr(U+4)}, v5, s[4:7], s{38+tbl} offen offset:1024']))
        return L
    def emit(it):
        if it[0] == 'ds': k.ds(it[1], it[2])
        elif it[0] == 'lw': k.lg_wait(it[1])
        elif it[0] == 'st': hstore(k, it[1], 'st', cold0=True)
        else: k(it[1])
    k('s_mul_i32 s38, s50, 224'); k('s_lshl_b32 s39, s25, 1'); k('s_add_u32 s38, s38, s39'); k('s_lshl_b32 s38, s38, 10')
    k('s_add_u32 s38, s38, s14'); k(f's_add_u32 s38, s38, 0x{ACT:x}'); k(f's_add_u32 s39, s38, {112*1024}')
    k(f'v_mov_b32 v12, {fl(-2*LN2)}'); k(f'v_mov_b32 v13, {fl(LN2)}')
    k('v_lshlrev_b32 v14, 6, v3'); k(f'v_add_u32 v14, {LC1}, v14'); k('v_add_u32 v14, s27, v14')
    Lq = k.new_label('fq')
    k('s_cmp_ge_u32 s3, 2'); k(f's_cbranch_scc1 {Lq}')
    k('s_waitcnt vmcnt(7)')
    k.label(Lq)
    stats_fin()
    xt_write(0, 7); k.lg_wait(); k('s_barrier')
    stamp(k, 'f1.x')
    LB, LJ = k.new_label('fb'), k.new_label('fj')
    def stats_read():
        k('v_lshlrev_b32 v15, 3, v4'); k(f'v_add_u32 v15, {LST}, v15')
        k.ds('ds_read_b64 v[8:9], v15', 's'); k.ds('ds_read_b64 v[10:11], v15 offset:256', 's')
    def edma(j, n):
        k(f's_add_u32 m0, s33, {2048*j + 1024*n}'); k(f's_add_u32 s36, s{30+n}, {1024*(6+j)}')
        k.vmem('buffer_load_dwordx4 v5, s[4:7], s36 offen lds', 'pf')
    def chain(tb, extra):
        A = A0 if tb == 0 else A1
        M = mish(A, tb)
        if F1PRIO: k('s_setprio 1')
        for ks in range(28):
            if ks + 3 < 28: xread(tb, ks + 3)
            k.lg_wait(f'x{tb}_{ks}')
            k(f'{MF} {vr(A,16)}, {vr(w1reg(ks))}, {vr(XB+4*((tb*28+ks)%4))}, {"0" if ks == 0 else vr(A,16)}')
            if ks == 10 and tb == 0: stats_read()
            if 16 <= ks < 24: emit(M[ks - 16])
            if ks in extra: extra[ks]()
        if F1PRIO: k('s_setprio 0')
        return M[8:]
    def body(isA):
        late = {9 + 2*j: (lambda j=j: pfl(6 + j)) for j in range(8)}
        for ks in range(3): xread(0, ks)
        if not isA: k('s_barrier')
        M = chain(0, {} if isA else {2 + 4*j: (lambda j=j: edma(6 + j//2, j % 2)) for j in range(6)})
        if isA: k('s_barrier')
        stamp(k, '*f1.c0')
        for ks in range(3): xread(1, ks)
        k.nop(4)
        for it in M: emit(it)
        stamp(k, '*f1.m0')
        ex = dict(late)
        if isA: ex.update({j: (lambda j=j: edma(9 + j//2, j % 2)) for j in range(6)})
        M = chain(1, ex)
        stamp(k, '*f1.c1')
        if isA:
            k.nop(8)
            for it in M: emit(it)
            stamp(k, '*f1.m1')
            k('s_barrier')
            for j in range(6):
                for n in range(2):
                    k(f's_add_u32 m0, s35, {2048*j + 1024*n}'); k(f's_add_u32 s36, s{30+n}, {1024*(22+j)}')
                    k.vmem('buffer_load_dwordx4 v5, s[4:7], s36 offen lds', 'pf')
        else:
            k('s_barrier')
            stamp(k, '*f1.m1')
            k.nop(8)
            for it in M: emit(it)
    k('s_sub_u32 s33, s33, s34')
    k('s_cmp_ge_u32 s3, 4'); k(f's_cbranch_scc1 {LB}')
    sv, svl = list(k.vm), list(k.lg)
    body(True)
    k(f's_branch {LJ}')
    k.label(LB)
    k.vm, k.lg = sv, svl
    for j in range(6):
        for n in range(2): edma(j, n)
    body(False)
    k.label(LJ)
    if F1PRIO: k('s_setprio 0')
    stamp(k, 'f1.mish')
    k('s_lshl_b32 s24, s50, 7'); k('s_lshl_b32 s25, s51, 2'); k('s_add_u32 s24, s24, s25'); k('s_add_u32 s24, s24, s16')
    k(f's_add_u32 s24, s24, {F1}')
    publish(k, 24, local=True)

def ffn2(k):
    ACC, WB, RES, RD = 16, 48, 80, 20
    ring = lambda p: (96 + 4*(p % RD)) if (p % RD) < 8 else (208 + 4*(p % RD - 8))
    k('s_lshl_b32 s24, s50, 7'); k('s_add_u32 s24, s24, s16'); k(f's_add_u32 s24, s24, {F1}')
    k('s_mul_i32 s25, s58, 112'); k('s_mul_i32 s26, s56, 28'); k('s_add_u32 s25, s25, s26'); k('s_lshl_b32 s25, s25, 10')
    k('s_add_u32 s25, s25, s14'); k(f's_add_u32 s25, s25, 0x{ACT:x}')
    k('s_mul_i32 s26, s56, 24576'); k(f's_add_u32 s26, s26, {LE}'); k('v_add_u32 v12, s26, v5')
    k('s_mul_i32 s26, s56, 12288'); k('v_add_u32 v13, s26, v5')
    res_load(k, RES, XMID)
    order = list(range(6, 18)) + list(range(22, 28)) + list(range(0, 6)) + list(range(18, 22))
    NL = 18
    ldsi = order[:NL]
    slot = {i: j % 4 for j, i in enumerate(ldsi)}
    def wread(i):
        for n in range(2):
            if i < 18: k.ds(f'ds_read_b128 {vr(WB+8*slot[i]+4*n)}, v12 offset:{(i-6)*2048+n*1024}', f'w{i}')
            else: k.ds(f'ds_read_b128 {vr(WB+8*slot[i]+4*n)}, v13 offset:{(i-22)*2048+n*1024}', f'w{i}')
    for i in ldsi[:4]: wread(i)
    poll(k, 24, 7, ring(0))
    stamp(k, 'f2.sync')
    PD = 14
    last = [None]
    def aload(p):
        i = order[p]
        if last[0] != i // 4: k(f's_add_u32 s27, s25, {(i//4)*4096}'); last[0] = i // 4
        k.vmem(f'buffer_load_dwordx4 {vr(ring(p))}, v5, s[4:7], s27 offen offset:{(i%4)*1024} sc1', f'a{i}')
    for p in range(PD): aload(p)
    nl = [4]
    def step(p):
        i = order[p]
        k.vm_wait(f'a{i}')
        if i in slot: k.lg_wait(f'w{i}')
        for n in range(2):
            a = WB + 8*slot[i] + 4*n if i in slot else w2reg(i, n)
            k(f'{MF} {vr(ACC+16*n,16)}, {vr(a)}, {vr(ring(p))}, {"0" if p == 0 else vr(ACC+16*n,16)}')
        if i in slot and nl[0] < len(ldsi): wread(ldsi[nl[0]]); nl[0] += 1
        if p + PD < 28: aload(p + PD)
    for p in range(NL): step(p)
    assert NL - 1 + PD >= 27
    k('s_barrier')
    Lw, Lj = k.new_label('np'), k.new_label('np')
    k('s_cmp_lg_u32 s15, 0'); k(f's_cbranch_scc1 {Lw}')
    sv, svl = list(k.vm), list(k.lg)
    wq_prefetch(k, track=True)
    for p in range(NL, 28): step(p)
    k(f's_branch {Lj}')
    k.label(Lw)
    k.vm, k.lg = sv, svl
    for p in range(NL, 28): step(p)
    k.label(Lj)
    stamp(k, 'f2.mf')
    reduce_fin(k, ACC, 48, RES, XIN + LS, STI + LS, True, nobar=True)
    k('s_lshr_b32 s24, s50, 1'); k('s_lshl_b32 s24, s24, 7'); k('s_and_b32 s25, s50, 1'); k('s_mul_i32 s25, s25, 7')
    k('s_add_u32 s25, s25, s51'); k('s_lshl_b32 s25, s25, 2'); k('s_add_u32 s24, s24, s25'); k('s_add_u32 s24, s24, s16')
    k(f's_add_u32 s24, s24, {F2}')
    stamp(k, 'f2.st')
    publish(k, 24, local=True)

def xcc_check(k):
    L = k.new_label('xk')
    k('s_cmp_lg_u32 s15, 0'); k(f's_cbranch_scc1 {L}')
    k('s_lshl_b32 s18, s12, 7'); k(f's_add_u32 s18, s18, {FL + XT}')
    k('v_lshlrev_b32 v8, 2, v4')
    k('buffer_load_dword v9, v8, s[4:7], s18 offen sc1')
    k('s_waitcnt vmcnt(0)')
    k('v_cmp_ne_u32 vcc, s46, v9')
    k('s_nop 1')
    k('s_or_b32 s18, vcc_lo, vcc_hi')
    k('s_cmp_eq_u32 s18, 0'); k('s_cselect_b32 s17, 1, 0')
    if os.environ.get('DELAYTEST'):
        L2 = k.new_label('dl'); L3 = k.new_label('dl')
        k('s_cmp_lg_u32 s17, 0'); k(f's_cbranch_scc1 {L3}')
        k('s_mov_b32 s18, 0')
        k.label(L2)
        k('s_sleep 8'); k('s_add_u32 s18, s18, 1'); k('s_cmp_lt_u32 s18, 80'); k(f's_cbranch_scc1 {L2}')
        k.label(L3)
    k.label(L)

TOUCH = int(os.environ.get('TOUCH', '0'))
def touch_q(k):
    L = k.new_label('tq'); L5 = k.new_label('tq'); L6 = k.new_label('tq')
    k('s_cmp_lt_u32 s3, 4'); k(f's_cbranch_scc1 {L}')
    k('v_lshlrev_b32 v12, 7, v1')
    k('s_and_b32 s18, s13, 1'); k('s_lshl_b32 s19, s12, 1'); k('s_add_u32 s18, s18, s19'); k('s_lshl_b32 s18, s18, 2')
    k('s_lshr_b32 s19, s13, 1'); k('s_lshl_b32 s19, s19, 6'); k('s_add_u32 s18, s18, s19')
    k('s_lshl_b32 s19, s18, 12'); k('s_and_b32 s20, s3, 1'); k('s_lshl_b32 s20, s20, 13'); k('s_add_u32 s19, s19, s20')
    k('s_and_b32 s20, s3, 2'); k(f's_mul_i32 s20, s20, 0x{KVLS//2:x}'); k('s_add_u32 s19, s19, s20'); k(f's_add_u32 s19, s19, 0x{KVF:x}')
    k('buffer_load_dword v13, v12, s[4:7], s19 offen')
    k('s_cmp_lg_u32 s3, 4'); k(f's_cbranch_scc1 {L}')
    k('s_lshl_b32 s19, s18, 11'); k(f's_add_u32 s19, s19, 0x{QF:x}')
    k('buffer_load_dword v13, v12, s[4:7], s19 offen')
    k.label(L)
def touch_rest(k):
    L = k.new_label('tr'); L4 = k.new_label('tr'); L5 = k.new_label('tr')
    k('s_cmp_lt_u32 s3, 4'); k(f's_cbranch_scc1 {L}')
    k('s_cmp_lg_u32 s15, 0'); k(f's_cbranch_scc1 {L}')
    k('v_lshlrev_b32 v12, 7, v1')
    k('s_cmp_lg_u32 s3, 4'); k(f's_cbranch_scc1 {L4}')
    k('s_and_b32 s18, s13, 1'); k('s_lshl_b32 s19, s12, 1'); k('s_add_u32 s18, s18, s19'); k('s_lshl_b32 s18, s18, 11')
    k('s_lshr_b32 s19, s13, 1'); k('s_lshl_b32 s19, s19, 17'); k('s_add_u32 s18, s18, s19'); k(f's_add_u32 s18, s18, 0x{OF:x}')
    k('v_lshrrev_b32 v11, 4, v1'); k('v_lshlrev_b32 v11, 15, v11'); k('v_and_b32 v10, 15, v1'); k('v_lshl_add_u32 v11, v10, 7, v11')
    k('buffer_load_dword v13, v11, s[4:7], s18 offen')
    k.label(L4)
    k('s_cmp_ge_u32 s13, 28'); k(f's_cbranch_scc1 {L}')
    k('s_sub_u32 s18, s3, 4'); k('s_lshr_b32 s19, s18, 1'); k('s_and_b32 s18, s18, 1')
    k('s_lshl_b32 s20, s50, 1'); k('s_add_u32 s20, s20, s19'); k('s_mul_i32 s21, s20, 112'); k('s_lshl_b32 s19, s51, 4'); k('s_add_u32 s21, s21, s19')
    k('s_lshl_b32 s19, s18, 3'); k('s_add_u32 s21, s21, s19'); k('s_lshl_b32 s21, s21, 10'); k(f's_add_u32 s21, s21, 0x{ACT:x}')
    k('buffer_load_dword v13, v12, s[4:7], s21 offen')
    k('s_cmp_lg_u32 s18, 0'); k(f's_cbranch_scc1 {L5}')
    k('s_mul_i32 s21, s20, 28'); k('s_lshl_b32 s19, s51, 2'); k('s_add_u32 s21, s21, s19'); k('s_lshl_b32 s21, s21, 10'); k(f's_add_u32 s21, s21, 0x{XMID:x}')
    k('s_mov_b32 exec_hi, 0')
    k('buffer_load_dword v13, v12, s[4:7], s21 offen')
    k('s_mul_i32 s21, s20, 14'); k('s_lshl_b32 s19, s51, 1'); k('s_add_u32 s21, s21, s19'); k('s_lshl_b32 s21, s21, 9'); k(f's_add_u32 s21, s21, 0x{STM:x}')
    k('s_mov_b32 exec_lo, 0xff')
    k('buffer_load_dword v13, v12, s[4:7], s21 offen')
    k('s_mov_b32 exec_lo, -1'); k('s_mov_b32 exec_hi, -1')
    k(f's_branch {L}')
    k.label(L5)
    k('v_mul_u32_u24 v11, 896, v1')
    k(f's_mul_i32 s21, s20, {32*896}'); k('s_lshl_b32 s19, s51, 7'); k('s_add_u32 s21, s21, s19')
    k('s_mov_b32 exec_hi, 0')
    k('buffer_load_dword v13, v11, s[8:11], s21 offen')
    k('s_mov_b32 exec_hi, -1')
    k.label(L)

def gen_main():
    if TOUCH == 2: HOOKS['after_wo'] = touch_rest
    k = K('main_kernel', 512, 256, 163840, 256)
    prologue(k, [(72, 4, WS_BYTES), (56, 8, 2048*448*2)])
    k('v_lshrrev_b32 v3, 5, v1'); k('v_and_b32 v4, 31, v1'); k('v_lshlrev_b32 v5, 4, v1')
    k('v_add_u32 v6, 0x10000, v5'); k('v_add_u32 v7, 0x20000, v5')
    k('s_and_b32 s12, s2, 7'); k('s_lshr_b32 s13, s2, 3')
    k('s_mov_b32 s14, 0'); k('s_mov_b32 s47, 0'); k('s_mov_b32 s15, 0'); k(f's_mov_b32 s16, {FL}')
    if DBG:
        DW = int(os.environ.get('DBGWG', '0'))
        k('s_load_dwordx2 s[84:85], s[0:1], 64'); k('s_mov_b32 s86, 256'); k('s_mov_b32 s87, 0x00020000')
        k('s_mov_b32 s88, 0'); k('s_mov_b32 s89, 1')
        L = k.new_label('d')
        k(f's_cmp_lg_u32 s2, {DW}'); k(f's_cbranch_scc1 {L}'); k(f"s_xor_b32 s89, s3, {int(os.environ.get('DBGWAVE', '0'))}"); k.label(L)
        k('s_waitcnt lgkmcnt(0)')
        k('v_mov_b32 v2, 0')
    stamp(k, 'start')
    tl_roles(k)
    k('s_mov_b32 s17, 0'); k('s_mov_b32 s48, 0')
    if FAST:
        L = k.new_label('xc')
        k('s_getreg_b32 s46, hwreg(HW_REG_XCC_ID, 0, 4)'); k('s_add_u32 s46, s46, 1')
        k('s_cmp_lg_u32 s3, 0'); k(f's_cbranch_scc1 {L}')
        k('s_lshl_b32 s18, s12, 7'); k('s_lshl_b32 s19, s13, 2'); k('s_add_u32 s18, s18, s19'); k(f's_add_u32 s18, s18, {FL + XT}')
        k('v_mov_b32 v9, s46')
        k('s_mov_b32 exec_lo, 1'); k('s_mov_b32 exec_hi, 0')
        k('buffer_store_dword v9, off, s[4:7], s18 sc1')
        k('s_mov_b32 exec_lo, -1'); k('s_mov_b32 exec_hi, -1')
        k.label(L)
    wq_prefetch(k)
    if TOUCH >= 1: touch_q(k)
    if TOUCH == 1: touch_rest(k)
    TOP = k.new_label('top'); IDLE = k.new_label('idle'); NEXT = k.new_label('next'); END = k.new_label('fin')
    k.label(TOP)
    def stopchk(ph):
        if STOP < 5 and ph == STOP: k(f's_branch {END}')
        elif STOP >= 5 and STOP < 10 and ph == STOP - 5:
            k('s_cmp_eq_u32 s15, 1'); k(f's_cbranch_scc1 {END}')
    qkv(k); stopchk(0)
    attn(k); stopchk(1)
    k('s_cmp_ge_u32 s13, 28'); k(f's_cbranch_scc1 {IDLE}')
    wo(k); stopchk(2)
    ffn1(k); stopchk(3)
    ffn2(k); stopchk(4)
    k(f's_branch {NEXT}')
    k.label(IDLE)
    if STOP < 5: k(f's_branch {END}')
    k('s_cmp_lg_u32 s15, 0'); k(f's_cbranch_scc1 {END}')
    wq_prefetch(k)
    k.label(NEXT)
    stamp(k, 'end')
    k('s_cmp_lg_u32 s15, 0'); k(f's_cbranch_scc1 {END}')
    k('s_mov_b32 s15, 1'); k(f's_mov_b32 s14, 0x{LS:x}'); k(f's_mov_b32 s47, 0x{KVLS:x}'); k(f's_mov_b32 s16, {FL + FLS}')
    if DBG: k('s_mov_b32 s88, 32')
    k(f's_branch {TOP}')
    k.label(END)
    if DBG:
        L = k.new_label('d')
        k('s_cmp_lg_u32 s89, 0'); k(f's_cbranch_scc1 {L}')
        k('v_lshlrev_b32 v8, 2, v1')
        k('buffer_store_dword v2, v8, s[84:87], 0 offen')
        k.label(L)
    k.label(k.name + '_end')
    k('s_endpgm')
    return k

def build(path):
    p = gen_prep(); m = gen_main()
    open(path + '.names', 'w').write(' '.join(STN))
    return emit_file([p, m], [NAME + '_kernel', 'main_kernel'], path)
if __name__ == '__main__':
    build(sys.argv[1] if len(sys.argv) > 1 else 'p1.s')
```
